```python
import torch

def _softmax(x, axis=-1):
    return torch.softmax(x, dim=axis)

def _gelu(x):
    return torch.nn.functional.gelu(x, approximate='tanh')

def _silu(x):
    return torch.nn.functional.silu(x)

def _sigmoid(x):
    return torch.sigmoid(x)

def _layernorm(x, axis=-1, eps=1e-05):
    m = x.mean(dim=axis, keepdim=True)
    v = x.var(dim=axis, keepdim=True, unbiased=False)
    return (x - m) / torch.sqrt(v + eps)

def _scatter_add(tgt, idx, src, axis=0):
    return tgt.clone().index_add_(axis, idx, src)

def _segment_sum(src, seg, n):
    out = torch.zeros((n,) + src.shape[1:], dtype=src.dtype)
    return out.index_add_(0, seg, src)

def _pad(x, pw):
    flat = tuple((v for pair in reversed(pw) for v in pair))
    return torch.nn.functional.pad(x, flat)
kernel_name = 'standalone__conformer_conv_module__speech'

def setup_inputs():

    _w = lambda a: (lambda t: t.to(torch.bfloat16) if t.is_floating_point() else t)(torch.as_tensor(a))
    B, T, D, K = (2, 4000, 512, 15)
    return {'x': _w((lambda *s: torch.randn(*s, dtype=torch.bfloat16) * 0.2)(B, T, D)), 'w_pw1': _w((lambda *s: torch.randn(*s, dtype=torch.bfloat16) * 0.2)(D, 2 * D)), 'dw': _w((lambda *s: torch.randn(*s, dtype=torch.bfloat16) * 0.2)(K, D)), 'w_pw2': _w((lambda *s: torch.randn(*s, dtype=torch.bfloat16) * 0.05)(D, D))}

def reference(x, w_pw1, dw, w_pw2):
    B, T, D = x.shape
    K = dw.shape[0]
    h = x @ w_pw1
    a, b = (h[..., :D].clone(), h[..., D:].clone())
    h = a * _sigmoid(b)
    pad = K // 2
    hp = _pad(h, ((0, 0), (pad, pad), (0, 0)))
    out = torch.zeros_like(h)
    for i in range(K):
        out = out + hp[:, i:i + T, :] * dw[i][None, None, :]
    return _silu(out) @ w_pw2
```

```python
import sys

class Asm:
    def __init__(self):
        self.L = []
    def __call__(self, s):
        self.L.append("    " + s)
    def label(self, s):
        self.L.append(s + ":")
    def raw(self, s):
        self.L.append(s)

def vr(b, n=4):
    return f"v[{b}:{b+n-1}]"

STAMPS = "--stamps" in sys.argv
OUT = sys.argv[1]

NEG_LOG2E = 0xbfb8aa3b

STAGE = 49 * 1024
XOFF = 16384
DW_OFF = 3 * STAGE
HT_OFF = 0
HT_STRIDE = 560
K1_LDS = DW_OFF + 32 * 144

def stamp(A, idx, base_s=70):
    if STAMPS:
        A(f"s_memtime s[{base_s+2*idx}:{base_s+2*idx+1}]")

def gen_k1(A):
    A.raw(".globl k1_kernel")
    A.raw(".p2align 8")
    A.raw(".type k1_kernel,@function")
    A.label("k1_kernel")
    A("s_cmp_ge_u32 s2, 256")
    A("s_cbranch_scc1 K1_end")
    stamp(A, 0)
    A("s_load_dwordx8 s[4:11], s[0:1], 0")
    A("s_load_dwordx2 s[14:15], s[0:1], 48")
    A("v_and_b32 v1, 63, v0")
    A("v_lshrrev_b32 v2, 6, v0")
    A("v_and_b32 v3, 15, v1")
    A("v_readfirstlane_b32 s32, v2")
    A("v_lshrrev_b32 v4, 4, v1")
    A("s_and_b32 s36, s2, 7")
    A("s_lshr_b32 s37, s2, 3")
    A("s_lshr_b32 s38, s37, 3")
    A("s_lshl_b32 s33, s36, 2")
    A("s_add_u32 s33, s33, s38")
    A("s_and_b32 s34, s37, 7")
    A("s_lshl_b32 s35, s38, 1")
    A("s_add_u32 s35, s35, s34")
    A("s_lshr_b32 s36, s33, 4")
    A("s_and_b32 s37, s33, 15")
    A("s_mul_i32 s37, s37, 250")
    A("s_sub_i32 s37, s37, 7")
    A("s_mul_i32 s36, s36, 4096000")
    A("s_and_b32 s39, s32, 3")
    A("s_lshl_b32 s43, s32, 10")
    A("s_lshl_b32 s44, s32, 12")
    A(f"s_add_u32 s44, s44, {XOFF}")
    A("v_lshrrev_b32 v5, 3, v1")
    A("v_and_b32 v6, 7, v1")
    A("v_lshrrev_b32 v7, 2, v5")
    A("v_and_b32 v8, 3, v5")
    A("v_lshl_add_u32 v7, v7, 3, v8")
    A("s_lshl_b32 s40, s32, 5")
    A("s_add_i32 s40, s40, s37")
    A("v_add_u32 v7, s40, v7")
    A("v_lshrrev_b32 v8, 1, v5")
    A("v_xor_b32 v8, v8, v6")
    A("v_lshlrev_b32 v8, 4, v8")
    A("v_xor_b32 v9, 64, v8")
    A("v_mov_b32 v20, 0x80000000")
    for o in range(2):
        for u in range(2):
            d = 10 + 2 * o + u
            A(f"v_add_u32 v21, {16*u+4*o}, v7")
            A(f"v_lshl_add_u32 v{d}, v21, 10, v{8+u}")
            A("v_cmp_gt_i32 vcc, 0, v21")
            A("s_nop 1")
            A(f"v_cndmask_b32 v{d}, v{d}, v20, vcc")
    A("s_add_i32 s40, s37, 256")
    A("v_add_u32 v21, s40, v5")
    A("v_lshl_add_u32 v14, v21, 10, v8")
    A("v_lshrrev_b32 v21, 1, v5")
    A("v_and_b32 v21, 1, v21")
    A("v_lshlrev_b32 v21, 2, v21")
    A("s_and_b32 s40, s32, 1")
    A("s_lshl_b32 s40, s40, 1")
    A("v_or_b32 v21, s40, v21")
    A("v_xor_b32 v21, v21, v6")
    A("v_lshlrev_b32 v21, 4, v21")
    A("v_lshl_add_u32 v15, v5, 11, v21")
    A("s_lshl_b32 s40, s32, 14")
    A("s_lshl_b32 s41, s34, 7")
    A("s_add_u32 s40, s40, s41")
    A("v_add_u32 v15, s40, v15")
    A("v_lshrrev_b32 v21, 3, v0")
    A("v_subrev_u32 v22, 7, v21")
    A("v_lshlrev_b32 v16, 10, v22")
    A("v_lshl_add_u32 v16, v6, 4, v16")
    A("v_add_u32 v16, s41, v16")
    A("v_cmp_gt_i32 vcc, 0, v22")
    A("s_nop 1")
    A("v_cndmask_b32 v16, v16, v20, vcc")
    A("v_mul_u32_u24 v17, 144, v21")
    A("v_lshl_add_u32 v17, v6, 4, v17")
    A(f"v_add_u32 v17, {DW_OFF}, v17")
    A("s_waitcnt lgkmcnt(0)")
    stamp(A, 1)
    A("s_add_u32 s16, s4, s36"); A("s_addc_u32 s17, s5, 0"); A("s_mov_b32 s18, 4096000"); A("s_mov_b32 s19, 0x20000")
    A("s_mov_b32 s20, s6"); A("s_mov_b32 s21, s7"); A("s_mov_b32 s22, 1048576"); A("s_mov_b32 s23, 0x20000")
    A("s_mov_b32 s24, s8"); A("s_mov_b32 s25, s9"); A("s_mov_b32 s26, 15360"); A("s_mov_b32 s27, 0x20000")
    A("s_mov_b32 s28, s14"); A("s_mov_b32 s29, s15"); A("s_mov_b32 s30, 0x1000000"); A("s_mov_b32 s31, 0x20000")
    A("s_cmp_ge_u32 s32, 4")
    A("s_cbranch_scc1 K1_mh1")
    for mh in range(2):
        A.label(f"K1_mh{mh}")
        k1_path(A, mh)
        if mh == 0:
            A("s_branch K1_epi")
    A.label("K1_epi")
    k1_epilogue(A)
    A.label("K1_end")
    A("s_endpgm")

ACC = 32
XF = 104
WF = 176
VXA = 18
VWA = 24
TT = 192
TMP = 104

def dma_stage(A, c, mh):
    slot = (c % 3) * STAGE
    A(f"s_add_u32 s40, s35, {c}")
    A("s_and_b32 s40, s40, 7")
    A("s_lshl_b32 s41, s40, 17")
    A("s_lshl_b32 s40, s40, 7")
    A("s_add_u32 s42, s41, 1024")
    if mh == 1:
        A("s_cmp_eq_u32 s32, 7")
        A(f"s_cbranch_scc0 K1_noS_{c}")
        A(f"s_mov_b32 m0, {slot + XOFF + 32*1024}")
        A("s_nop 0")
        A("buffer_load_dwordx4 v14, s[16:19], s40 offen lds")
        A.label(f"K1_noS_{c}")
    A(f"s_add_u32 m0, s43, {slot}")
    A("s_nop 0")
    A("buffer_load_dwordx4 v15, s[20:23], s41 offen lds")
    A(f"s_add_u32 m0, s43, {slot + 8192}")
    A("s_nop 0")
    A("buffer_load_dwordx4 v15, s[20:23], s42 offen lds")
    for q in range(4):
        A(f"s_add_u32 m0, s44, {slot + q*1024}")
        A("s_nop 0")
        A(f"buffer_load_dwordx4 v{10+q}, s[16:19], s40 offen lds")

def k1_reads(j, mh, NT):
    c, ks = j >> 1, j & 1
    sl = c % 3
    buf = j & 1
    R = []
    for part in range(2):
        for h in range(2):
            d = WF + buf * 8 + part * 4 + h * 2
            R.append(f"ds_read_b64_tr_b16 v[{d}:{d+1}], v{VWA+sl} offset:{part*8192 + ks*4096 + h*512}")
    for tt in range(NT):
        tile = (mh * 8 + tt) if tt < 8 else 16
        d = XF + buf * 36 + tt * 4
        R.append(f"ds_read_b128 {vr(d)}, v{VXA+sl*2+ks} offset:{XOFF + tile*2048}")
    return R

def k1_mfmas(j, NT):
    buf = j & 1
    M = []
    for tt in range(NT):
        for part in range(2):
            a = ACC + (tt * 2 + part) * 4
            cin = "0" if j == 0 else vr(a)
            M.append(f"v_mfma_f32_16x16x32_bf16 {vr(a)}, {vr(XF + buf*36 + tt*4)}, {vr(WF + buf*8 + part*4)}, {cin}")
    return M

def k1_path(A, mh):
    NT = 9 if mh == 0 else 8
    if mh == 0:
        A("buffer_load_dwordx4 v[28:31], v16, s[24:27], 0 offen")
    dma_stage(A, 0, mh)
    dma_stage(A, 1, mh)
    A("v_lshrrev_b32 v5, 3, v3")
    A("v_and_b32 v6, 7, v3")
    A("v_lshlrev_b32 v5, 10, v5")
    A("v_lshl_add_u32 v5, v6, 7, v5")
    A("v_lshrrev_b32 v6, 1, v3")
    A("v_xor_b32 v6, v6, v4")
    A("v_lshl_add_u32 v7, v6, 4, v5")
    A("v_xor_b32 v8, 64, v7")
    for sl in range(3):
        A(f"v_add_u32 v{VXA+sl*2}, {sl*STAGE}, v7")
        A(f"v_add_u32 v{VXA+sl*2+1}, {sl*STAGE}, v8")
    A("v_lshrrev_b32 v5, 2, v3")
    A("v_and_b32 v6, 3, v3")
    A("v_lshrrev_b32 v7, 1, v6")
    A("s_lshl_b32 s40, s39, 1")
    A("v_or_b32 v7, s40, v7")
    A("v_lshrrev_b32 v8, 1, v5")
    A("v_lshlrev_b32 v8, 2, v8")
    A("v_and_b32 v9, 1, v4")
    A("v_lshl_or_b32 v8, v9, 1, v8")
    A("v_xor_b32 v7, v7, v8")
    A("v_lshlrev_b32 v7, 4, v7")
    A("v_lshl_add_u32 v7, v5, 7, v7")
    A("v_lshl_add_u32 v7, v4, 10, v7")
    A("v_and_b32 v6, 1, v6")
    A("v_lshl_add_u32 v7, v6, 3, v7")
    for sl in range(3):
        A(f"v_add_u32 v{VWA+sl}, {sl*STAGE}, v7")
    if mh == 0:
        A("s_waitcnt vmcnt(12)")
        A("ds_write_b128 v17, v[28:31]")
    A("s_waitcnt vmcnt(6) lgkmcnt(0)")
    A("s_barrier")
    stamp(A, 2)
    dma_stage(A, 2, mh)
    for r in k1_reads(0, mh, NT):
        A(r)
    for j in range(16):
        c_next = (j + 1) >> 1
        newstage = (j & 1) == 1 and j < 15
        if newstage:
            A(f"s_waitcnt vmcnt({6 if c_next < 7 else 0}) lgkmcnt(0)")
            A("s_barrier")
            if mh == 0 and c_next + 2 < 8:
                dma_stage(A, c_next + 2, mh)
        else:
            A("s_waitcnt lgkmcnt(0)")
            if mh == 1 and (j & 1) == 0 and j >= 2 and (j >> 1) + 2 < 8:
                dma_stage(A, (j >> 1) + 2, mh)
        M = k1_mfmas(j, NT)
        R = k1_reads(j + 1, mh, NT) if j < 15 else []
        for i, m in enumerate(M):
            A(m)
            if i < len(R):
                A(R[i])
    stamp(A, 3)
    A("v_lshlrev_b32 v5, 3, v4")
    A("v_sub_u32 v5, v5, v3")
    A("v_add_u32 v5, 7, v5")
    A("v_cmp_lt_u32 vcc, 21, v5")
    A("v_mov_b32 v6, 22")
    A("s_nop 0")
    A("v_cndmask_b32 v5, v5, v6, vcc")
    A("v_mul_u32_u24 v5, 144, v5")
    A("s_lshl_b32 s40, s32, 4")
    A(f"s_add_u32 s40, s40, {DW_OFF}")
    A("v_add_u32 v5, s40, v5")
    RR = XF + 36
    RR = XF
    for e in range(8):
        A(f"ds_read_b128 {vr(RR + 4*e)}, v5 offset:{e*144}")
    A("s_mov_b32 s45, 0x05040100")
    A("s_mov_b32 s46, 0x07060302")
    A("s_waitcnt lgkmcnt(0)")
    for j in range(8):
        for d in range(4):
            A(f"v_perm_b32 v{TT + 4*j + d}, v{RR + 4*(2*d+1) + (j>>1)}, v{RR + 4*(2*d) + (j>>1)}, s{45 + (j&1)}")
    A("s_lshl_b32 s40, s39, 4")
    A("v_add_u32 v5, s40, v3")
    A(f"v_mul_u32_u24 v5, {HT_STRIDE}, v5")
    A("v_lshl_add_u32 v6, v4, 4, v5")
    A("v_lshl_add_u32 v7, v4, 3, v5")
    T0 = XF + 32
    def glu(a_regs, b_regs, out_regs):
        n = len(a_regs)
        t = [T0 + i for i in range(n)]
        for i in range(n): A(f"v_mul_f32 v{t[i]}, 0x{NEG_LOG2E:x}, v{b_regs[i]}")
        for i in range(n): A(f"v_exp_f32 v{t[i]}, v{t[i]}")
        for i in range(n): A(f"v_add_f32 v{t[i]}, 1.0, v{t[i]}")
        for i in range(n): A(f"v_rcp_f32 v{t[i]}, v{t[i]}")
        for i in range(n): A(f"v_mul_f32 v{t[i]}, v{a_regs[i]}, v{t[i]}")
        for i in range(n // 2): A(f"v_cvt_pk_bf16_f32 v{out_regs[i]}, v{t[2*i]}, v{t[2*i+1]}")
    for p in range(4):
        a_regs = [ACC + ((2*p + o) * 2 + 0) * 4 + r for o in range(2) for r in range(4)]
        b_regs = [ACC + ((2*p + o) * 2 + 1) * 4 + r for o in range(2) for r in range(4)]
        O = T0 + 8 + 4 * (p & 1)
        glu(a_regs, b_regs, [O + i for i in range(4)])
        A(f"ds_write_b128 v6, {vr(O)} offset:{HT_OFF + (4*mh + p) * 64}")
    if mh == 0:
        a_regs = [ACC + 16 * 4 + r for r in range(4)]
        b_regs = [ACC + 17 * 4 + r for r in range(4)]
        O = T0 + 16
        glu(a_regs, b_regs, [O, O + 1])
        A("v_cmp_gt_u32 vcc, 2, v4")
        A("s_nop 1")
        A(f"v_cndmask_b32 v{O}, 0, v{O}, vcc")
        A(f"v_cndmask_b32 v{O+1}, 0, v{O+1}, vcc")
        A(f"ds_write_b64 v7, v[{O}:{O+1}] offset:{HT_OFF + 512}")

def k1_epilogue(A):
    A("s_waitcnt lgkmcnt(0)")
    A("s_barrier")
    stamp(A, 4)
    A(f"s_mul_i32 s40, s32, {8*HT_STRIDE}")
    A("v_lshlrev_b32 v5, 5, v3")
    A("v_lshl_add_u32 v5, v4, 4, v5")
    A("v_add_u32 v5, s40, v5")
    HA = XF
    Y = ACC
    for j in range(8):
        A(f"ds_read_b128 {vr(HA + 4*j)}, v5 offset:{HT_OFF + j*HT_STRIDE}")
    for j in range(8):
        A(f"s_waitcnt lgkmcnt({7-j})")
        A(f"v_mfma_f32_16x16x32_bf16 {vr(Y + 4*j)}, {vr(HA + 4*j)}, {vr(TT + 4*j)}, 0")
    A("s_lshl_b32 s40, s34, 3")
    A("s_add_u32 s40, s40, s32")
    A("s_lshl_b32 s40, s40, 9")
    A("s_lshl_b32 s41, s33, 18")
    A("s_add_u32 s40, s40, s41")
    A("v_lshlrev_b32 v6, 16, v4")
    A("v_lshl_add_u32 v6, v3, 4, v6")
    A("v_add_u32 v7, 0x8000, v6")
    A("s_nop 4")
    T0 = XF + 32
    for r in range(4):
        y = [Y + 4*j + r for j in range(8)]
        t = [T0 + 8*(r & 1) + i for i in range(8)]
        O = T0 + 16 + 4 * r
        for i in range(8): A(f"v_mul_f32 v{t[i]}, 0x{NEG_LOG2E:x}, v{y[i]}")
        for i in range(8): A(f"v_exp_f32 v{t[i]}, v{t[i]}")
        for i in range(8): A(f"v_add_f32 v{t[i]}, 1.0, v{t[i]}")
        for i in range(8): A(f"v_rcp_f32 v{t[i]}, v{t[i]}")
        for i in range(8): A(f"v_mul_f32 v{t[i]}, v{y[i]}, v{t[i]}")
        for i in range(4): A(f"v_cvt_pk_bf16_f32 v{O+i}, v{t[2*i]}, v{t[2*i+1]}")
        A(f"buffer_store_dwordx4 {vr(O)}, v{6 + (r>>1)}, s[28:31], s40 offen offset:{(r&1)*256}")
    if STAMPS:
        stamp(A, 5)
        A("s_waitcnt vmcnt(0)")
        stamp(A, 6)
        write_stamps(A, 7, 0x800000, "K1")

def write_stamps(A, ns, off, pfx):
    A("s_memrealtime s[68:69]")
    A("s_waitcnt lgkmcnt(0)")
    A("s_cmp_eq_u32 s32, 0")
    A(f"s_cbranch_scc0 {pfx}_end")
    A("v_cmp_eq_u32 vcc, 0, v1")
    A("s_and_saveexec_b64 s[66:67], vcc")
    A(f"s_mul_i32 s40, s2, {8*(ns+1)}")
    A(f"s_add_u32 s40, s40, {off}")
    A("v_mov_b32 v3, s40")
    for j in range(ns):
        A(f"v_mov_b32 v4, s{70+2*j}"); A(f"v_mov_b32 v5, s{71+2*j}")
        A(f"buffer_store_dwordx2 v[4:5], v3, s[28:31], 0 offen offset:{8*j}")
        A("s_nop 1")
    A(f"v_mov_b32 v4, s68"); A(f"v_mov_b32 v5, s69")
    A(f"buffer_store_dwordx2 v[4:5], v3, s[28:31], 0 offen offset:{8*ns}")

K2_LDS = 163840
K2_OB = 131072
def gen_k2(A):
    SF = 128
    ACC2 = 64
    WF2 = 32
    A.raw(".globl k2_kernel")
    A.raw(".p2align 8")
    A.raw(".type k2_kernel,@function")
    A.label("k2_kernel")
    A("s_cmp_ge_u32 s2, 256")
    A("s_cbranch_scc1 K2_end")
    stamp(A, 0)
    A("s_load_dwordx2 s[10:11], s[0:1], 24")
    A("s_load_dwordx2 s[12:13], s[0:1], 32")
    A("s_load_dwordx2 s[14:15], s[0:1], 48")
    A("v_and_b32 v1, 63, v0")
    A("v_lshrrev_b32 v2, 6, v0")
    A("v_and_b32 v3, 15, v1")
    A("v_readfirstlane_b32 s32, v2")
    A("v_lshrrev_b32 v4, 4, v1")
    A("s_and_b32 s36, s2, 7")
    A("s_lshr_b32 s37, s2, 3")
    A("s_lshr_b32 s38, s37, 2")
    A("s_and_b32 s34, s37, 3")
    A("s_lshl_b32 s33, s36, 3")
    A("s_add_u32 s33, s33, s38")
    A("s_lshl_b32 s35, s34, 1")
    A("s_add_u32 s35, s35, s38")
    A("v_lshrrev_b32 v5, 3, v1")
    A("v_and_b32 v6, 7, v1")
    A("v_lshrrev_b32 v7, 1, v5")
    A("v_and_b32 v7, 1, v7")
    A("v_lshlrev_b32 v7, 2, v7")
    A("v_xor_b32 v7, v7, v6")
    A("v_lshlrev_b32 v7, 4, v7")
    A("v_lshl_add_u32 v10, v5, 10, v7")
    A("s_lshl_b32 s40, s32, 14")
    A("s_lshl_b32 s41, s34, 8")
    A("s_add_u32 s40, s40, s41")
    A("v_add_u32 v10, s40, v10")
    A("v_xor_b32 v11, 32, v10")
    A("v_add_u32 v11, 8192, v11")
    A("s_lshl_b32 s40, s33, 2")
    A("s_add_u32 s40, s40, s32")
    A("s_lshl_b32 s40, s40, 15")
    A("v_lshlrev_b32 v12, 4, v1")
    A("v_add_u32 v12, s40, v12")
    A("s_lshl_b32 s43, s32, 11")
    A("s_waitcnt lgkmcnt(0)")
    stamp(A, 1)
    A("s_mov_b32 s20, s10"); A("s_mov_b32 s21, s11"); A("s_mov_b32 s22, 524288"); A("s_mov_b32 s23, 0x20000")
    A("s_mov_b32 s28, s14"); A("s_mov_b32 s29, s15"); A("s_mov_b32 s30, 0x1000000"); A("s_mov_b32 s31, 0x20000")
    A("s_lshr_b32 s40, s33, 1")
    A("s_mul_i32 s40, s40, 256000")
    A("s_add_u32 s24, s12, s40"); A("s_addc_u32 s25, s13, 0"); A("s_mov_b32 s26, 256000"); A("s_mov_b32 s27, 0x20000")
    for c in range(8):
        A(f"s_add_u32 s40, s35, {c}")
        A("s_and_b32 s40, s40, 7")
        A("s_lshl_b32 s41, s40, 16")
        A("s_add_u32 s42, s41, 128")
        A("s_lshl_b32 s40, s40, 12")
        for sg in range(2):
            for part in range(2):
                A(f"s_add_u32 m0, s43, {c*16384 + part*8192 + sg*1024}")
                A("s_nop 0")
                A(f"buffer_load_dwordx4 v{10+sg}, s[20:23], s{41+part} offen lds")
        for q in range(4):
            A(f"buffer_load_dwordx4 {vr(SF + (c*4+q)*4)}, v12, s[28:31], s40 offen offset:{q*1024}")
    A("v_lshrrev_b32 v5, 2, v3")
    A("v_and_b32 v6, 3, v3")
    A("v_lshrrev_b32 v7, 1, v6")
    A("v_and_b32 v8, 1, v4")
    A("v_lshl_or_b32 v7, v8, 1, v7")
    A("v_lshrrev_b32 v8, 1, v5")
    A("v_lshlrev_b32 v8, 2, v8")
    A("v_lshrrev_b32 v9, 1, v4")
    A("v_lshl_or_b32 v8, v9, 1, v8")
    A("v_xor_b32 v7, v7, v8")
    A("v_lshlrev_b32 v7, 4, v7")
    A("v_lshl_add_u32 v7, v5, 7, v7")
    A("v_lshl_add_u32 v7, v9, 10, v7")
    A("v_and_b32 v6, 1, v6")
    A("v_lshl_add_u32 v13, v6, 3, v7")
    A("v_xor_b32 v14, 64, v13")
    A("v_add_u32 v15, 0x10000, v13")
    A("v_add_u32 v16, 0x10000, v14")
    def reads(j):
        c, kq = j >> 2, j & 3
        buf = j & 1
        R = []
        for ct in range(4):
            part, ctp = ct >> 1, ct & 1
            for h in range(2):
                off = c * 16384 + part * 8192 + kq * 2048 + h * 512
                base = 13 + ctp + (2 if off >= 65536 else 0)
                d = WF2 + buf * 16 + ct * 4 + h * 2
                R.append(f"ds_read_b64_tr_b16 v[{d}:{d+1}], v{base} offset:{off & 0xffff}")
        return R
    def mfmas(j):
        buf = j & 1
        M = []
        for ct in range(4):
            a = ACC2 + ct * 16
            cin = "0" if j == 0 else vr(a, 16)
            M.append(f"v_mfma_f32_32x32x16_bf16 {vr(a,16)}, {vr(WF2 + buf*16 + ct*4)}, {vr(SF + j*4)}, {cin}")
        return M
    A("s_waitcnt vmcnt(56)")
    A("s_barrier")
    stamp(A, 2)
    for r in reads(0): A(r)
    for j in range(32):
        if (j & 3) == 3 and j < 31:
            cn = (j + 1) >> 2
            A(f"s_waitcnt vmcnt({56 - 8*cn}) lgkmcnt(0)")
            A("s_barrier")
        else:
            A("s_waitcnt lgkmcnt(0)")
        M = mfmas(j)
        R = reads(j + 1) if j < 31 else []
        for i, m in enumerate(M):
            A(m)
            for r in R[2*i:2*i+2]: A(r)
    stamp(A, 3)
    A("v_and_b32 v5, 31, v1")
    A("v_lshrrev_b32 v6, 5, v1")
    A("v_and_b32 v7, 7, v5")
    A("v_xor_b32 v7, v7, v6")
    A("v_lshlrev_b32 v7, 4, v7")
    A("v_lshl_add_u32 v7, v5, 8, v7")
    A("s_lshl_b32 s40, s32, 13")
    A(f"s_add_u32 s40, s40, {K2_OB}")
    A("v_add_u32 v7, s40, v7")
    for x in (1, 2, 3):
        A(f"v_xor_b32 v{7+x}, {32*x}, v7")
    A("s_nop 7")
    P = 16
    n = 0
    for ct in range(4):
        for qq in range(2):
            a = ACC2 + ct * 16 + qq * 8
            O = P + 4 * (n & 3)
            A(f"v_cvt_pk_bf16_f32 v{O}, v{a}, v{a+1}")
            A(f"v_cvt_pk_bf16_f32 v{O+1}, v{a+2}, v{a+3}")
            A(f"v_cvt_pk_bf16_f32 v{O+2}, v{a+4}, v{a+5}")
            A(f"v_cvt_pk_bf16_f32 v{O+3}, v{a+6}, v{a+7}")
            A("s_nop 1")
            A(f"v_permlane32_swap_b32 v{O}, v{O+2}")
            A(f"v_permlane32_swap_b32 v{O+1}, v{O+3}")
            u = 4 * ct + 2 * qq
            A(f"ds_write_b128 v{7 + ((u & 7) >> 1)}, {vr(O)} offset:{(u >> 3) * 128}")
            n += 1
    A("v_xor_b32 v11, v3, v4")
    A("v_lshlrev_b32 v11, 4, v11")
    A("v_lshl_add_u32 v11, v4, 8, v11")
    A("v_add_u32 v11, s40, v11")
    A("v_xor_b32 v12, 64, v11")
    A("s_and_b32 s41, s33, 1")
    A("s_lshl_b32 s41, s41, 2")
    A("s_add_u32 s41, s41, s32")
    A("s_lshl_b32 s41, s41, 15")
    A("s_lshl_b32 s42, s34, 8")
    A("s_add_u32 s41, s41, s42")
    A("v_lshlrev_b32 v13, 4, v3")
    A("v_lshl_add_u32 v13, v4, 10, v13")
    A("s_waitcnt lgkmcnt(0)")
    for i in range(8):
        A(f"ds_read_b128 {vr(32 + 4*i)}, v{11 + (i&1)} offset:{i*1024}")
    for i in range(8):
        A(f"s_waitcnt lgkmcnt({7-i})")
        A(f"buffer_store_dwordx4 {vr(32 + 4*i)}, v13, s[24:27], s41 offen")
        A("s_add_u32 s41, s41, 4096")
    if STAMPS:
        stamp(A, 4)
        A("s_waitcnt vmcnt(0)")
        stamp(A, 5)
        write_stamps(A, 6, 0x900000, "K2")
    A.label("K2_end")
    A("s_endpgm")

def desc(name, vgpr):
    return f""".p2align 6
.amdhsa_kernel {name}
  .amdhsa_next_free_vgpr {vgpr}
  .amdhsa_next_free_sgpr 96
  .amdhsa_accum_offset {vgpr}
  .amdhsa_group_segment_fixed_size 0
  .amdhsa_kernarg_size 56
  .amdhsa_user_sgpr_count 2
  .amdhsa_user_sgpr_kernarg_segment_ptr 1
  .amdhsa_system_sgpr_workgroup_id_x 1
.end_amdhsa_kernel"""

A = Asm()
A.raw(f"; @launch kernel=k1_kernel grid=(256,1,1) block=(512,1,1) lds={K1_LDS}")
A.raw(f"; @launch kernel=k2_kernel grid=(256,1,1) block=(256,1,1) lds={K2_LDS}")
A.raw('.amdgcn_target "amdgcn-amd-amdhsa--gfx950"')
A.raw(".text")
gen_k1(A)
gen_k2(A)
A.raw('.section .rodata,"a"')
A.raw(desc("k1_kernel", 224))
A.raw(desc("k2_kernel", 256))
open(OUT, "w").write("\n".join(A.L) + "\n")
```

```python
import sys

class Asm:
    def __init__(self):
        self.L = []
    def __call__(self, s):
        self.L.append("    " + s)
    def label(self, s):
        self.L.append(s + ":")
    def raw(self, s):
        self.L.append(s)

def vr(b, n=4):
    return f"v[{b}:{b+n-1}]"

DBG = "--dbg" in sys.argv
STAMPS = "--stamps" in sys.argv or DBG
OUT = sys.argv[1]

NEG_LOG2E = 0xbfb8aa3b

STAGE = 49 * 1024
XOFF = 16384
DW_OFF = 3 * STAGE
HT_OFF = 0
HT_STRIDE = 560
K1_LDS = DW_OFF + 32 * 144

def stamp(A, idx, base_s=70):
    if STAMPS:
        A(f"s_memtime s[{base_s+2*idx}:{base_s+2*idx+1}]")

def gen_k1(A):
    A.raw(".globl k1_kernel")
    A.raw(".p2align 8")
    A.raw(".type k1_kernel,@function")
    A.label("k1_kernel")
    A("s_cmp_ge_u32 s2, 256")
    A("s_cbranch_scc1 K1_end")
    stamp(A, 0)
    A("s_load_dwordx8 s[4:11], s[0:1], 0")
    A("s_load_dwordx2 s[14:15], s[0:1], 48")
    A("v_and_b32 v1, 63, v0")
    A("v_lshrrev_b32 v2, 6, v0")
    A("v_and_b32 v3, 15, v1")
    A("v_readfirstlane_b32 s32, v2")
    A("v_lshrrev_b32 v4, 4, v1")
    A("s_and_b32 s36, s2, 7")
    A("s_lshr_b32 s37, s2, 3")
    A("s_lshr_b32 s38, s37, 3")
    A("s_lshl_b32 s33, s36, 2")
    A("s_add_u32 s33, s33, s38")
    A("s_and_b32 s34, s37, 7")
    A("s_lshl_b32 s35, s38, 1")
    A("s_add_u32 s35, s35, s34")
    A("s_lshr_b32 s36, s33, 4")
    A("s_and_b32 s37, s33, 15")
    A("s_mul_i32 s37, s37, 250")
    A("s_sub_i32 s37, s37, 7")
    A("s_mul_i32 s36, s36, 4096000")
    A("s_and_b32 s39, s32, 3")
    A("s_lshl_b32 s43, s32, 10")
    A("s_lshl_b32 s44, s32, 12")
    A(f"s_add_u32 s44, s44, {XOFF}")
    A("v_lshrrev_b32 v5, 3, v1")
    A("v_and_b32 v6, 7, v1")
    A("v_lshrrev_b32 v7, 2, v5")
    A("v_and_b32 v8, 3, v5")
    A("v_lshl_add_u32 v7, v7, 3, v8")
    A("s_lshl_b32 s40, s32, 5")
    A("s_add_i32 s40, s40, s37")
    A("v_add_u32 v7, s40, v7")
    A("v_lshrrev_b32 v8, 1, v5")
    A("v_xor_b32 v8, v8, v6")
    A("v_lshlrev_b32 v8, 4, v8")
    A("v_xor_b32 v9, 64, v8")
    A("v_mov_b32 v20, 0x80000000")
    for o in range(2):
        for u in range(2):
            d = 10 + 2 * o + u
            A(f"v_add_u32 v21, {16*u+4*o}, v7")
            A(f"v_lshl_add_u32 v{d}, v21, 10, v{8+u}")
            A("v_cmp_gt_i32 vcc, 0, v21")
            A("s_nop 1")
            A(f"v_cndmask_b32 v{d}, v{d}, v20, vcc")
    A("s_add_i32 s40, s37, 256")
    A("v_add_u32 v21, s40, v5")
    A("v_lshl_add_u32 v14, v21, 10, v8")
    A("v_lshrrev_b32 v21, 1, v5")
    A("v_and_b32 v21, 1, v21")
    A("v_lshlrev_b32 v21, 2, v21")
    A("s_and_b32 s40, s32, 1")
    A("s_lshl_b32 s40, s40, 1")
    A("v_or_b32 v21, s40, v21")
    A("v_xor_b32 v21, v21, v6")
    A("v_lshlrev_b32 v21, 4, v21")
    A("v_lshl_add_u32 v15, v5, 11, v21")
    A("s_lshl_b32 s40, s32, 14")
    A("s_lshl_b32 s41, s34, 7")
    A("s_add_u32 s40, s40, s41")
    A("v_add_u32 v15, s40, v15")
    A("v_lshrrev_b32 v21, 3, v0")
    A("v_subrev_u32 v22, 7, v21")
    A("v_lshlrev_b32 v16, 10, v22")
    A("v_lshl_add_u32 v16, v6, 4, v16")
    A("v_add_u32 v16, s41, v16")
    A("v_cmp_gt_i32 vcc, 0, v22")
    A("s_nop 1")
    A("v_cndmask_b32 v16, v16, v20, vcc")
    A("v_mul_u32_u24 v17, 144, v21")
    A("v_lshl_add_u32 v17, v6, 4, v17")
    A(f"v_add_u32 v17, {DW_OFF}, v17")
    A("s_waitcnt lgkmcnt(0)")
    stamp(A, 1)
    A("s_add_u32 s16, s4, s36"); A("s_addc_u32 s17, s5, 0"); A("s_mov_b32 s18, 4096000"); A("s_mov_b32 s19, 0x20000")
    A("s_mov_b32 s20, s6"); A("s_mov_b32 s21, s7"); A("s_mov_b32 s22, 1048576"); A("s_mov_b32 s23, 0x20000")
    A("s_mov_b32 s24, s8"); A("s_mov_b32 s25, s9"); A("s_mov_b32 s26, 15360"); A("s_mov_b32 s27, 0x20000")
    A("s_mov_b32 s28, s14"); A("s_mov_b32 s29, s15"); A("s_mov_b32 s30, 0x1000000"); A("s_mov_b32 s31, 0x20000")
    A("s_cmp_ge_u32 s32, 4")
    A("s_cbranch_scc1 K1_mh1")
    for mh in range(2):
        A.label(f"K1_mh{mh}")
        k1_path(A, mh)
        if mh == 0:
            A("s_branch K1_epi")
    A.label("K1_epi")
    k1_epilogue(A)
    A.label("K1_end")
    A("s_endpgm")

ACC = 32
XF = 104
WF = 176
VXA = 18
VWA = 24
TT = 192
TMP = 104

def dma_stage(A, c, mh):
    slot = (c % 3) * STAGE
    A(f"s_add_u32 s40, s35, {c}")
    A("s_and_b32 s40, s40, 7")
    A("s_lshl_b32 s41, s40, 17")
    A("s_lshl_b32 s40, s40, 7")
    A("s_add_u32 s42, s41, 1024")
    if mh == 1:
        A("s_cmp_eq_u32 s32, 7")
        A(f"s_cbranch_scc0 K1_noS_{c}")
        A(f"s_mov_b32 m0, {slot + XOFF + 32*1024}")
        A("s_nop 0")
        A("buffer_load_dwordx4 v14, s[16:19], s40 offen lds")
        A.label(f"K1_noS_{c}")
    A(f"s_add_u32 m0, s43, {slot}")
    A("s_nop 0")
    A("buffer_load_dwordx4 v15, s[20:23], s41 offen lds")
    A(f"s_add_u32 m0, s43, {slot + 8192}")
    A("s_nop 0")
    A("buffer_load_dwordx4 v15, s[20:23], s42 offen lds")
    for q in range(4):
        A(f"s_add_u32 m0, s44, {slot + q*1024}")
        A("s_nop 0")
        A(f"buffer_load_dwordx4 v{10+q}, s[16:19], s40 offen lds")

def k1_reads(j, mh, NT):
    c, ks = j >> 1, j & 1
    sl = c % 3
    buf = j & 1
    R = []
    for part in range(2):
        for h in range(2):
            d = WF + buf * 8 + part * 4 + h * 2
            R.append(f"ds_read_b64_tr_b16 v[{d}:{d+1}], v{VWA+sl} offset:{part*8192 + ks*4096 + h*512}")
    for tt in range(NT):
        tile = (mh * 8 + tt) if tt < 8 else 16
        d = XF + buf * 36 + tt * 4
        R.append(f"ds_read_b128 {vr(d)}, v{VXA+sl*2+ks} offset:{XOFF + tile*2048}")
    return R

def k1_mfmas(j, NT):
    buf = j & 1
    M = []
    for tt in range(NT):
        for part in range(2):
            a = ACC + (tt * 2 + part) * 4
            cin = "0" if j == 0 else vr(a)
            M.append(f"v_mfma_f32_16x16x32_bf16 {vr(a)}, {vr(XF + buf*36 + tt*4)}, {vr(WF + buf*8 + part*4)}, {cin}")
    return M

def k1_path(A, mh):
    NT = 9 if mh == 0 else 8
    if mh == 0:
        A("buffer_load_dwordx4 v[28:31], v16, s[24:27], 0 offen")
    dma_stage(A, 0, mh)
    dma_stage(A, 1, mh)
    A("v_lshrrev_b32 v5, 3, v3")
    A("v_and_b32 v6, 7, v3")
    A("v_lshlrev_b32 v5, 10, v5")
    A("v_lshl_add_u32 v5, v6, 7, v5")
    A("v_lshrrev_b32 v6, 1, v3")
    A("v_xor_b32 v6, v6, v4")
    A("v_lshl_add_u32 v7, v6, 4, v5")
    A("v_xor_b32 v8, 64, v7")
    for sl in range(3):
        A(f"v_add_u32 v{VXA+sl*2}, {sl*STAGE}, v7")
        A(f"v_add_u32 v{VXA+sl*2+1}, {sl*STAGE}, v8")
    A("v_lshrrev_b32 v5, 2, v3")
    A("v_and_b32 v6, 3, v3")
    A("v_lshrrev_b32 v7, 1, v6")
    A("s_lshl_b32 s40, s39, 1")
    A("v_or_b32 v7, s40, v7")
    A("v_lshrrev_b32 v8, 1, v5")
    A("v_lshlrev_b32 v8, 2, v8")
    A("v_and_b32 v9, 1, v4")
    A("v_lshl_or_b32 v8, v9, 1, v8")
    A("v_xor_b32 v7, v7, v8")
    A("v_lshlrev_b32 v7, 4, v7")
    A("v_lshl_add_u32 v7, v5, 7, v7")
    A("v_lshl_add_u32 v7, v4, 10, v7")
    A("v_and_b32 v6, 1, v6")
    A("v_lshl_add_u32 v7, v6, 3, v7")
    for sl in range(3):
        A(f"v_add_u32 v{VWA+sl}, {sl*STAGE}, v7")
    if mh == 0:
        A("s_waitcnt vmcnt(12)")
        A("ds_write_b128 v17, v[28:31]")
    A("s_waitcnt vmcnt(6) lgkmcnt(0)")
    A("s_barrier")
    stamp(A, 2)
    dma_stage(A, 2, mh)
    for r in k1_reads(0, mh, NT):
        A(r)
    for j in range(16):
        c_next = (j + 1) >> 1
        newstage = (j & 1) == 1 and j < 15
        if newstage:
            A(f"s_waitcnt vmcnt({6 if c_next < 7 else 0}) lgkmcnt(0)")
            A("s_barrier")
            if mh == 0 and c_next + 2 < 8:
                dma_stage(A, c_next + 2, mh)
        else:
            A("s_waitcnt lgkmcnt(0)")
            if mh == 1 and (j & 1) == 0 and j >= 2 and (j >> 1) + 2 < 8:
                dma_stage(A, (j >> 1) + 2, mh)
        M = k1_mfmas(j, NT)
        R = k1_reads(j + 1, mh, NT) if j < 15 else []
        for i, m in enumerate(M):
            A(m)
            if i < len(R):
                A(R[i])
    stamp(A, 3)
    A("v_lshlrev_b32 v5, 3, v4")
    A("v_sub_u32 v5, v5, v3")
    A("v_add_u32 v5, 7, v5")
    A("v_cmp_lt_u32 vcc, 21, v5")
    A("v_mov_b32 v6, 22")
    A("s_nop 0")
    A("v_cndmask_b32 v5, v5, v6, vcc")
    A("v_mul_u32_u24 v5, 144, v5")
    A("s_lshl_b32 s40, s32, 4")
    A(f"s_add_u32 s40, s40, {DW_OFF}")
    A("v_add_u32 v5, s40, v5")
    RR = XF + 36
    RR = XF
    for e in range(8):
        A(f"ds_read_b128 {vr(RR + 4*e)}, v5 offset:{e*144}")
    A("s_mov_b32 s45, 0x05040100")
    A("s_mov_b32 s46, 0x07060302")
    A("s_waitcnt lgkmcnt(0)")
    for j in range(8):
        for d in range(4):
            A(f"v_perm_b32 v{TT + 4*j + d}, v{RR + 4*(2*d+1) + (j>>1)}, v{RR + 4*(2*d) + (j>>1)}, s{45 + (j&1)}")
    A("s_lshl_b32 s40, s39, 4")
    A("v_add_u32 v5, s40, v3")
    A(f"v_mul_u32_u24 v5, {HT_STRIDE}, v5")
    A("v_lshl_add_u32 v6, v4, 4, v5")
    A("v_lshl_add_u32 v7, v4, 3, v5")
    T0 = XF + 32
    def glu(a_regs, b_regs, out_regs):
        n = len(a_regs)
        t = [T0 + i for i in range(n)]
        for i in range(n): A(f"v_mul_f32 v{t[i]}, 0x{NEG_LOG2E:x}, v{b_regs[i]}")
        for i in range(n): A(f"v_exp_f32 v{t[i]}, v{t[i]}")
        for i in range(n): A(f"v_add_f32 v{t[i]}, 1.0, v{t[i]}")
        for i in range(n): A(f"v_rcp_f32 v{t[i]}, v{t[i]}")
        for i in range(n): A(f"v_mul_f32 v{t[i]}, v{a_regs[i]}, v{t[i]}")
        for i in range(n // 2): A(f"v_cvt_pk_bf16_f32 v{out_regs[i]}, v{t[2*i]}, v{t[2*i+1]}")
    for p in range(4):
        a_regs = [ACC + ((2*p + o) * 2 + 0) * 4 + r for o in range(2) for r in range(4)]
        b_regs = [ACC + ((2*p + o) * 2 + 1) * 4 + r for o in range(2) for r in range(4)]
        O = T0 + 8 + 4 * (p & 1)
        glu(a_regs, b_regs, [O + i for i in range(4)])
        A(f"ds_write_b128 v6, {vr(O)} offset:{HT_OFF + (4*mh + p) * 64}")
    if mh == 0:
        a_regs = [ACC + 16 * 4 + r for r in range(4)]
        b_regs = [ACC + 17 * 4 + r for r in range(4)]
        O = T0 + 16
        glu(a_regs, b_regs, [O, O + 1])
        A("v_cmp_gt_u32 vcc, 2, v4")
        A("s_nop 1")
        A(f"v_cndmask_b32 v{O}, 0, v{O}, vcc")
        A(f"v_cndmask_b32 v{O+1}, 0, v{O+1}, vcc")
        A(f"ds_write_b64 v7, v[{O}:{O+1}] offset:{HT_OFF + 512}")

def k1_epilogue(A):
    A("s_waitcnt lgkmcnt(0)")
    A("s_barrier")
    stamp(A, 4)
    A(f"s_mul_i32 s40, s32, {8*HT_STRIDE}")
    A("v_lshlrev_b32 v5, 5, v3")
    A("v_lshl_add_u32 v5, v4, 4, v5")
    A("v_add_u32 v5, s40, v5")
    HA = XF
    Y = ACC
    for j in range(8):
        A(f"ds_read_b128 {vr(HA + 4*j)}, v5 offset:{HT_OFF + j*HT_STRIDE}")
    for j in range(8):
        A(f"s_waitcnt lgkmcnt({7-j})")
        A(f"v_mfma_f32_16x16x32_bf16 {vr(Y + 4*j)}, {vr(HA + 4*j)}, {vr(TT + 4*j)}, 0")
    A("s_lshl_b32 s40, s34, 3")
    A("s_add_u32 s40, s40, s32")
    A("s_lshl_b32 s40, s40, 9")
    A("s_lshl_b32 s41, s33, 18")
    A("s_add_u32 s40, s40, s41")
    A("v_lshlrev_b32 v6, 16, v4")
    A("v_lshl_add_u32 v6, v3, 4, v6")
    A("v_add_u32 v7, 0x8000, v6")
    A("s_nop 4")
    T0 = XF + 32
    for r in range(4):
        y = [Y + 4*j + r for j in range(8)]
        t = [T0 + 8*(r & 1) + i for i in range(8)]
        O = T0 + 16 + 4 * r
        for i in range(8): A(f"v_mul_f32 v{t[i]}, 0x{NEG_LOG2E:x}, v{y[i]}")
        for i in range(8): A(f"v_exp_f32 v{t[i]}, v{t[i]}")
        for i in range(8): A(f"v_add_f32 v{t[i]}, 1.0, v{t[i]}")
        for i in range(8): A(f"v_rcp_f32 v{t[i]}, v{t[i]}")
        for i in range(8): A(f"v_mul_f32 v{t[i]}, v{y[i]}, v{t[i]}")
        for i in range(4): A(f"v_cvt_pk_bf16_f32 v{O+i}, v{t[2*i]}, v{t[2*i+1]}")
        A(f"buffer_store_dwordx4 {vr(O)}, v{6 + (r>>1)}, s[28:31], s40 offen offset:{(r&1)*256}")
    if STAMPS:
        stamp(A, 5)
        A("s_waitcnt vmcnt(0)")
        stamp(A, 6)
        write_stamps(A, 7, 0x800000, "K1")

def write_stamps(A, ns, off, pfx):
    if DBG:
        A("s_load_dwordx2 s[64:65], s[0:1], 40")
        A("s_waitcnt lgkmcnt(0)")
        A("s_cmp_eq_u32 s32, 0")
        A(f"s_cbranch_scc0 {pfx}_end")
        A("s_mov_b32 s40, 0")
        A("s_cmp_eq_u32 s2, 0")
        A(f"s_cbranch_scc1 {pfx}_dbgw")
        A("s_mov_b32 s40, 32")
        A("s_cmp_eq_u32 s2, 100")
        A(f"s_cbranch_scc0 {pfx}_end")
        A.label(f"{pfx}_dbgw")
        A("v_cmp_eq_u32 vcc, 0, v1")
        A("s_and_saveexec_b64 s[66:67], vcc")
        A("v_mov_b32 v3, s40")
        for j in range(1, ns):
            A(f"s_sub_u32 s41, s{70+2*j}, s70")
            A(f"v_mov_b32 v4, s41")
            A(f"global_store_dword v3, v4, s[64:65] offset:{4*j}")
        return
    A("s_memrealtime s[68:69]")
    A("s_waitcnt lgkmcnt(0)")
    A("s_cmp_eq_u32 s32, 0")
    A(f"s_cbranch_scc0 {pfx}_end")
    A("v_cmp_eq_u32 vcc, 0, v1")
    A("s_and_saveexec_b64 s[66:67], vcc")
    A(f"s_mul_i32 s40, s2, {8*(ns+1)}")
    A(f"s_add_u32 s40, s40, {off}")
    A("v_mov_b32 v3, s40")
    for j in range(ns):
        A(f"v_mov_b32 v4, s{70+2*j}"); A(f"v_mov_b32 v5, s{71+2*j}")
        A(f"buffer_store_dwordx2 v[4:5], v3, s[28:31], 0 offen offset:{8*j}")
        A("s_nop 1")
    A(f"v_mov_b32 v4, s68"); A(f"v_mov_b32 v5, s69")
    A(f"buffer_store_dwordx2 v[4:5], v3, s[28:31], 0 offen offset:{8*ns}")

K2_LDS = 163840
K2_OB = 131072
def gen_k2(A):
    SF = 128
    ACC2 = 64
    WF2 = 32
    A.raw(".globl k2_kernel")
    A.raw(".p2align 8")
    A.raw(".type k2_kernel,@function")
    A.label("k2_kernel")
    A("s_cmp_ge_u32 s2, 256")
    A("s_cbranch_scc1 K2_end")
    stamp(A, 0)
    A("s_load_dwordx2 s[10:11], s[0:1], 24")
    A("s_load_dwordx2 s[12:13], s[0:1], 32")
    A("s_load_dwordx2 s[14:15], s[0:1], 48")
    A("v_and_b32 v1, 63, v0")
    A("v_lshrrev_b32 v2, 6, v0")
    A("v_and_b32 v3, 15, v1")
    A("v_readfirstlane_b32 s32, v2")
    A("v_lshrrev_b32 v4, 4, v1")
    A("s_and_b32 s36, s2, 7")
    A("s_lshr_b32 s37, s2, 3")
    A("s_lshr_b32 s38, s37, 2")
    A("s_and_b32 s34, s37, 3")
    A("s_lshl_b32 s33, s36, 3")
    A("s_add_u32 s33, s33, s38")
    A("s_lshl_b32 s35, s34, 1")
    A("s_add_u32 s35, s35, s38")
    A("v_lshrrev_b32 v5, 3, v1")
    A("v_and_b32 v6, 7, v1")
    A("v_lshrrev_b32 v7, 1, v5")
    A("v_and_b32 v7, 1, v7")
    A("v_lshlrev_b32 v7, 2, v7")
    A("v_xor_b32 v7, v7, v6")
    A("v_lshlrev_b32 v7, 4, v7")
    A("v_lshl_add_u32 v10, v5, 10, v7")
    A("s_lshl_b32 s40, s32, 14")
    A("s_lshl_b32 s41, s34, 8")
    A("s_add_u32 s40, s40, s41")
    A("v_add_u32 v10, s40, v10")
    A("v_xor_b32 v11, 32, v10")
    A("v_add_u32 v11, 8192, v11")
    A("s_lshl_b32 s40, s33, 2")
    A("s_add_u32 s40, s40, s32")
    A("s_lshl_b32 s40, s40, 15")
    A("v_lshlrev_b32 v12, 4, v1")
    A("v_add_u32 v12, s40, v12")
    A("s_lshl_b32 s43, s32, 11")
    A("s_waitcnt lgkmcnt(0)")
    stamp(A, 1)
    A("s_mov_b32 s20, s10"); A("s_mov_b32 s21, s11"); A("s_mov_b32 s22, 524288"); A("s_mov_b32 s23, 0x20000")
    A("s_mov_b32 s28, s14"); A("s_mov_b32 s29, s15"); A("s_mov_b32 s30, 0x1000000"); A("s_mov_b32 s31, 0x20000")
    A("s_lshr_b32 s40, s33, 1")
    A("s_mul_i32 s40, s40, 256000")
    A("s_add_u32 s24, s12, s40"); A("s_addc_u32 s25, s13, 0"); A("s_mov_b32 s26, 256000"); A("s_mov_b32 s27, 0x20000")
    for c in range(8):
        A(f"s_add_u32 s40, s35, {c}")
        A("s_and_b32 s40, s40, 7")
        A("s_lshl_b32 s41, s40, 16")
        A("s_add_u32 s42, s41, 128")
        A("s_lshl_b32 s40, s40, 12")
        for sg in range(2):
            for part in range(2):
                A(f"s_add_u32 m0, s43, {c*16384 + part*8192 + sg*1024}")
                A("s_nop 0")
                A(f"buffer_load_dwordx4 v{10+sg}, s[20:23], s{41+part} offen lds")
        for q in range(4):
            A(f"buffer_load_dwordx4 {vr(SF + (c*4+q)*4)}, v12, s[28:31], s40 offen offset:{q*1024}")
    A("v_lshrrev_b32 v5, 2, v3")
    A("v_and_b32 v6, 3, v3")
    A("v_lshrrev_b32 v7, 1, v6")
    A("v_and_b32 v8, 1, v4")
    A("v_lshl_or_b32 v7, v8, 1, v7")
    A("v_lshrrev_b32 v8, 1, v5")
    A("v_lshlrev_b32 v8, 2, v8")
    A("v_lshrrev_b32 v9, 1, v4")
    A("v_lshl_or_b32 v8, v9, 1, v8")
    A("v_xor_b32 v7, v7, v8")
    A("v_lshlrev_b32 v7, 4, v7")
    A("v_lshl_add_u32 v7, v5, 7, v7")
    A("v_lshl_add_u32 v7, v9, 10, v7")
    A("v_and_b32 v6, 1, v6")
    A("v_lshl_add_u32 v13, v6, 3, v7")
    A("v_xor_b32 v14, 64, v13")
    A("v_add_u32 v15, 0x10000, v13")
    A("v_add_u32 v16, 0x10000, v14")
    def reads(j):
        c, kq = j >> 2, j & 3
        buf = j & 1
        R = []
        for ct in range(4):
            part, ctp = ct >> 1, ct & 1
            for h in range(2):
                off = c * 16384 + part * 8192 + kq * 2048 + h * 512
                base = 13 + ctp + (2 if off >= 65536 else 0)
                d = WF2 + buf * 16 + ct * 4 + h * 2
                R.append(f"ds_read_b64_tr_b16 v[{d}:{d+1}], v{base} offset:{off & 0xffff}")
        return R
    def mfmas(j):
        buf = j & 1
        M = []
        for ct in range(4):
            a = ACC2 + ct * 16
            cin = "0" if j == 0 else vr(a, 16)
            M.append(f"v_mfma_f32_32x32x16_bf16 {vr(a,16)}, {vr(WF2 + buf*16 + ct*4)}, {vr(SF + j*4)}, {cin}")
        return M
    A("s_waitcnt vmcnt(56)")
    A("s_barrier")
    stamp(A, 2)
    for r in reads(0): A(r)
    for j in range(32):
        if (j & 3) == 3 and j < 31:
            cn = (j + 1) >> 2
            A(f"s_waitcnt vmcnt({56 - 8*cn}) lgkmcnt(0)")
            A("s_barrier")
        else:
            A("s_waitcnt lgkmcnt(0)")
        M = mfmas(j)
        R = reads(j + 1) if j < 31 else []
        for i, m in enumerate(M):
            A(m)
            for r in R[2*i:2*i+2]: A(r)
    stamp(A, 3)
    A("v_and_b32 v5, 31, v1")
    A("v_lshrrev_b32 v6, 5, v1")
    A("v_and_b32 v7, 7, v5")
    A("v_xor_b32 v7, v7, v6")
    A("v_lshlrev_b32 v7, 4, v7")
    A("v_lshl_add_u32 v7, v5, 8, v7")
    A("s_lshl_b32 s40, s32, 13")
    A(f"s_add_u32 s40, s40, {K2_OB}")
    A("v_add_u32 v7, s40, v7")
    for x in (1, 2, 3):
        A(f"v_xor_b32 v{7+x}, {32*x}, v7")
    A("s_nop 7")
    P = 16
    n = 0
    for ct in range(4):
        for qq in range(2):
            a = ACC2 + ct * 16 + qq * 8
            O = P + 4 * (n & 3)
            A(f"v_cvt_pk_bf16_f32 v{O}, v{a}, v{a+1}")
            A(f"v_cvt_pk_bf16_f32 v{O+1}, v{a+2}, v{a+3}")
            A(f"v_cvt_pk_bf16_f32 v{O+2}, v{a+4}, v{a+5}")
            A(f"v_cvt_pk_bf16_f32 v{O+3}, v{a+6}, v{a+7}")
            A("s_nop 1")
            A(f"v_permlane32_swap_b32 v{O}, v{O+2}")
            A(f"v_permlane32_swap_b32 v{O+1}, v{O+3}")
            u = 4 * ct + 2 * qq
            A(f"ds_write_b128 v{7 + ((u & 7) >> 1)}, {vr(O)} offset:{(u >> 3) * 128}")
            n += 1
    A("v_xor_b32 v11, v3, v4")
    A("v_lshlrev_b32 v11, 4, v11")
    A("v_lshl_add_u32 v11, v4, 8, v11")
    A("v_add_u32 v11, s40, v11")
    A("v_xor_b32 v12, 64, v11")
    A("s_and_b32 s41, s33, 1")
    A("s_lshl_b32 s41, s41, 2")
    A("s_add_u32 s41, s41, s32")
    A("s_lshl_b32 s41, s41, 15")
    A("s_lshl_b32 s42, s34, 8")
    A("s_add_u32 s41, s41, s42")
    A("v_lshlrev_b32 v13, 4, v3")
    A("v_lshl_add_u32 v13, v4, 10, v13")
    A("s_waitcnt lgkmcnt(0)")
    for i in range(8):
        A(f"ds_read_b128 {vr(32 + 4*i)}, v{11 + (i&1)} offset:{i*1024}")
    for i in range(8):
        A(f"s_waitcnt lgkmcnt({7-i})")
        A(f"buffer_store_dwordx4 {vr(32 + 4*i)}, v13, s[24:27], s41 offen")
        A("s_add_u32 s41, s41, 4096")
    if STAMPS:
        stamp(A, 4)
        A("s_waitcnt vmcnt(0)")
        stamp(A, 5)
        write_stamps(A, 6, 0x900000, "K2")
    A.label("K2_end")
    A("s_endpgm")

def desc(name, vgpr):
    return f""".p2align 6
.amdhsa_kernel {name}
  .amdhsa_next_free_vgpr {vgpr}
  .amdhsa_next_free_sgpr 96
  .amdhsa_accum_offset {vgpr}
  .amdhsa_group_segment_fixed_size 0
  .amdhsa_kernarg_size 56
  .amdhsa_user_sgpr_count 2
  .amdhsa_user_sgpr_kernarg_segment_ptr 1
  .amdhsa_system_sgpr_workgroup_id_x 1
.end_amdhsa_kernel"""

A = Asm()
A.raw(f"; @launch kernel=k1_kernel grid=(256,1,1) block=(512,1,1) lds={K1_LDS}")
A.raw(f"; @launch kernel=k2_kernel grid=(256,1,1) block=(256,1,1) lds={K2_LDS}")
A.raw('.amdgcn_target "amdgcn-amd-amdhsa--gfx950"')
A.raw(".text")
gen_k1(A)
gen_k2(A)
A.raw('.section .rodata,"a"')
A.raw(desc("k1_kernel", 224))
A.raw(desc("k2_kernel", 256))
open(OUT, "w").write("\n".join(A.L) + "\n")
```

```python
import sys

class Asm:
    def __init__(self):
        self.L = []
    def __call__(self, s):
        self.L.append("    " + s)
    def label(self, s):
        self.L.append(s + ":")
    def raw(self, s):
        self.L.append(s)

def vr(b, n=4):
    return f"v[{b}:{b+n-1}]"

DBG = "--dbg" in sys.argv
STAMPS = "--stamps" in sys.argv or DBG
OUT = sys.argv[1]

NEG_LOG2E = 0xbfb8aa3b

STAGE = 49 * 1024
XOFF = 16384
DW_OFF = 3 * STAGE
HT_OFF = 0
HT_STRIDE = 560
K1_LDS = DW_OFF + 32 * 144

def stamp(A, idx, base_s=70):
    if STAMPS:
        A(f"s_memtime s[{base_s+2*idx}:{base_s+2*idx+1}]")
        if idx == 0 and DBG:
            A("s_memrealtime s[60:61]")

def gen_k1(A):
    A.raw(".globl k1_kernel")
    A.raw(".p2align 8")
    A.raw(".type k1_kernel,@function")
    A.label("k1_kernel")
    A("s_cmp_ge_u32 s2, 256")
    A("s_cbranch_scc1 K1_end")
    stamp(A, 0)
    A("s_load_dwordx8 s[4:11], s[0:1], 0")
    A("s_load_dwordx2 s[14:15], s[0:1], 48")
    A("v_and_b32 v1, 63, v0")
    A("v_lshrrev_b32 v2, 6, v0")
    A("v_and_b32 v3, 15, v1")
    A("v_readfirstlane_b32 s32, v2")
    A("v_lshrrev_b32 v4, 4, v1")
    A("s_and_b32 s36, s2, 7")
    A("s_lshr_b32 s37, s2, 3")
    A("s_lshr_b32 s38, s37, 3")
    A("s_lshl_b32 s33, s36, 2")
    A("s_add_u32 s33, s33, s38")
    A("s_and_b32 s34, s37, 7")
    A("s_lshl_b32 s35, s38, 1")
    A("s_add_u32 s35, s35, s34")
    A("s_lshr_b32 s36, s33, 4")
    A("s_and_b32 s37, s33, 15")
    A("s_mul_i32 s37, s37, 250")
    A("s_sub_i32 s37, s37, 7")
    A("s_mul_i32 s36, s36, 4096000")
    A("s_and_b32 s39, s32, 3")
    A("s_lshl_b32 s43, s32, 10")
    A("s_lshl_b32 s44, s32, 12")
    A(f"s_add_u32 s44, s44, {XOFF}")
    A("v_lshrrev_b32 v5, 3, v1")
    A("v_and_b32 v6, 7, v1")
    A("v_lshrrev_b32 v7, 2, v5")
    A("v_and_b32 v8, 3, v5")
    A("v_lshl_add_u32 v7, v7, 3, v8")
    A("s_lshl_b32 s40, s32, 5")
    A("s_add_i32 s40, s40, s37")
    A("v_add_u32 v7, s40, v7")
    A("v_lshrrev_b32 v8, 1, v5")
    A("v_xor_b32 v8, v8, v6")
    A("v_lshlrev_b32 v8, 4, v8")
    A("v_xor_b32 v9, 64, v8")
    A("v_mov_b32 v20, 0x80000000")
    for o in range(2):
        for u in range(2):
            d = 10 + 2 * o + u
            A(f"v_add_u32 v21, {16*u+4*o}, v7")
            A(f"v_lshl_add_u32 v{d}, v21, 10, v{8+u}")
            A("v_cmp_gt_i32 vcc, 0, v21")
            A("s_nop 1")
            A(f"v_cndmask_b32 v{d}, v{d}, v20, vcc")
    A("s_add_i32 s40, s37, 256")
    A("v_add_u32 v21, s40, v5")
    A("v_lshl_add_u32 v14, v21, 10, v8")
    A("v_lshrrev_b32 v21, 1, v5")
    A("v_and_b32 v21, 1, v21")
    A("v_lshlrev_b32 v21, 2, v21")
    A("s_and_b32 s40, s32, 1")
    A("s_lshl_b32 s40, s40, 1")
    A("v_or_b32 v21, s40, v21")
    A("v_xor_b32 v21, v21, v6")
    A("v_lshlrev_b32 v21, 4, v21")
    A("v_lshl_add_u32 v15, v5, 11, v21")
    A("s_lshl_b32 s40, s32, 14")
    A("s_lshl_b32 s41, s34, 7")
    A("s_add_u32 s40, s40, s41")
    A("v_add_u32 v15, s40, v15")
    A("v_lshrrev_b32 v21, 3, v0")
    A("v_subrev_u32 v22, 7, v21")
    A("v_lshlrev_b32 v16, 10, v22")
    A("v_lshl_add_u32 v16, v6, 4, v16")
    A("v_add_u32 v16, s41, v16")
    A("v_cmp_gt_i32 vcc, 0, v22")
    A("s_nop 1")
    A("v_cndmask_b32 v16, v16, v20, vcc")
    A("v_mul_u32_u24 v17, 144, v21")
    A("v_lshl_add_u32 v17, v6, 4, v17")
    A(f"v_add_u32 v17, {DW_OFF}, v17")
    A("s_waitcnt lgkmcnt(0)")
    stamp(A, 1)
    A("s_add_u32 s16, s4, s36"); A("s_addc_u32 s17, s5, 0"); A("s_mov_b32 s18, 4096000"); A("s_mov_b32 s19, 0x20000")
    A("s_mov_b32 s20, s6"); A("s_mov_b32 s21, s7"); A("s_mov_b32 s22, 1048576"); A("s_mov_b32 s23, 0x20000")
    A("s_mov_b32 s24, s8"); A("s_mov_b32 s25, s9"); A("s_mov_b32 s26, 15360"); A("s_mov_b32 s27, 0x20000")
    A("s_mov_b32 s28, s14"); A("s_mov_b32 s29, s15"); A("s_mov_b32 s30, 0x1000000"); A("s_mov_b32 s31, 0x20000")
    A("s_cmp_ge_u32 s32, 4")
    A("s_cbranch_scc1 K1_mh1")
    for mh in range(2):
        A.label(f"K1_mh{mh}")
        k1_path(A, mh)
        if mh == 0:
            A("s_branch K1_epi")
    A.label("K1_epi")
    k1_epilogue(A)
    A.label("K1_end")
    A("s_endpgm")

ACC = 32
XF = 104
WF = 176
VXA = 18
VWA = 24
TT = 192
TMP = 104

def dma_stage(A, c, mh):
    slot = (c % 3) * STAGE
    A(f"s_add_u32 s40, s35, {c}")
    A("s_and_b32 s40, s40, 7")
    A("s_lshl_b32 s41, s40, 17")
    A("s_lshl_b32 s40, s40, 7")
    A("s_add_u32 s42, s41, 1024")
    if mh == 1:
        A("s_cmp_eq_u32 s32, 7")
        A(f"s_cbranch_scc0 K1_noS_{c}")
        A(f"s_mov_b32 m0, {slot + XOFF + 32*1024}")
        A("s_nop 0")
        A("buffer_load_dwordx4 v14, s[16:19], s40 offen lds")
        A.label(f"K1_noS_{c}")
    A(f"s_add_u32 m0, s43, {slot}")
    A("s_nop 0")
    A("buffer_load_dwordx4 v15, s[20:23], s41 offen lds")
    A(f"s_add_u32 m0, s43, {slot + 8192}")
    A("s_nop 0")
    A("buffer_load_dwordx4 v15, s[20:23], s42 offen lds")
    for q in range(4):
        A(f"s_add_u32 m0, s44, {slot + q*1024}")
        A("s_nop 0")
        A(f"buffer_load_dwordx4 v{10+q}, s[16:19], s40 offen lds")

def k1_reads(j, mh, NT):
    c, ks = j >> 1, j & 1
    sl = c % 3
    buf = j & 1
    R = []
    for part in range(2):
        for h in range(2):
            d = WF + buf * 8 + part * 4 + h * 2
            R.append(f"ds_read_b64_tr_b16 v[{d}:{d+1}], v{VWA+sl} offset:{part*8192 + ks*4096 + h*512}")
    for tt in range(NT):
        tile = (mh * 8 + tt) if tt < 8 else 16
        d = XF + buf * 36 + tt * 4
        R.append(f"ds_read_b128 {vr(d)}, v{VXA+sl*2+ks} offset:{XOFF + tile*2048}")
    return R

def k1_mfmas(j, NT):
    buf = j & 1
    M = []
    for tt in range(NT):
        for part in range(2):
            a = ACC + (tt * 2 + part) * 4
            cin = "0" if j == 0 else vr(a)
            M.append(f"v_mfma_f32_16x16x32_bf16 {vr(a)}, {vr(XF + buf*36 + tt*4)}, {vr(WF + buf*8 + part*4)}, {cin}")
    return M

def k1_path(A, mh):
    NT = 9 if mh == 0 else 8
    if mh == 0:
        A("buffer_load_dwordx4 v[28:31], v16, s[24:27], 0 offen")
    dma_stage(A, 0, mh)
    dma_stage(A, 1, mh)
    A("v_lshrrev_b32 v5, 3, v3")
    A("v_and_b32 v6, 7, v3")
    A("v_lshlrev_b32 v5, 10, v5")
    A("v_lshl_add_u32 v5, v6, 7, v5")
    A("v_lshrrev_b32 v6, 1, v3")
    A("v_xor_b32 v6, v6, v4")
    A("v_lshl_add_u32 v7, v6, 4, v5")
    A("v_xor_b32 v8, 64, v7")
    for sl in range(3):
        A(f"v_add_u32 v{VXA+sl*2}, {sl*STAGE}, v7")
        A(f"v_add_u32 v{VXA+sl*2+1}, {sl*STAGE}, v8")
    A("v_lshrrev_b32 v5, 2, v3")
    A("v_and_b32 v6, 3, v3")
    A("v_lshrrev_b32 v7, 1, v6")
    A("s_lshl_b32 s40, s39, 1")
    A("v_or_b32 v7, s40, v7")
    A("v_lshrrev_b32 v8, 1, v5")
    A("v_lshlrev_b32 v8, 2, v8")
    A("v_and_b32 v9, 1, v4")
    A("v_lshl_or_b32 v8, v9, 1, v8")
    A("v_xor_b32 v7, v7, v8")
    A("v_lshlrev_b32 v7, 4, v7")
    A("v_lshl_add_u32 v7, v5, 7, v7")
    A("v_lshl_add_u32 v7, v4, 10, v7")
    A("v_and_b32 v6, 1, v6")
    A("v_lshl_add_u32 v7, v6, 3, v7")
    for sl in range(3):
        A(f"v_add_u32 v{VWA+sl}, {sl*STAGE}, v7")
    if mh == 0:
        A("s_waitcnt vmcnt(12)")
        A("ds_write_b128 v17, v[28:31]")
    A("s_waitcnt vmcnt(6) lgkmcnt(0)")
    A("s_barrier")
    stamp(A, 2)
    dma_stage(A, 2, mh)
    for r in k1_reads(0, mh, NT):
        A(r)
    for j in range(16):
        c_next = (j + 1) >> 1
        newstage = (j & 1) == 1 and j < 15
        if newstage:
            A(f"s_waitcnt vmcnt({6 if c_next < 7 else 0}) lgkmcnt(0)")
            A("s_barrier")
            if mh == 0 and c_next + 2 < 8:
                dma_stage(A, c_next + 2, mh)
        else:
            A("s_waitcnt lgkmcnt(0)")
            if mh == 1 and (j & 1) == 0 and j >= 2 and (j >> 1) + 2 < 8:
                dma_stage(A, (j >> 1) + 2, mh)
        M = k1_mfmas(j, NT)
        R = k1_reads(j + 1, mh, NT) if j < 15 else []
        for i, m in enumerate(M):
            A(m)
            if i < len(R):
                A(R[i])
    stamp(A, 3)
    A("v_lshlrev_b32 v5, 3, v4")
    A("v_sub_u32 v5, v5, v3")
    A("v_add_u32 v5, 7, v5")
    A("v_cmp_lt_u32 vcc, 21, v5")
    A("v_mov_b32 v6, 22")
    A("s_nop 0")
    A("v_cndmask_b32 v5, v5, v6, vcc")
    A("v_mul_u32_u24 v5, 144, v5")
    A("s_lshl_b32 s40, s32, 4")
    A(f"s_add_u32 s40, s40, {DW_OFF}")
    A("v_add_u32 v5, s40, v5")
    RR = XF + 36
    RR = XF
    for e in range(8):
        A(f"ds_read_b128 {vr(RR + 4*e)}, v5 offset:{e*144}")
    A("s_mov_b32 s45, 0x05040100")
    A("s_mov_b32 s46, 0x07060302")
    A("s_waitcnt lgkmcnt(0)")
    for j in range(8):
        for d in range(4):
            A(f"v_perm_b32 v{TT + 4*j + d}, v{RR + 4*(2*d+1) + (j>>1)}, v{RR + 4*(2*d) + (j>>1)}, s{45 + (j&1)}")
    A("s_lshl_b32 s40, s39, 4")
    A("v_add_u32 v5, s40, v3")
    A(f"v_mul_u32_u24 v5, {HT_STRIDE}, v5")
    A("v_lshl_add_u32 v6, v4, 4, v5")
    A("v_lshl_add_u32 v7, v4, 3, v5")
    T0 = XF + 32
    def glu(a_regs, b_regs, out_regs):
        n = len(a_regs)
        t = [T0 + i for i in range(n)]
        for i in range(n): A(f"v_mul_f32 v{t[i]}, 0x{NEG_LOG2E:x}, v{b_regs[i]}")
        for i in range(n): A(f"v_exp_f32 v{t[i]}, v{t[i]}")
        for i in range(n): A(f"v_add_f32 v{t[i]}, 1.0, v{t[i]}")
        for i in range(n): A(f"v_rcp_f32 v{t[i]}, v{t[i]}")
        for i in range(n): A(f"v_mul_f32 v{t[i]}, v{a_regs[i]}, v{t[i]}")
        for i in range(n // 2): A(f"v_cvt_pk_bf16_f32 v{out_regs[i]}, v{t[2*i]}, v{t[2*i+1]}")
    for p in range(4):
        a_regs = [ACC + ((2*p + o) * 2 + 0) * 4 + r for o in range(2) for r in range(4)]
        b_regs = [ACC + ((2*p + o) * 2 + 1) * 4 + r for o in range(2) for r in range(4)]
        O = T0 + 8 + 4 * (p & 1)
        glu(a_regs, b_regs, [O + i for i in range(4)])
        A(f"ds_write_b128 v6, {vr(O)} offset:{HT_OFF + (4*mh + p) * 64}")
    if mh == 0:
        a_regs = [ACC + 16 * 4 + r for r in range(4)]
        b_regs = [ACC + 17 * 4 + r for r in range(4)]
        O = T0 + 16
        glu(a_regs, b_regs, [O, O + 1])
        A("v_cmp_gt_u32 vcc, 2, v4")
        A("s_nop 1")
        A(f"v_cndmask_b32 v{O}, 0, v{O}, vcc")
        A(f"v_cndmask_b32 v{O+1}, 0, v{O+1}, vcc")
        A(f"ds_write_b64 v7, v[{O}:{O+1}] offset:{HT_OFF + 512}")

def k1_epilogue(A):
    A("s_waitcnt lgkmcnt(0)")
    A("s_barrier")
    stamp(A, 4)
    A(f"s_mul_i32 s40, s32, {8*HT_STRIDE}")
    A("v_lshlrev_b32 v5, 5, v3")
    A("v_lshl_add_u32 v5, v4, 4, v5")
    A("v_add_u32 v5, s40, v5")
    HA = XF
    Y = ACC
    for j in range(8):
        A(f"ds_read_b128 {vr(HA + 4*j)}, v5 offset:{HT_OFF + j*HT_STRIDE}")
    for j in range(8):
        A(f"s_waitcnt lgkmcnt({7-j})")
        A(f"v_mfma_f32_16x16x32_bf16 {vr(Y + 4*j)}, {vr(HA + 4*j)}, {vr(TT + 4*j)}, 0")
    A("s_lshl_b32 s40, s34, 3")
    A("s_add_u32 s40, s40, s32")
    A("s_lshl_b32 s40, s40, 9")
    A("s_lshl_b32 s41, s33, 18")
    A("s_add_u32 s40, s40, s41")
    A("v_lshlrev_b32 v6, 16, v4")
    A("v_lshl_add_u32 v6, v3, 4, v6")
    A("v_add_u32 v7, 0x8000, v6")
    A("s_nop 4")
    T0 = XF + 32
    for r in range(4):
        y = [Y + 4*j + r for j in range(8)]
        t = [T0 + 8*(r & 1) + i for i in range(8)]
        O = T0 + 16 + 4 * r
        for i in range(8): A(f"v_mul_f32 v{t[i]}, 0x{NEG_LOG2E:x}, v{y[i]}")
        for i in range(8): A(f"v_exp_f32 v{t[i]}, v{t[i]}")
        for i in range(8): A(f"v_add_f32 v{t[i]}, 1.0, v{t[i]}")
        for i in range(8): A(f"v_rcp_f32 v{t[i]}, v{t[i]}")
        for i in range(8): A(f"v_mul_f32 v{t[i]}, v{y[i]}, v{t[i]}")
        for i in range(4): A(f"v_cvt_pk_bf16_f32 v{O+i}, v{t[2*i]}, v{t[2*i+1]}")
        A(f"buffer_store_dwordx4 {vr(O)}, v{6 + (r>>1)}, s[28:31], s40 offen offset:{(r&1)*256}")
    if STAMPS:
        stamp(A, 5)
        A("s_waitcnt vmcnt(0)")
        stamp(A, 6)
        write_stamps(A, 7, 0x800000, "K1")

def write_stamps(A, ns, off, pfx):
    if DBG:
        A("s_load_dwordx2 s[64:65], s[0:1], 40")
        A("s_waitcnt lgkmcnt(0)")
        A("s_cmp_eq_u32 s32, 0")
        A(f"s_cbranch_scc0 {pfx}_end")
        A("s_mov_b32 s40, 0")
        A("s_cmp_eq_u32 s2, 0")
        A(f"s_cbranch_scc1 {pfx}_dbgw")
        A("s_mov_b32 s40, 32")
        A("s_cmp_eq_u32 s2, 100")
        A(f"s_cbranch_scc0 {pfx}_end")
        A.label(f"{pfx}_dbgw")
        A("v_cmp_eq_u32 vcc, 0, v1")
        A("s_and_saveexec_b64 s[66:67], vcc")
        A("v_mov_b32 v3, s40")
        A("s_memrealtime s[62:63]")
        A("s_waitcnt lgkmcnt(0)")
        if pfx == "K1":
            A("v_add_u32 v6, 0xA00000, v3")
            A("v_mov_b32 v4, s60"); A("v_mov_b32 v5, s62")
            A("buffer_store_dwordx2 v[4:5], v6, s[28:31], 0 offen")
            A(f"s_sub_u32 s41, s{70+2*(ns-1)}, s70")
            A("v_mov_b32 v4, s41")
            A("buffer_store_dword v4, v6, s[28:31], 0 offen offset:8")
            A(f"s_sub_u32 s41, s74, s70")
            A("v_mov_b32 v4, s41")
            A("buffer_store_dword v4, v6, s[28:31], 0 offen offset:12")
        else:
            A("v_add_u32 v6, 0xA00000, v3")
            A("buffer_load_dwordx4 v[8:11], v6, s[28:31], 0 offen")
            A("s_waitcnt vmcnt(0)")
            A("v_sub_u32 v12, v9, v8")
            A("v_sub_u32 v13, s60, v8")
            A("v_sub_u32 v14, s62, v8")
            A("global_store_dword v3, v12, s[64:65] offset:0")
            A("global_store_dword v3, v13, s[64:65] offset:4")
            A("global_store_dword v3, v14, s[64:65] offset:8")
            A("global_store_dword v3, v10, s[64:65] offset:12")
            A("global_store_dword v3, v11, s[64:65] offset:16")
            A(f"s_sub_u32 s41, s{70+2*(ns-1)}, s70")
            A("v_mov_b32 v4, s41")
            A("global_store_dword v3, v4, s[64:65] offset:20")
            A(f"s_sub_u32 s41, s74, s70")
            A("v_mov_b32 v4, s41")
            A("global_store_dword v3, v4, s[64:65] offset:24")
        return
    A("s_memrealtime s[68:69]")
    A("s_waitcnt lgkmcnt(0)")
    A("s_cmp_eq_u32 s32, 0")
    A(f"s_cbranch_scc0 {pfx}_end")
    A("v_cmp_eq_u32 vcc, 0, v1")
    A("s_and_saveexec_b64 s[66:67], vcc")
    A(f"s_mul_i32 s40, s2, {8*(ns+1)}")
    A(f"s_add_u32 s40, s40, {off}")
    A("v_mov_b32 v3, s40")
    for j in range(ns):
        A(f"v_mov_b32 v4, s{70+2*j}"); A(f"v_mov_b32 v5, s{71+2*j}")
        A(f"buffer_store_dwordx2 v[4:5], v3, s[28:31], 0 offen offset:{8*j}")
        A("s_nop 1")
    A(f"v_mov_b32 v4, s68"); A(f"v_mov_b32 v5, s69")
    A(f"buffer_store_dwordx2 v[4:5], v3, s[28:31], 0 offen offset:{8*ns}")

K2_LDS = 163840
K2_OB = 131072
def gen_k2(A):
    SF = 128
    ACC2 = 64
    WF2 = 32
    A.raw(".globl k2_kernel")
    A.raw(".p2align 8")
    A.raw(".type k2_kernel,@function")
    A.label("k2_kernel")
    A("s_cmp_ge_u32 s2, 256")
    A("s_cbranch_scc1 K2_end")
    stamp(A, 0)
    A("s_load_dwordx2 s[10:11], s[0:1], 24")
    A("s_load_dwordx2 s[12:13], s[0:1], 32")
    A("s_load_dwordx2 s[14:15], s[0:1], 48")
    A("v_and_b32 v1, 63, v0")
    A("v_lshrrev_b32 v2, 6, v0")
    A("v_and_b32 v3, 15, v1")
    A("v_readfirstlane_b32 s32, v2")
    A("v_lshrrev_b32 v4, 4, v1")
    A("s_and_b32 s36, s2, 7")
    A("s_lshr_b32 s37, s2, 3")
    A("s_lshr_b32 s38, s37, 2")
    A("s_and_b32 s34, s37, 3")
    A("s_lshl_b32 s33, s36, 3")
    A("s_add_u32 s33, s33, s38")
    A("s_lshl_b32 s35, s34, 1")
    A("s_add_u32 s35, s35, s38")
    A("v_lshrrev_b32 v5, 3, v1")
    A("v_and_b32 v6, 7, v1")
    A("v_lshrrev_b32 v7, 1, v5")
    A("v_and_b32 v7, 1, v7")
    A("v_lshlrev_b32 v7, 2, v7")
    A("v_xor_b32 v7, v7, v6")
    A("v_lshlrev_b32 v7, 4, v7")
    A("v_lshl_add_u32 v10, v5, 10, v7")
    A("s_lshl_b32 s40, s32, 14")
    A("s_lshl_b32 s41, s34, 8")
    A("s_add_u32 s40, s40, s41")
    A("v_add_u32 v10, s40, v10")
    A("v_xor_b32 v11, 32, v10")
    A("v_add_u32 v11, 8192, v11")
    A("s_lshl_b32 s40, s33, 2")
    A("s_add_u32 s40, s40, s32")
    A("s_lshl_b32 s40, s40, 15")
    A("v_lshlrev_b32 v12, 4, v1")
    A("v_add_u32 v12, s40, v12")
    A("s_lshl_b32 s43, s32, 11")
    A("s_waitcnt lgkmcnt(0)")
    stamp(A, 1)
    A("s_mov_b32 s20, s10"); A("s_mov_b32 s21, s11"); A("s_mov_b32 s22, 524288"); A("s_mov_b32 s23, 0x20000")
    A("s_mov_b32 s28, s14"); A("s_mov_b32 s29, s15"); A("s_mov_b32 s30, 0x1000000"); A("s_mov_b32 s31, 0x20000")
    A("s_lshr_b32 s40, s33, 1")
    A("s_mul_i32 s40, s40, 256000")
    A("s_add_u32 s24, s12, s40"); A("s_addc_u32 s25, s13, 0"); A("s_mov_b32 s26, 256000"); A("s_mov_b32 s27, 0x20000")
    for c in range(8):
        A(f"s_add_u32 s40, s35, {c}")
        A("s_and_b32 s40, s40, 7")
        A("s_lshl_b32 s41, s40, 16")
        A("s_add_u32 s42, s41, 128")
        A("s_lshl_b32 s40, s40, 12")
        for sg in range(2):
            for part in range(2):
                A(f"s_add_u32 m0, s43, {c*16384 + part*8192 + sg*1024}")
                A("s_nop 0")
                A(f"buffer_load_dwordx4 v{10+sg}, s[20:23], s{41+part} offen lds")
        for q in range(4):
            A(f"buffer_load_dwordx4 {vr(SF + (c*4+q)*4)}, v12, s[28:31], s40 offen offset:{q*1024}")
    A("v_lshrrev_b32 v5, 2, v3")
    A("v_and_b32 v6, 3, v3")
    A("v_lshrrev_b32 v7, 1, v6")
    A("v_and_b32 v8, 1, v4")
    A("v_lshl_or_b32 v7, v8, 1, v7")
    A("v_lshrrev_b32 v8, 1, v5")
    A("v_lshlrev_b32 v8, 2, v8")
    A("v_lshrrev_b32 v9, 1, v4")
    A("v_lshl_or_b32 v8, v9, 1, v8")
    A("v_xor_b32 v7, v7, v8")
    A("v_lshlrev_b32 v7, 4, v7")
    A("v_lshl_add_u32 v7, v5, 7, v7")
    A("v_lshl_add_u32 v7, v9, 10, v7")
    A("v_and_b32 v6, 1, v6")
    A("v_lshl_add_u32 v13, v6, 3, v7")
    A("v_xor_b32 v14, 64, v13")
    A("v_add_u32 v15, 0x10000, v13")
    A("v_add_u32 v16, 0x10000, v14")
    def reads(j):
        c, kq = j >> 2, j & 3
        buf = j & 1
        R = []
        for ct in range(4):
            part, ctp = ct >> 1, ct & 1
            for h in range(2):
                off = c * 16384 + part * 8192 + kq * 2048 + h * 512
                base = 13 + ctp + (2 if off >= 65536 else 0)
                d = WF2 + buf * 16 + ct * 4 + h * 2
                R.append(f"ds_read_b64_tr_b16 v[{d}:{d+1}], v{base} offset:{off & 0xffff}")
        return R
    def mfmas(j):
        buf = j & 1
        M = []
        for ct in range(4):
            a = ACC2 + ct * 16
            cin = "0" if j == 0 else vr(a, 16)
            M.append(f"v_mfma_f32_32x32x16_bf16 {vr(a,16)}, {vr(WF2 + buf*16 + ct*4)}, {vr(SF + j*4)}, {cin}")
        return M
    A("s_waitcnt vmcnt(56)")
    A("s_barrier")
    stamp(A, 2)
    for r in reads(0): A(r)
    for j in range(32):
        if (j & 3) == 3 and j < 31:
            cn = (j + 1) >> 2
            A(f"s_waitcnt vmcnt({56 - 8*cn}) lgkmcnt(0)")
            A("s_barrier")
        else:
            A("s_waitcnt lgkmcnt(0)")
        M = mfmas(j)
        R = reads(j + 1) if j < 31 else []
        for i, m in enumerate(M):
            A(m)
            for r in R[2*i:2*i+2]: A(r)
    stamp(A, 3)
    A("v_and_b32 v5, 31, v1")
    A("v_lshrrev_b32 v6, 5, v1")
    A("v_and_b32 v7, 7, v5")
    A("v_xor_b32 v7, v7, v6")
    A("v_lshlrev_b32 v7, 4, v7")
    A("v_lshl_add_u32 v7, v5, 8, v7")
    A("s_lshl_b32 s40, s32, 13")
    A(f"s_add_u32 s40, s40, {K2_OB}")
    A("v_add_u32 v7, s40, v7")
    for x in (1, 2, 3):
        A(f"v_xor_b32 v{7+x}, {32*x}, v7")
    A("s_nop 7")
    P = 16
    n = 0
    for ct in range(4):
        for qq in range(2):
            a = ACC2 + ct * 16 + qq * 8
            O = P + 4 * (n & 3)
            A(f"v_cvt_pk_bf16_f32 v{O}, v{a}, v{a+1}")
            A(f"v_cvt_pk_bf16_f32 v{O+1}, v{a+2}, v{a+3}")
            A(f"v_cvt_pk_bf16_f32 v{O+2}, v{a+4}, v{a+5}")
            A(f"v_cvt_pk_bf16_f32 v{O+3}, v{a+6}, v{a+7}")
            A("s_nop 1")
            A(f"v_permlane32_swap_b32 v{O}, v{O+2}")
            A(f"v_permlane32_swap_b32 v{O+1}, v{O+3}")
            u = 4 * ct + 2 * qq
            A(f"ds_write_b128 v{7 + ((u & 7) >> 1)}, {vr(O)} offset:{(u >> 3) * 128}")
            n += 1
    A("v_xor_b32 v11, v3, v4")
    A("v_lshlrev_b32 v11, 4, v11")
    A("v_lshl_add_u32 v11, v4, 8, v11")
    A("v_add_u32 v11, s40, v11")
    A("v_xor_b32 v12, 64, v11")
    A("s_and_b32 s41, s33, 1")
    A("s_lshl_b32 s41, s41, 2")
    A("s_add_u32 s41, s41, s32")
    A("s_lshl_b32 s41, s41, 15")
    A("s_lshl_b32 s42, s34, 8")
    A("s_add_u32 s41, s41, s42")
    A("v_lshlrev_b32 v13, 4, v3")
    A("v_lshl_add_u32 v13, v4, 10, v13")
    A("s_waitcnt lgkmcnt(0)")
    for i in range(8):
        A(f"ds_read_b128 {vr(32 + 4*i)}, v{11 + (i&1)} offset:{i*1024}")
    for i in range(8):
        A(f"s_waitcnt lgkmcnt({7-i})")
        A(f"buffer_store_dwordx4 {vr(32 + 4*i)}, v13, s[24:27], s41 offen")
        A("s_add_u32 s41, s41, 4096")
    if STAMPS:
        stamp(A, 4)
        A("s_waitcnt vmcnt(0)")
        stamp(A, 5)
        write_stamps(A, 6, 0x900000, "K2")
    A.label("K2_end")
    A("s_endpgm")

def desc(name, vgpr):
    return f""".p2align 6
.amdhsa_kernel {name}
  .amdhsa_next_free_vgpr {vgpr}
  .amdhsa_next_free_sgpr 96
  .amdhsa_accum_offset {vgpr}
  .amdhsa_group_segment_fixed_size 0
  .amdhsa_kernarg_size 56
  .amdhsa_user_sgpr_count 2
  .amdhsa_user_sgpr_kernarg_segment_ptr 1
  .amdhsa_system_sgpr_workgroup_id_x 1
.end_amdhsa_kernel"""

A = Asm()
A.raw(f"; @launch kernel=k1_kernel grid=(256,1,1) block=(512,1,1) lds={K1_LDS}")
A.raw(f"; @launch kernel=k2_kernel grid=(256,1,1) block=(256,1,1) lds={K2_LDS}")
A.raw('.amdgcn_target "amdgcn-amd-amdhsa--gfx950"')
A.raw(".text")
gen_k1(A)
gen_k2(A)
A.raw('.section .rodata,"a"')
A.raw(desc("k1_kernel", 224))
A.raw(desc("k2_kernel", 256))
open(OUT, "w").write("\n".join(A.L) + "\n")
```

```python
import sys

class Asm:
    def __init__(self):
        self.L = []
    def __call__(self, s):
        self.L.append("    " + s)
    def label(self, s):
        self.L.append(s + ":")
    def raw(self, s):
        self.L.append(s)

def vr(b, n=4):
    return f"v[{b}:{b+n-1}]"

OUT = sys.argv[1]
def opt(name, default):
    for a in sys.argv:
        if a.startswith("--" + name + "="):
            return a.split("=", 1)[1]
    return default
STAMPS = "--stamps" in sys.argv
XNT = " nt" if opt("xnt", "1") == "1" else ""
ROT = opt("rot", "xcd")
PFD = int(opt("pfd", "2"))
PFMODE = opt("pfmode", "pre")
FAST = opt("fast", "1") == "1"
SAHEAD = int(opt("sahead", "10"))
SLD = opt("sld", "sc1")
SLD = "" if SLD == "plain" else " " + SLD.replace("+", " ")
SST = opt("sst", "plain")
SST = "" if SST == "plain" else " " + SST.replace("+", " ")
OST = opt("ost", "plain")
OST = "" if OST == "plain" else " " + OST.replace("+", " ")
P2ST = "--p2st" in sys.argv
PRET = int(opt("pret", "0"))
PRETF = " nt" if opt("pretnt", "0") == "1" else ""
KN = "standalone__conformer_conv_module__speech_kernel"

NEG_LOG2E = 0xbfb8aa3b
STG = 49 * 1024
R = [0, STG, 2 * STG]
DW_OFF = 3 * STG
LDS_TOTAL = 163840
XOFF = 16384
HT_OFF = R[2]
HT_STRIDE = 560
W2POS = [R[0], R[0] + 16384, R[0] + 32768, R[2] + 36864, R[1], R[1] + 16384, R[1] + 32768, R[2]]
OSTG = R[2] + 16384
FLAG_OFF = 0x800000
STAMP_OFF = 0x900000

S_WAVE, S_MT, S_NT, S_ROT, S_NQ = 44, 45, 46, 47, 48
S_XCC = 49
S_T0 = 50
S_M3 = 51
TMP0, TMP1, TMP2, TMP3 = 52, 53, 54, 55
S_M0W, S_M0X = 56, 57
S_EP = 58
S_SEL0, S_SEL1 = 60, 61
S_SPIN = 62
S_FAST = 63
S_STB = 64

def stamp(A, idx):
    if STAMPS:
        A(f"s_memtime s[{S_STB+2*idx}:{S_STB+2*idx+1}]")

class VQ:
    def __init__(self):
        self.q = []
    def add(self, tag, n=1):
        self.q += [tag] * n
    def after(self, tag):
        idx = max(i for i, t in enumerate(self.q) if t == tag)
        return min(63, len(self.q) - 1 - idx)

def glu_ops(a_regs, b_regs, t, out_regs):
    n = len(a_regs)
    ops = []
    for i in range(n): ops.append(f"v_mul_f32 v{t[i]}, 0x{NEG_LOG2E:x}, v{b_regs[i]}")
    for i in range(n): ops.append(f"v_exp_f32 v{t[i]}, v{t[i]}")
    for i in range(n): ops.append(f"v_add_f32 v{t[i]}, 1.0, v{t[i]}")
    for i in range(n): ops.append(f"v_rcp_f32 v{t[i]}, v{t[i]}")
    for i in range(n): ops.append(f"v_mul_f32 v{t[i]}, v{a_regs[i]}, v{t[i]}")
    for i in range(n // 2): ops.append(f"v_cvt_pk_bf16_f32 v{out_regs[i]}, v{t[2*i]}, v{t[2*i+1]}")
    return ops

VX = 10
VS, VW = 14, 15
VPX, VPW = 16, 17
VXA, VWA = 18, 24
VW2 = 27
VDBG = 28
ACC, XF, WF, TT, RRT = 32, 104, 176, 192, 224
DUM = 224

def srds(A):
    A(f"s_lshr_b32 s{TMP0}, s{S_MT}, 4")
    A(f"s_mul_i32 s{TMP0}, s{TMP0}, 4096000")
    A(f"s_add_u32 s20, s4, s{TMP0}"); A("s_addc_u32 s21, s5, 0"); A("s_mov_b32 s22, 4096000"); A("s_mov_b32 s23, 0x20000")
    A("s_mov_b32 s24, s6"); A("s_mov_b32 s25, s7"); A("s_mov_b32 s26, 1048576"); A("s_mov_b32 s27, 0x20000")
def srds2(A):
    A("s_mov_b32 s28, s8"); A("s_mov_b32 s29, s9"); A("s_mov_b32 s30, 15360"); A("s_mov_b32 s31, 0x20000")
    A("s_mov_b32 s36, s16"); A("s_mov_b32 s37, s17"); A("s_mov_b32 s38, 0x1000000"); A("s_mov_b32 s39, 0x20000")
    A("s_mov_b32 s40, s10"); A("s_mov_b32 s41, s11"); A("s_mov_b32 s42, 524288"); A("s_mov_b32 s43, 0x20000")
    A(f"s_mul_i32 s{TMP0}, s{S_MT}, 256000")
    A(f"s_add_u32 s32, s12, s{TMP0}"); A("s_addc_u32 s33, s13, 0"); A("s_mov_b32 s34, 256000"); A("s_mov_b32 s35, 0x20000")

def chunk_regs(A, c):
    A(f"s_add_u32 s{TMP0}, s{S_ROT}, {c}")
    A(f"s_and_b32 s{TMP0}, s{TMP0}, 7")
    A(f"s_lshl_b32 s{TMP1}, s{TMP0}, 17")
    A(f"s_lshl_b32 s{TMP0}, s{TMP0}, 7")

def dma_stage(A, Q, c, mh):
    base = R[c % 3]
    chunk_regs(A, c)
    A(f"s_add_u32 s{TMP2}, s{TMP1}, 1024")
    if mh == 1:
        A(f"s_cmp_eq_u32 s{S_WAVE}, 7")
        A(f"s_cbranch_scc0 L_noS_{c}")
        A(f"s_mov_b32 m0, {base + XOFF + 32*1024}")
        A("s_nop 0")
        A(f"buffer_load_dwordx4 v{VS}, s[20:23], s{TMP0} offen{XNT} lds")
        A.label(f"L_noS_{c}")
    ops = []
    for part in range(2):
        ops.append((f"s_add_u32 m0, s{S_M0W}, {base + part*8192}", f"buffer_load_dwordx4 v{VW}, s[24:27], s{TMP1+part} offen lds"))
    for q in range(4):
        ops.append((f"s_add_u32 m0, s{S_M0X}, {base + q*1024}", f"buffer_load_dwordx4 v{VX+q}, s[20:23], s{TMP0} offen{XNT} lds"))
    if mh == 1:
        ops = ops[2:] + ops[:2]
    for m, l in ops:
        A(m); A("s_nop 0"); A(l)
    Q.add(f"st{c}", 6)

def pf(A, c, mh):
    if PFD == 0 or c > 7: return
    for kind, wv in (("x", c), ("w", (c + 4) & 7)):
        if (wv >> 2) != mh: continue
        A(f"s_cmp_eq_u32 s{S_WAVE}, {wv}")
        A(f"s_cbranch_scc0 L_nopf_{kind}{c}")
        chunk_regs(A, c)
        if kind == "w":
            A(f"buffer_load_dword v2, v{VPW}, s[24:27], s{TMP1} offen")
        else:
            A(f"buffer_load_dword v2, v{VPX}, s[20:23], s{TMP0} offen{XNT}")
        A.label(f"L_nopf_{kind}{c}")

def w2_dma(A, Q, steps):
    for s_ in steps:
        A(f"s_add_u32 s{TMP0}, s{S_NT}, {s_}")
        A(f"s_and_b32 s{TMP0}, s{TMP0}, 7")
        A(f"s_lshl_b32 s{TMP0}, s{TMP0}, 16")
        A(f"s_add_u32 s{TMP1}, s{TMP0}, 128")
        for part in range(2):
            A(f"s_add_u32 m0, s{S_M0W}, {W2POS[s_] + part*8192}")
            A("s_nop 0")
            A(f"buffer_load_dwordx4 v{VW2}, s[40:43], s{TMP0+part} offen lds")
        if Q: Q.add("w2", 2)

def t_build_ops():
    ops = []
    for j in range(8):
        for d in range(4):
            ops.append(f"v_perm_b32 v{TT + 4*j + d}, v{RRT + 4*(2*d+1) + (j>>1)}, v{RRT + 4*(2*d) + (j>>1)}, s{S_SEL0 + (j&1)}")
    return ops

def prologue(A):
    A("s_cmp_ge_u32 s2, 256")
    A("s_cbranch_scc1 L_end")
    stamp(A, 0)
    A("s_load_dwordx8 s[4:11], s[0:1], 0")
    A("s_load_dwordx4 s[12:15], s[0:1], 32")
    A("s_load_dwordx2 s[16:17], s[0:1], 48")
    A("v_lshrrev_b32 v2, 6, v0")
    A("v_and_b32 v1, 63, v0")
    A(f"v_readfirstlane_b32 s{S_WAVE}, v2")
    A(f"s_and_b32 s{TMP0}, s2, 7")
    A(f"s_lshr_b32 s{TMP1}, s2, 3")
    A(f"s_lshr_b32 s{S_M3}, s{TMP1}, 3")
    A(f"s_lshl_b32 s{S_MT}, s{TMP0}, 2")
    A(f"s_add_u32 s{S_MT}, s{S_MT}, s{S_M3}")
    A(f"s_and_b32 s{S_NT}, s{TMP1}, 7")
    if ROT == "xcd":
        A(f"s_mov_b32 s{S_ROT}, s{TMP0}")
    elif ROT == "mn":
        A(f"s_lshl_b32 s{S_ROT}, s{S_M3}, 1")
        A(f"s_add_u32 s{S_ROT}, s{S_ROT}, s{S_NT}")
    elif ROT == "halfm":
        A(f"s_and_b32 s{S_ROT}, s{S_NT}, 6")
        A(f"s_add_u32 s{S_ROT}, s{S_ROT}, s{S_M3}")
    else:
        A(f"s_mov_b32 s{S_ROT}, 0")
    A(f"s_and_b32 s{S_T0}, s{S_MT}, 15")
    A(f"s_mul_i32 s{S_T0}, s{S_T0}, 250")
    A(f"s_sub_i32 s{S_T0}, s{S_T0}, 7")
    A(f"s_and_b32 s{S_NQ}, s{S_WAVE}, 3")
    A(f"s_lshl_b32 s{S_M0W}, s{S_WAVE}, 10")
    A(f"s_lshl_b32 s{S_M0X}, s{S_WAVE}, 12")
    A(f"s_add_u32 s{S_M0X}, s{S_M0X}, {XOFF}")
    A("v_lshrrev_b32 v5, 3, v1")
    A("v_and_b32 v6, 7, v1")
    A("v_lshrrev_b32 v7, 2, v5")
    A("v_and_b32 v8, 3, v5")
    A("v_lshl_add_u32 v7, v7, 3, v8")
    A(f"s_lshl_b32 s{TMP0}, s{S_WAVE}, 5")
    A(f"s_add_i32 s{TMP0}, s{TMP0}, s{S_T0}")
    A(f"v_add_u32 v7, s{TMP0}, v7")
    A("v_lshrrev_b32 v8, 1, v5")
    A("v_xor_b32 v8, v8, v6")
    A("v_lshlrev_b32 v8, 4, v8")
    A("v_xor_b32 v9, 64, v8")
    A("v_mov_b32 v20, 0x80000000")
    for o in range(2):
        for u in range(2):
            d = VX + 2 * o + u
            A(f"v_add_u32 v21, {16*u+4*o}, v7")
            A(f"v_lshl_add_u32 v{d}, v21, 10, v{8+u}")
            if u == 0:
                A("v_cmp_gt_i32 vcc, 0, v21")
                A("s_nop 1")
                A(f"v_cndmask_b32 v{d}, v{d}, v20, vcc")
    A(f"s_add_i32 s{TMP0}, s{S_T0}, 256")
    A(f"v_add_u32 v21, s{TMP0}, v5")
    A(f"v_lshl_add_u32 v{VS}, v21, 10, v8")
    A("v_lshrrev_b32 v21, 1, v5")
    A("v_and_b32 v21, 1, v21")
    A("v_lshlrev_b32 v21, 2, v21")
    A(f"s_and_b32 s{TMP0}, s{S_WAVE}, 1")
    A(f"s_lshl_b32 s{TMP0}, s{TMP0}, 1")
    A(f"v_or_b32 v21, s{TMP0}, v21")
    A("v_xor_b32 v21, v21, v6")
    A("v_lshlrev_b32 v21, 4, v21")
    A(f"v_lshl_add_u32 v{VW}, v5, 11, v21")
    A(f"v_lshl_add_u32 v{VW2}, v5, 10, v21")
    A(f"s_lshl_b32 s{TMP0}, s{S_WAVE}, 14")
    A(f"s_lshl_b32 s{TMP1}, s{S_NT}, 7")
    A(f"s_add_u32 s{TMP0}, s{TMP0}, s{TMP1}")
    A(f"v_add_u32 v{VW}, s{TMP0}, v{VW}")
    if PFD:
        A(f"s_mul_i32 s{TMP0}, s{S_NT}, 33")
        A(f"s_add_i32 s{TMP0}, s{TMP0}, s{S_T0}")
        A(f"v_add_u32 v21, s{TMP0}, v1")
        A(f"v_lshlrev_b32 v{VPX}, 10, v21")
        A("v_cmp_gt_i32 vcc, 0, v21")
        A("v_lshrrev_b32 v22, 1, v1")
        A("v_lshlrev_b32 v22, 11, v22")
        A(f"v_cndmask_b32 v{VPX}, v{VPX}, v20, vcc")
        A("v_cmp_lt_u32 vcc, 32, v1")
        A("v_and_b32 v21, 1, v1")
        A(f"v_lshl_add_u32 v{VPW}, v21, 10, v22")
        A(f"v_cndmask_b32 v{VPX}, v{VPX}, v20, vcc")
        A(f"s_lshl_b32 s{TMP0}, s{S_M3}, 15")
        A(f"s_add_u32 s{TMP0}, s{TMP0}, s{TMP1}")
        A(f"v_add_u32 v{VPW}, s{TMP0}, v{VPW}")
        A("v_cmp_lt_u32 vcc, 31, v1")
        A("s_nop 1")
        A(f"v_cndmask_b32 v{VPW}, v{VPW}, v20, vcc")
    A(f"s_cmp_ge_u32 s{S_WAVE}, 4")
    A("s_waitcnt lgkmcnt(0)")
    A("s_cbranch_scc1 L_path1")

def path(A, mh):
    NT = 9 if mh == 0 else 8
    Q = VQ()
    srds(A)
    stamp(A, 1)
    if PFMODE == "pre":
        for c in range(1, 1 + PFD): pf(A, c, mh)
    dma_stage(A, Q, 0, mh)
    A("s_barrier")
    if PFMODE != "pre":
        for c in range(1, 1 + PFD): pf(A, c, mh)
    srds2(A)
    A("v_and_b32 v3, 15, v1")
    A("v_lshrrev_b32 v4, 4, v1")
    if mh == 0:
        A("v_lshrrev_b32 v21, 3, v0")
        A("v_subrev_u32 v22, 7, v21")
        A("v_lshlrev_b32 v23, 10, v22")
        A("v_lshl_add_u32 v23, v6, 4, v23")
        A(f"s_lshl_b32 s{TMP1}, s{S_NT}, 7")
        A(f"v_add_u32 v23, s{TMP1}, v23")
        A("v_cmp_gt_i32 vcc, 0, v22")
        A("v_mul_u32_u24 v29, 144, v21")
        A("v_lshl_add_u32 v29, v6, 4, v29")
        A("v_cndmask_b32 v23, v23, v20, vcc")
        A(f"buffer_load_dwordx4 {vr(DUM)}, v23, s[28:31], 0 offen"); Q.add("dw")
    pf(A, PFD + 1, mh)
    pf(A, PFD + 2, mh)
    dma_stage(A, Q, 1, mh)
    A(f"s_lshl_b32 s{TMP0}, s{S_MT}, 3")
    A(f"v_mov_b32 v{VDBG}, s{TMP0}")
    A(f"s_getreg_b32 s{S_XCC}, hwreg(HW_REG_XCC_ID, 0, 4)")
    A(f"s_and_b32 s{S_XCC}, s{S_XCC}, 7")
    A(f"s_lshl_b32 s{S_XCC}, s{S_XCC}, 2")
    if mh == 1:
        A(f"s_cmp_eq_u32 s{S_WAVE}, 5")
        A("s_cbranch_scc0 L_nohello")
        A(f"s_lshl_b32 s{TMP0}, 1, s{S_XCC}")
        A(f"v_mov_b32 v21, s{TMP0}")
        A("s_mov_b64 exec, 1")
        A(f"global_atomic_add v{VDBG}, v21, s[14:15] offset:4 sc1")
        A(f"s_cmp_eq_u32 s{S_NT}, 0")
        A("s_cbranch_scc0 L_noep")
        A(f"s_memrealtime s[{S_EP}:{S_EP+1}]")
        A("s_waitcnt lgkmcnt(0)")
        A(f"s_lshr_b64 s[{S_EP}:{S_EP+1}], s[{S_EP}:{S_EP+1}], 6")
        A(f"s_or_b32 s{S_EP}, s{S_EP}, 0x80000000")
        A(f"v_mov_b32 v21, s{S_EP}")
        A(f"global_store_dword v{VDBG}, v21, s[14:15] sc1")
        A.label("L_noep")
        A("s_mov_b64 exec, -1")
        A.label("L_nohello")
    A(f"s_lshl_b32 s{TMP0}, s{S_WAVE}, 13")
    A(f"s_and_b32 s{TMP1}, s{S_NT}, 3")
    A(f"s_lshl_b32 s{TMP1}, s{TMP1}, 8")
    A(f"s_add_u32 s{TMP0}, s{TMP0}, s{TMP1}")
    A(f"v_add_u32 v{VW2}, s{TMP0}, v{VW2}")
    A(f"s_mov_b32 s{S_SEL0}, 0x05040100")
    A(f"s_mov_b32 s{S_SEL1}, 0x07060302")
    A("v_lshrrev_b32 v5, 3, v3")
    A("v_and_b32 v6, 7, v3")
    A("v_lshlrev_b32 v5, 10, v5")
    A("v_lshl_add_u32 v5, v6, 7, v5")
    A("v_lshrrev_b32 v6, 1, v3")
    A("v_xor_b32 v6, v6, v4")
    A("v_lshl_add_u32 v7, v6, 4, v5")
    A("v_xor_b32 v8, 64, v7")
    for sl in range(3):
        A(f"v_add_u32 v{VXA+sl*2}, {R[sl] + XOFF}, v7")
        A(f"v_add_u32 v{VXA+sl*2+1}, {R[sl] + XOFF}, v8")
    A("v_lshrrev_b32 v5, 2, v3")
    A("v_and_b32 v6, 3, v3")
    A("v_lshrrev_b32 v7, 1, v6")
    A(f"s_lshl_b32 s{TMP0}, s{S_NQ}, 1")
    A(f"v_or_b32 v7, s{TMP0}, v7")
    A("v_lshrrev_b32 v8, 1, v5")
    A("v_lshlrev_b32 v8, 2, v8")
    A("v_and_b32 v9, 1, v4")
    A("v_lshl_or_b32 v8, v9, 1, v8")
    A("v_xor_b32 v7, v7, v8")
    A("v_lshlrev_b32 v7, 4, v7")
    A("v_lshl_add_u32 v7, v5, 7, v7")
    A("v_lshl_add_u32 v7, v4, 10, v7")
    A("v_and_b32 v6, 1, v6")
    A("v_lshl_add_u32 v7, v6, 3, v7")
    for sl in range(3):
        A(f"v_add_u32 v{VWA+sl}, {R[sl]}, v7")
    A("v_lshlrev_b32 v5, 3, v4")
    A("v_sub_u32 v5, v5, v3")
    A("v_add_u32 v5, 7, v5")
    A("v_cmp_lt_u32 vcc, 21, v5")
    A("v_mov_b32 v6, 22")
    A(f"s_lshl_b32 s{TMP0}, s{S_WAVE}, 4")
    A("v_cndmask_b32 v5, v5, v6, vcc")
    A("v_mul_u32_u24 v5, 144, v5")
    A(f"s_add_u32 s{TMP0}, s{TMP0}, {DW_OFF}")
    A(f"v_add_u32 v9, s{TMP0}, v5")
    if mh == 0:
        A(f"s_waitcnt vmcnt({Q.after('dw')})")
        A(f"ds_write_b128 v29, {vr(DUM)} offset:0" if False else f"v_add_u32 v29, {DW_OFF}, v29")
        A(f"ds_write_b128 v29, {vr(DUM)}")
    A(f"s_waitcnt vmcnt({Q.after('st0')}) lgkmcnt(0)")
    A("s_barrier")
    stamp(A, 2)

    def reads(j):
        c, ks = j >> 1, j & 1
        sl, buf = c % 3, j & 1
        Rr = []
        for part in range(2):
            for h in range(2):
                d = WF + buf * 8 + part * 4 + h * 2
                Rr.append(f"ds_read_b64_tr_b16 v[{d}:{d+1}], v{VWA+sl} offset:{part*8192 + ks*4096 + h*512}")
        for tt in range(NT):
            tile = (mh * 8 + tt) if tt < 8 else 16
            d = XF + buf * 36 + tt * 4
            Rr.append(f"ds_read_b128 {vr(d)}, v{VXA+sl*2+ks} offset:{tile*2048}")
        return Rr
    for r in reads(0): A(r)
    pf(A, PFD + 3, mh)
    dma_stage(A, Q, 2, mh)
    extra = []
    for j in range(16):
        buf = j & 1
        boundary = (j & 1) == 1 and j < 15
        cn = (j + 1) >> 1
        if boundary:
            A(f"s_waitcnt vmcnt({Q.after(f'st{cn}')}) lgkmcnt(0)")
            A("s_barrier")
        stg = None
        if mh == 0 and boundary: stg = cn + 2
        if mh == 1 and (j & 1) == 0 and j >= 2: stg = (j >> 1) + 2
        if stg is not None:
            if stg < 8:
                pf(A, PFD + 1 + stg, mh)
                dma_stage(A, Q, stg, mh)
            elif stg == 9:
                w2_dma(A, Q, [0, 1, 2, 3])
            if stg == 6 and PFD and mh == 1:
                A(f"s_cmp_lt_u32 s{S_NQ}, 2")
                A("s_cbranch_scc0 L_nopf_W2all")
                A(f"s_lshr_b32 s{TMP0}, s2, 3")
                A(f"s_lshl_b32 s{TMP0}, s{TMP0}, 1")
                A(f"s_add_u32 s{TMP0}, s{TMP0}, s{S_NQ}")
                A(f"s_lshl_b32 s{TMP0}, s{TMP0}, 13")
                A("v_lshlrev_b32 v5, 7, v1")
                A(f"buffer_load_dword v2, v5, s[40:43], s{TMP0} offen")
                A.label("L_nopf_W2all")
        if PRET and j == PRET:
            A(f"s_lshl_b32 s{TMP2}, s{S_NT}, 3")
            A(f"s_add_u32 s{TMP2}, s{TMP2}, s{S_WAVE}")
            A(f"s_lshl_b32 s{TMP2}, s{TMP2}, 9")
            A(f"s_lshl_b32 s{TMP3}, s{S_MT}, 18")
            A(f"s_add_u32 s{TMP2}, s{TMP2}, s{TMP3}")
            A("v_lshrrev_b32 v5, 2, v1")
            A("v_and_b32 v5, 7, v5")
            A("v_lshlrev_b32 v5, 15, v5")
            A("v_and_b32 v6, 3, v1")
            A("v_lshl_add_u32 v5, v6, 7, v5")
            A(f"s_mov_b64 exec, 0xffffffff")
            A(f"buffer_load_dword v2, v5, s[36:39], s{TMP2} offen{PRETF}")
            A(f"s_mov_b64 exec, 1")
            A(f"s_lshl_b32 s{TMP2}, s{S_MT}, 7")
            A(f"s_add_u32 s{TMP2}, s{TMP2}, {FLAG_OFF}")
            A(f"buffer_load_dword v2, v5, s[36:39], s{TMP2} offen")
            A(f"s_mov_b64 exec, -1")
            Q.add("pret", 2)
        Rn = reads(j + 1) if j < 15 else []
        if j == 2:
            Rn = [f"ds_read_b128 {vr(RRT + 4*e)}, v9 offset:{e*144}" for e in range(8)] + Rn
        if j == 4:
            extra = t_build_ops()
        issued = 0
        for tt in range(NT):
            for part in range(2):
                if part == 0 and not boundary:
                    A(f"s_waitcnt lgkmcnt({min(15, (NT - 1 - tt) + issued)})")
                a = ACC + (tt * 2 + part) * 4
                cin = "0" if j == 0 else vr(a)
                A(f"v_mfma_f32_16x16x32_bf16 {vr(a)}, {vr(XF + buf*36 + tt*4)}, {vr(WF + buf*8 + part*4)}, {cin}")
                k = 2 if j == 2 and issued < 10 else 1
                for _ in range(k):
                    if issued < len(Rn):
                        A(Rn[issued]); issued += 1
                    elif extra:
                        A(extra.pop(0))
        assert issued == len(Rn)
    assert not extra
    stamp(A, 3)
    if mh == 0:
        A(f"global_load_dwordx2 v[30:31], v{VDBG}, s[14:15] sc1")
    A(f"s_lshl_b32 s{TMP0}, s{S_NQ}, 4")
    A(f"v_add_u32 v5, s{TMP0}, v3")
    A(f"v_mul_u32_u24 v5, {HT_STRIDE}, v5")
    A(f"v_add_u32 v5, {HT_OFF}, v5")
    A("v_lshl_add_u32 v6, v4, 4, v5")
    A("v_lshl_add_u32 v7, v4, 3, v5")
    A("s_nop 1")
    T0 = XF
    for p in range(4):
        a_regs = [ACC + ((2*p + o) * 2 + 0) * 4 + r for o in range(2) for r in range(4)]
        b_regs = [ACC + ((2*p + o) * 2 + 1) * 4 + r for o in range(2) for r in range(4)]
        O = T0 + 8 + 4 * (p & 1)
        for op in glu_ops(a_regs, b_regs, [T0 + i for i in range(8)], [O + i for i in range(4)]): A(op)
        A(f"ds_write_b128 v6, {vr(O)} offset:{(4*mh + p) * 64}")
    if mh == 0:
        a_regs = [ACC + 16 * 4 + r for r in range(4)]
        b_regs = [ACC + 17 * 4 + r for r in range(4)]
        O = T0 + 16
        for op in glu_ops(a_regs, b_regs, [T0 + i for i in range(4)], [O, O + 1]): A(op)
        A("v_cmp_gt_u32 vcc, 2, v4")
        A("s_nop 1")
        A(f"v_cndmask_b32 v{O}, 0, v{O}, vcc")
        A(f"v_cndmask_b32 v{O+1}, 0, v{O+1}, vcc")
        A(f"ds_write_b64 v7, v[{O}:{O+1}] offset:512")
    else:
        A(f"global_load_dwordx2 v[30:31], v{VDBG}, s[14:15] sc1")

def epilogue1(A):
    A(f"s_mul_i32 s{TMP0}, s{S_WAVE}, {8*HT_STRIDE}")
    A(f"s_add_u32 s{TMP0}, s{TMP0}, {HT_OFF}")
    A("v_lshlrev_b32 v5, 5, v3")
    A("v_lshl_add_u32 v5, v4, 4, v5")
    A(f"v_add_u32 v5, s{TMP0}, v5")
    A("s_waitcnt lgkmcnt(0)")
    A("s_barrier")
    stamp(A, 4)
    HA, Y, T0 = 32, 64, 96
    for j in range(8):
        A(f"ds_read_b128 {vr(HA + 4*j)}, v5 offset:{j*HT_STRIDE}")
    w2_dma(A, None, [4, 5, 6])
    for j in range(8):
        A(f"s_waitcnt lgkmcnt({7-j})")
        A(f"v_mfma_f32_16x16x32_bf16 {vr(Y + 4*j)}, {vr(HA + 4*j)}, {vr(TT + 4*j)}, 0")
    A(f"s_lshl_b32 s{TMP2}, s{S_NT}, 3")
    A(f"s_add_u32 s{TMP2}, s{TMP2}, s{S_WAVE}")
    A(f"s_lshl_b32 s{TMP2}, s{TMP2}, 9")
    A(f"s_lshl_b32 s{TMP3}, s{S_MT}, 18")
    A(f"s_add_u32 s{TMP2}, s{TMP2}, s{TMP3}")
    A("v_lshlrev_b32 v6, 16, v4")
    A("v_lshl_add_u32 v6, v3, 4, v6")
    A("v_add_u32 v7, 0x8000, v6")
    A("s_waitcnt vmcnt(6)")
    A(f"v_readfirstlane_b32 s{S_EP}, v30")
    A(f"v_readfirstlane_b32 s{S_FAST}, v31")
    A(f"s_lshl_b32 s{TMP0}, 8, s{S_XCC}")
    for r in range(4):
        y = [Y + 4*j + r for j in range(8)]
        t = [T0 + 8*(r & 1) + i for i in range(8)]
        O = T0 + 16 + 4 * r
        for op in glu_ops(y, y, t, [O + i for i in range(4)]): A(op)
    A(f"s_cmp_eq_u32 s{S_FAST}, s{TMP0}")
    A(f"s_cselect_b32 s{S_FAST}, {1 if FAST else 0}, 0")
    A("s_cbranch_scc0 L_slowst" if FAST else "s_branch L_slowst")
    for r in range(4):
        A(f"buffer_store_dwordx4 {vr(T0 + 16 + 4*r)}, v{6 + (r>>1)}, s[36:39], s{TMP2} offen offset:{(r&1)*256}{SST}")
    A("s_branch L_stdone")
    A.label("L_slowst")
    for r in range(4):
        A(f"buffer_store_dwordx4 {vr(T0 + 16 + 4*r)}, v{6 + (r>>1)}, s[36:39], s{TMP2} offen offset:{(r&1)*256} sc1")
    A.label("L_stdone")
    stamp(A, 5)
    A("s_waitcnt vmcnt(0)")
    A("s_barrier")
    stamp(A, 6)
    A(f"s_cmp_ge_u32 s{S_WAVE}, 4")
    A("s_cbranch_scc1 L_Btail")
    A(f"s_mov_b32 s{S_SPIN}, 0")
    A.label("L_ep_chk")
    A(f"s_cmp_lg_u32 s{S_EP}, 0")
    A("s_cbranch_scc1 L_ep_ok")
    A(f"global_load_dwordx2 v[30:31], v{VDBG}, s[14:15] sc1")
    A(f"s_add_u32 s{S_SPIN}, s{S_SPIN}, 1")
    A("s_waitcnt vmcnt(0)")
    A(f"v_readfirstlane_b32 s{S_EP}, v30")
    A(f"s_cmp_lt_u32 s{S_SPIN}, 0x40000")
    A("s_cbranch_scc1 L_ep_chk")
    A.label("L_ep_ok")
    A(f"s_not_b32 s{S_EP+1}, s{S_EP}")
    A(f"s_lshl_b32 s{TMP2}, s{S_MT}, 7")
    A(f"s_add_u32 s{TMP2}, s{TMP2}, {FLAG_OFF}")
    A(f"s_cmp_eq_u32 s{S_WAVE}, 0")
    A("s_cbranch_scc0 L_noflag")
    A(f"s_lshl_b32 s{TMP0}, s{S_NT}, 3")
    A(f"v_mov_b32 v11, s{TMP0}")
    A(f"v_mov_b32 v16, s{S_EP}")
    A(f"v_mov_b32 v17, s{S_EP+1}")
    A("s_mov_b64 exec, 1")
    A(f"s_cmp_eq_u32 s{S_FAST}, 1")
    A("s_cbranch_scc0 L_slowflag")
    A(f"buffer_store_dwordx2 v[16:17], v11, s[36:39], s{TMP2} offen")
    A("s_branch L_flagdone")
    A.label("L_slowflag")
    A(f"buffer_store_dwordx2 v[16:17], v11, s[36:39], s{TMP2} offen sc1")
    A.label("L_flagdone")
    A("s_mov_b64 exec, -1")
    A.label("L_noflag")
    w2_dma(A, None, [7])
    A("v_and_b32 v11, 7, v1")
    A("v_lshlrev_b32 v11, 3, v11")
    A(f"s_mov_b32 s{S_SPIN}, 0")

def phase2(A):
    SF, ACC2, WF2 = 128, 64, 32
    A(f"s_lshr_b32 s{TMP0}, s{S_NT}, 2")
    A(f"s_lshl_b32 s{TMP0}, s{TMP0}, 2")
    A(f"s_add_u32 s{TMP0}, s{TMP0}, s{S_WAVE}")
    A(f"s_lshl_b32 s{TMP3}, s{TMP0}, 15")
    A(f"s_lshl_b32 s{TMP1}, s{S_MT}, 18")
    A(f"s_add_u32 s{TMP1}, s{TMP1}, s{TMP3}")
    A("v_lshlrev_b32 v12, 4, v1")
    A(f"v_add_u32 v12, s{TMP1}, v12")
    A("v_lshrrev_b32 v5, 2, v3")
    A("v_and_b32 v6, 3, v3")
    A("v_lshrrev_b32 v7, 1, v6")
    A("v_and_b32 v8, 1, v4")
    A("v_lshl_or_b32 v7, v8, 1, v7")
    A("v_lshrrev_b32 v8, 1, v5")
    A("v_lshlrev_b32 v8, 2, v8")
    A("v_lshrrev_b32 v9, 1, v4")
    A("v_lshl_or_b32 v8, v9, 1, v8")
    A("v_xor_b32 v7, v7, v8")
    A("v_lshlrev_b32 v7, 4, v7")
    A("v_lshl_add_u32 v7, v5, 7, v7")
    A("v_lshl_add_u32 v7, v9, 10, v7")
    A("v_and_b32 v6, 1, v6")
    A("v_lshl_add_u32 v13, v6, 3, v7")
    A("v_xor_b32 v14, 64, v13")
    for wdw in (1, 2):
        A(f"v_add_u32 v{13+2*wdw}, {wdw*0x10000}, v13")
        A(f"v_add_u32 v{14+2*wdw}, {wdw*0x10000}, v14")
    for s_ in range(8):
        A(f"s_add_u32 s{TMP0}, s{S_NT}, {s_}")
        A(f"s_and_b32 s{TMP0}, s{TMP0}, 7")
        A(f"s_lshl_b32 s{20+s_}, s{TMP0}, 12")
    def reads(j):
        c, kq = j >> 2, j & 3
        buf = j & 1
        Rr = []
        for ct in range(4):
            part, ctp = ct >> 1, ct & 1
            for h in range(2):
                off = W2POS[c] + part * 8192 + kq * 2048 + h * 512
                base = 13 + ctp + 2 * (off >> 16)
                d = WF2 + buf * 16 + ct * 4 + h * 2
                Rr.append(f"ds_read_b64_tr_b16 v[{d}:{d+1}], v{base} offset:{off & 0xffff}")
        return Rr
    def sload(j):
        return f"buffer_load_dwordx4 {vr(SF + j*4)}, v12, s[36:39], s{20 + (j>>2)} offen offset:{(j&3)*1024}{SLD}"
    for r in reads(0): A(r)
    A.label("L_poll")
    A(f"buffer_load_dwordx2 v[20:21], v11, s[36:39], s{TMP2} offen sc1")
    A(f"s_add_u32 s{S_SPIN}, s{S_SPIN}, 1")
    A("s_waitcnt vmcnt(0)")
    A(f"v_cmp_ne_u64 vcc, s[{S_EP}:{S_EP+1}], v[20:21]")
    A(f"s_cmp_ge_u32 s{S_SPIN}, 0x40000")
    A("s_cbranch_scc1 L_poll_done")
    A("s_cbranch_vccnz L_poll")
    A.label("L_poll_done")
    stamp(A, 7)
    for j in range(SAHEAD): A(sload(j))
    stamp(A, 8)
    for j in range(32):
        buf = j & 1
        Rn = reads(j + 1) if j < 31 else []
        nissued = min(32, SAHEAD + j)
        for ct in range(4):
            w = f"lgkmcnt({6 if j < 31 else 6 - 2*ct})"
            if ct == 0:
                w = f"vmcnt({nissued - 1 - j}) " + w
            A(f"s_waitcnt {w}")
            if j == 27 and ct == 0:
                A("s_barrier")
            if P2ST and ct == 0 and j in (1, 4, 8, 16, 24, 28):
                stamp(A, 1 + (1, 4, 8, 16, 24, 28).index(j))
            a = ACC2 + ct * 16
            cin = "0" if j == 0 else vr(a, 16)
            A(f"v_mfma_f32_32x32x16_bf16 {vr(a,16)}, {vr(WF2 + buf*16 + ct*4)}, {vr(SF + j*4)}, {cin}")
            for r in Rn[2*ct:2*ct+2]: A(r)
            if ct == 1 and SAHEAD + j < 32:
                A(sload(SAHEAD + j))
    stamp(A, 9)
    A("v_and_b32 v5, 31, v1")
    A("v_lshrrev_b32 v6, 5, v1")
    A("v_and_b32 v7, 7, v5")
    A("v_xor_b32 v7, v7, v6")
    A("v_lshlrev_b32 v7, 4, v7")
    A("v_lshl_add_u32 v7, v5, 7, v7")
    A(f"s_lshl_b32 s{TMP0}, s{S_WAVE}, 12")
    A(f"s_add_u32 s{TMP0}, s{TMP0}, {OSTG}")
    A(f"v_add_u32 v7, s{TMP0}, v7")
    for x in (1, 2, 3):
        A(f"v_xor_b32 v{7+x}, {32*x}, v7")
    A("v_lshrrev_b32 v5, 3, v1")
    A("v_and_b32 v6, 7, v1")
    A("v_xor_b32 v11, v5, v6")
    A("v_lshlrev_b32 v11, 4, v11")
    A("v_lshl_add_u32 v11, v5, 7, v11")
    A(f"v_add_u32 v11, s{TMP0}, v11")
    A("v_lshlrev_b32 v12, 4, v6")
    A("v_lshl_add_u32 v12, v5, 10, v12")
    A(f"s_and_b32 s{TMP1}, s{S_NT}, 3")
    A(f"s_lshl_b32 s{TMP1}, s{TMP1}, 8")
    A(f"s_add_u32 s{TMP3}, s{TMP3}, s{TMP1}")
    P = 16
    for half in range(2):
        for ctp in range(2):
            for qq in range(2):
                a = ACC2 + (half * 2 + ctp) * 16 + qq * 8
                O = P + 4 * (ctp * 2 + qq)
                A(f"v_cvt_pk_bf16_f32 v{O}, v{a}, v{a+1}")
                A(f"v_cvt_pk_bf16_f32 v{O+1}, v{a+2}, v{a+3}")
                A(f"v_cvt_pk_bf16_f32 v{O+2}, v{a+4}, v{a+5}")
                A(f"v_cvt_pk_bf16_f32 v{O+3}, v{a+6}, v{a+7}")
                A("s_nop 1")
                A(f"v_permlane32_swap_b32 v{O}, v{O+2}")
                A(f"v_permlane32_swap_b32 v{O+1}, v{O+3}")
                A(f"ds_write_b128 v{7 + 2*ctp + qq}, {vr(O)}")
        A("s_waitcnt lgkmcnt(0)")
        for i in range(4):
            A(f"ds_read_b128 {vr(32 + 16*half + 4*i)}, v11 offset:{i*1024}")
        for i in range(4):
            A(f"s_waitcnt lgkmcnt({3-i})")
            A(f"s_add_u32 s{TMP0}, s{TMP3}, {i*8192 + half*128}")
            A(f"buffer_store_dwordx4 {vr(32 + 16*half + 4*i)}, v12, s[32:35], s{TMP0} offen{OST}")

def write_stamps(A, ns):
    A("s_waitcnt vmcnt(0)")
    stamp(A, ns - 2)
    A(f"s_mov_b32 s{S_STB+2*(ns-1)}, s{S_FAST}")
    A(f"s_mov_b32 s{S_STB+2*(ns-1)+1}, 0")
    A(f"s_add_u32 s{S_STB+2*(ns-1)}, s{S_STB+2*(ns-1)}, s{S_STB}")
    A(f"s_addc_u32 s{S_STB+2*(ns-1)+1}, s{S_STB+1}, 0")
    A(f"s_memrealtime s[{S_EP}:{S_EP+1}]")
    A("s_waitcnt lgkmcnt(0)")
    A(f"s_cmp_eq_u32 s{S_WAVE}, 0")
    A("s_cbranch_scc0 L_end")
    A("s_mov_b64 exec, 1")
    A(f"s_mul_i32 s{TMP0}, s2, {8*(ns+1)}")
    A(f"s_add_u32 s{TMP0}, s{TMP0}, {STAMP_OFF}")
    A(f"v_mov_b32 v3, s{TMP0}")
    for j in range(ns):
        A(f"v_mov_b32 v4, s{S_STB+2*j}"); A(f"v_mov_b32 v5, s{S_STB+1+2*j}")
        A(f"buffer_store_dwordx2 v[4:5], v3, s[36:39], 0 offen offset:{8*j}")
        A("s_nop 1")
    A(f"v_mov_b32 v4, s{S_EP}"); A(f"v_mov_b32 v5, s{S_EP+1}")
    A(f"buffer_store_dwordx2 v[4:5], v3, s[36:39], 0 offen offset:{8*ns}")

def gen(A):
    A.raw(f".globl {KN}")
    A.raw(".p2align 8")
    A.raw(f".type {KN},@function")
    A.label(KN)
    prologue(A)
    path(A, 0)
    A("s_branch L_epi")
    A.label("L_path1")
    path(A, 1)
    A.label("L_epi")
    epilogue1(A)
    phase2(A)
    if STAMPS:
        write_stamps(A, 12)
    A("s_endpgm")
    A.label("L_Btail")
    w2_dma(A, None, [7])
    A("s_waitcnt vmcnt(0)")
    A("s_barrier")
    A.label("L_end")
    A("s_endpgm")

A = Asm()
A.raw(f"; @launch grid=(256,1,1) block=(512,1,1) lds={LDS_TOTAL}")
A.raw('.amdgcn_target "amdgcn-amd-amdhsa--gfx950"')
A.raw(".text")
gen(A)
A.raw('.section .rodata,"a"')
A.raw(f""".p2align 6
.amdhsa_kernel {KN}
  .amdhsa_next_free_vgpr 256
  .amdhsa_next_free_sgpr 100
  .amdhsa_accum_offset 256
  .amdhsa_group_segment_fixed_size 0
  .amdhsa_kernarg_size 56
  .amdhsa_user_sgpr_count 2
  .amdhsa_user_sgpr_kernarg_segment_ptr 1
  .amdhsa_system_sgpr_workgroup_id_x 1
.end_amdhsa_kernel""")
open(OUT, "w").write("\n".join(A.L) + "\n")
```

```python
import sys

class Asm:
    def __init__(self):
        self.L = []
    def __call__(self, s):
        self.L.append("    " + s)
    def label(self, s):
        self.L.append(s + ":")
    def raw(self, s):
        self.L.append(s)

def vr(b, n=4):
    return f"v[{b}:{b+n-1}]"

OUT = sys.argv[1]
def opt(name, default):
    for a in sys.argv:
        if a.startswith("--" + name + "="):
            return a.split("=", 1)[1]
    return default
STAMPS = "--stamps" in sys.argv
XNT = " nt" if opt("xnt", "1") == "1" else ""
ROT = opt("rot", "xcd")
PFD = int(opt("pfd", "2"))
PFMODE = opt("pfmode", "pre")
FAST = opt("fast", "1") == "1"
SAHEAD = int(opt("sahead", "10"))
SLD = opt("sld", "sc1")
SLD = "" if SLD == "plain" else " " + SLD.replace("+", " ")
SST = opt("sst", "plain")
SST = "" if SST == "plain" else " " + SST.replace("+", " ")
OST = opt("ost", "plain")
OST = "" if OST == "plain" else " " + OST.replace("+", " ")
P2ST = "--p2st" in sys.argv
PRET = int(opt("pret", "0"))
PRETF = " nt" if opt("pretnt", "0") == "1" else ""
WNT = " nt" if opt("wnt", "0") == "1" else ""
KN = "standalone__conformer_conv_module__speech_kernel"

NEG_LOG2E = 0xbfb8aa3b
STG = 49 * 1024
R = [0, STG, 2 * STG]
DW_OFF = 3 * STG
LDS_TOTAL = 163840
XOFF = 16384
HT_OFF = R[2]
HT_STRIDE = 560
W2POS = [R[0], R[0] + 16384, R[0] + 32768, R[2] + 36864, R[1], R[1] + 16384, R[1] + 32768, R[2]]
OSTG = R[2] + 16384
FLAG_OFF = 0x800000
STAMP_OFF = 0x900000

S_WAVE, S_MT, S_NT, S_ROT, S_NQ = 44, 45, 46, 47, 48
S_XCC = 49
S_T0 = 50
S_M3 = 51
TMP0, TMP1, TMP2, TMP3 = 52, 53, 54, 55
S_M0W, S_M0X = 56, 57
S_EP = 58
S_SEL0, S_SEL1 = 60, 61
S_SPIN = 62
S_FAST = 63
S_STB = 64

DIAG = opt("diag", "")
def stamp(A, idx):
    if STAMPS:
        A(f"s_memtime s[{S_STB+2*idx}:{S_STB+2*idx+1}]")
    elif DIAG:
        A(f"s_memrealtime s[{S_STB+2*idx}:{S_STB+2*idx+1}]")

class VQ:
    def __init__(self):
        self.q = []
    def add(self, tag, n=1):
        self.q += [tag] * n
    def after(self, tag):
        idx = max(i for i, t in enumerate(self.q) if t == tag)
        return min(63, len(self.q) - 1 - idx)

def glu_ops(a_regs, b_regs, t, out_regs):
    n = len(a_regs)
    ops = []
    for i in range(n): ops.append(f"v_mul_f32 v{t[i]}, 0x{NEG_LOG2E:x}, v{b_regs[i]}")
    for i in range(n): ops.append(f"v_exp_f32 v{t[i]}, v{t[i]}")
    for i in range(n): ops.append(f"v_add_f32 v{t[i]}, 1.0, v{t[i]}")
    for i in range(n): ops.append(f"v_rcp_f32 v{t[i]}, v{t[i]}")
    for i in range(n): ops.append(f"v_mul_f32 v{t[i]}, v{a_regs[i]}, v{t[i]}")
    for i in range(n // 2): ops.append(f"v_cvt_pk_bf16_f32 v{out_regs[i]}, v{t[2*i]}, v{t[2*i+1]}")
    return ops

VX = 10
VS, VW = 14, 15
VPX, VPW = 16, 17
VXA, VWA = 18, 24
VW2 = 27
VDBG = 28
ACC, XF, WF, TT, RRT = 32, 104, 176, 192, 224
DUM = 224

def srds(A):
    A(f"s_lshr_b32 s{TMP0}, s{S_MT}, 4")
    A(f"s_mul_i32 s{TMP0}, s{TMP0}, 4096000")
    A(f"s_add_u32 s20, s4, s{TMP0}"); A("s_addc_u32 s21, s5, 0"); A("s_mov_b32 s22, 4096000"); A("s_mov_b32 s23, 0x20000")
    A("s_mov_b32 s24, s6"); A("s_mov_b32 s25, s7"); A("s_mov_b32 s26, 1048576"); A("s_mov_b32 s27, 0x20000")
def srds2(A):
    A("s_mov_b32 s28, s8"); A("s_mov_b32 s29, s9"); A("s_mov_b32 s30, 15360"); A("s_mov_b32 s31, 0x20000")
    A("s_mov_b32 s36, s16"); A("s_mov_b32 s37, s17"); A("s_mov_b32 s38, 0x1000000"); A("s_mov_b32 s39, 0x20000")
    A("s_mov_b32 s40, s10"); A("s_mov_b32 s41, s11"); A("s_mov_b32 s42, 524288"); A("s_mov_b32 s43, 0x20000")
    A(f"s_mul_i32 s{TMP0}, s{S_MT}, 256000")
    A(f"s_add_u32 s32, s12, s{TMP0}"); A("s_addc_u32 s33, s13, 0"); A("s_mov_b32 s34, 256000"); A("s_mov_b32 s35, 0x20000")

def chunk_regs(A, c):
    A(f"s_add_u32 s{TMP0}, s{S_ROT}, {c}")
    A(f"s_and_b32 s{TMP0}, s{TMP0}, 7")
    A(f"s_lshl_b32 s{TMP1}, s{TMP0}, 17")
    A(f"s_lshl_b32 s{TMP0}, s{TMP0}, 7")

def dma_stage(A, Q, c, mh):
    base = R[c % 3]
    chunk_regs(A, c)
    A(f"s_add_u32 s{TMP2}, s{TMP1}, 1024")
    if mh == 1:
        A(f"s_cmp_eq_u32 s{S_WAVE}, 7")
        A(f"s_cbranch_scc0 L_noS_{c}")
        A(f"s_mov_b32 m0, {base + XOFF + 32*1024}")
        A("s_nop 0")
        A(f"buffer_load_dwordx4 v{VS}, s[20:23], s{TMP0} offen{XNT} lds")
        A.label(f"L_noS_{c}")
    ops = []
    for part in range(2):
        ops.append((f"s_add_u32 m0, s{S_M0W}, {base + part*8192}", f"buffer_load_dwordx4 v{VW}, s[24:27], s{TMP1+part} offen{WNT} lds"))
    for q in range(4):
        ops.append((f"s_add_u32 m0, s{S_M0X}, {base + q*1024}", f"buffer_load_dwordx4 v{VX+q}, s[20:23], s{TMP0} offen{XNT} lds"))
    if mh == 1:
        ops = ops[2:] + ops[:2]
    for m, l in ops:
        A(m); A("s_nop 0"); A(l)
    Q.add(f"st{c}", 6)

def pf(A, c, mh):
    if PFD == 0 or c > 7: return
    for kind, wv in (("x", c), ("w", (c + 4) & 7)):
        if (wv >> 2) != mh: continue
        A(f"s_cmp_eq_u32 s{S_WAVE}, {wv}")
        A(f"s_cbranch_scc0 L_nopf_{kind}{c}")
        chunk_regs(A, c)
        if kind == "w":
            A(f"buffer_load_dword v2, v{VPW}, s[24:27], s{TMP1} offen")
        else:
            A(f"buffer_load_dword v2, v{VPX}, s[20:23], s{TMP0} offen{XNT}")
        A.label(f"L_nopf_{kind}{c}")

def w2_dma(A, Q, steps):
    for s_ in steps:
        A(f"s_add_u32 s{TMP0}, s{S_NT}, {s_}")
        A(f"s_and_b32 s{TMP0}, s{TMP0}, 7")
        A(f"s_lshl_b32 s{TMP0}, s{TMP0}, 16")
        A(f"s_add_u32 s{TMP1}, s{TMP0}, 128")
        for part in range(2):
            A(f"s_add_u32 m0, s{S_M0W}, {W2POS[s_] + part*8192}")
            A("s_nop 0")
            A(f"buffer_load_dwordx4 v{VW2}, s[40:43], s{TMP0+part} offen lds")
        if Q: Q.add("w2", 2)

def t_build_ops():
    ops = []
    for j in range(8):
        for d in range(4):
            ops.append(f"v_perm_b32 v{TT + 4*j + d}, v{RRT + 4*(2*d+1) + (j>>1)}, v{RRT + 4*(2*d) + (j>>1)}, s{S_SEL0 + (j&1)}")
    return ops

def prologue(A):
    A("s_cmp_ge_u32 s2, 256")
    A("s_cbranch_scc1 L_end")
    stamp(A, 0)
    A("s_load_dwordx8 s[4:11], s[0:1], 0")
    A("s_load_dwordx4 s[12:15], s[0:1], 32")
    A("s_load_dwordx2 s[16:17], s[0:1], 48")
    A("v_lshrrev_b32 v2, 6, v0")
    A("v_and_b32 v1, 63, v0")
    A(f"v_readfirstlane_b32 s{S_WAVE}, v2")
    A(f"s_and_b32 s{TMP0}, s2, 7")
    A(f"s_lshr_b32 s{TMP1}, s2, 3")
    A(f"s_lshr_b32 s{S_M3}, s{TMP1}, 3")
    A(f"s_lshl_b32 s{S_MT}, s{TMP0}, 2")
    A(f"s_add_u32 s{S_MT}, s{S_MT}, s{S_M3}")
    A(f"s_and_b32 s{S_NT}, s{TMP1}, 7")
    if ROT == "xcd":
        A(f"s_mov_b32 s{S_ROT}, s{TMP0}")
    elif ROT == "mn":
        A(f"s_lshl_b32 s{S_ROT}, s{S_M3}, 1")
        A(f"s_add_u32 s{S_ROT}, s{S_ROT}, s{S_NT}")
    elif ROT == "halfm":
        A(f"s_and_b32 s{S_ROT}, s{S_NT}, 6")
        A(f"s_add_u32 s{S_ROT}, s{S_ROT}, s{S_M3}")
    else:
        A(f"s_mov_b32 s{S_ROT}, 0")
    A(f"s_and_b32 s{S_T0}, s{S_MT}, 15")
    A(f"s_mul_i32 s{S_T0}, s{S_T0}, 250")
    A(f"s_sub_i32 s{S_T0}, s{S_T0}, 7")
    A(f"s_and_b32 s{S_NQ}, s{S_WAVE}, 3")
    A(f"s_lshl_b32 s{S_M0W}, s{S_WAVE}, 10")
    A(f"s_lshl_b32 s{S_M0X}, s{S_WAVE}, 12")
    A(f"s_add_u32 s{S_M0X}, s{S_M0X}, {XOFF}")
    A("v_lshrrev_b32 v5, 3, v1")
    A("v_and_b32 v6, 7, v1")
    A("v_lshrrev_b32 v7, 2, v5")
    A("v_and_b32 v8, 3, v5")
    A("v_lshl_add_u32 v7, v7, 3, v8")
    A(f"s_lshl_b32 s{TMP0}, s{S_WAVE}, 5")
    A(f"s_add_i32 s{TMP0}, s{TMP0}, s{S_T0}")
    A(f"v_add_u32 v7, s{TMP0}, v7")
    A("v_lshrrev_b32 v8, 1, v5")
    A("v_xor_b32 v8, v8, v6")
    A("v_lshlrev_b32 v8, 4, v8")
    A("v_xor_b32 v9, 64, v8")
    A("v_mov_b32 v20, 0x80000000")
    for o in range(2):
        for u in range(2):
            d = VX + 2 * o + u
            A(f"v_add_u32 v21, {16*u+4*o}, v7")
            A(f"v_lshl_add_u32 v{d}, v21, 10, v{8+u}")
            if u == 0:
                A("v_cmp_gt_i32 vcc, 0, v21")
                A("s_nop 1")
                A(f"v_cndmask_b32 v{d}, v{d}, v20, vcc")
    A(f"s_add_i32 s{TMP0}, s{S_T0}, 256")
    A(f"v_add_u32 v21, s{TMP0}, v5")
    A(f"v_lshl_add_u32 v{VS}, v21, 10, v8")
    A("v_lshrrev_b32 v21, 1, v5")
    A("v_and_b32 v21, 1, v21")
    A("v_lshlrev_b32 v21, 2, v21")
    A(f"s_and_b32 s{TMP0}, s{S_WAVE}, 1")
    A(f"s_lshl_b32 s{TMP0}, s{TMP0}, 1")
    A(f"v_or_b32 v21, s{TMP0}, v21")
    A("v_xor_b32 v21, v21, v6")
    A("v_lshlrev_b32 v21, 4, v21")
    A(f"v_lshl_add_u32 v{VW}, v5, 11, v21")
    A(f"v_lshl_add_u32 v{VW2}, v5, 10, v21")
    A(f"s_lshl_b32 s{TMP0}, s{S_WAVE}, 14")
    A(f"s_lshl_b32 s{TMP1}, s{S_NT}, 7")
    A(f"s_add_u32 s{TMP0}, s{TMP0}, s{TMP1}")
    A(f"v_add_u32 v{VW}, s{TMP0}, v{VW}")
    if PFD:
        A(f"s_mul_i32 s{TMP0}, s{S_NT}, 33")
        A(f"s_add_i32 s{TMP0}, s{TMP0}, s{S_T0}")
        A(f"v_add_u32 v21, s{TMP0}, v1")
        A(f"v_lshlrev_b32 v{VPX}, 10, v21")
        A("v_cmp_gt_i32 vcc, 0, v21")
        A("v_lshrrev_b32 v22, 1, v1")
        A("v_lshlrev_b32 v22, 11, v22")
        A(f"v_cndmask_b32 v{VPX}, v{VPX}, v20, vcc")
        A("v_cmp_lt_u32 vcc, 32, v1")
        A("v_and_b32 v21, 1, v1")
        A(f"v_lshl_add_u32 v{VPW}, v21, 10, v22")
        A(f"v_cndmask_b32 v{VPX}, v{VPX}, v20, vcc")
        A(f"s_lshl_b32 s{TMP0}, s{S_M3}, 15")
        A(f"s_add_u32 s{TMP0}, s{TMP0}, s{TMP1}")
        A(f"v_add_u32 v{VPW}, s{TMP0}, v{VPW}")
        A("v_cmp_lt_u32 vcc, 31, v1")
        A("s_nop 1")
        A(f"v_cndmask_b32 v{VPW}, v{VPW}, v20, vcc")
    A(f"s_cmp_ge_u32 s{S_WAVE}, 4")
    A("s_waitcnt lgkmcnt(0)")
    A("s_cbranch_scc1 L_path1")

def path(A, mh):
    NT = 9 if mh == 0 else 8
    Q = VQ()
    srds(A)
    stamp(A, 1)
    if PFMODE == "pre":
        for c in range(1, 1 + PFD): pf(A, c, mh)
    dma_stage(A, Q, 0, mh)
    A("s_barrier")
    if PFMODE != "pre":
        for c in range(1, 1 + PFD): pf(A, c, mh)
    srds2(A)
    A("v_and_b32 v3, 15, v1")
    A("v_lshrrev_b32 v4, 4, v1")
    if mh == 0:
        A("v_lshrrev_b32 v21, 3, v0")
        A("v_subrev_u32 v22, 7, v21")
        A("v_lshlrev_b32 v23, 10, v22")
        A("v_lshl_add_u32 v23, v6, 4, v23")
        A(f"s_lshl_b32 s{TMP1}, s{S_NT}, 7")
        A(f"v_add_u32 v23, s{TMP1}, v23")
        A("v_cmp_gt_i32 vcc, 0, v22")
        A("v_mul_u32_u24 v29, 144, v21")
        A("v_lshl_add_u32 v29, v6, 4, v29")
        A("v_cndmask_b32 v23, v23, v20, vcc")
        A(f"buffer_load_dwordx4 {vr(DUM)}, v23, s[28:31], 0 offen"); Q.add("dw")
    pf(A, PFD + 1, mh)
    pf(A, PFD + 2, mh)
    dma_stage(A, Q, 1, mh)
    A(f"s_lshl_b32 s{TMP0}, s{S_MT}, 3")
    A(f"v_mov_b32 v{VDBG}, s{TMP0}")
    A(f"s_getreg_b32 s{S_XCC}, hwreg(HW_REG_XCC_ID, 0, 4)")
    A(f"s_and_b32 s{S_XCC}, s{S_XCC}, 7")
    A(f"s_lshl_b32 s{S_XCC}, s{S_XCC}, 2")
    if mh == 1:
        A(f"s_cmp_eq_u32 s{S_WAVE}, 5")
        A("s_cbranch_scc0 L_nohello")
        A(f"s_lshl_b32 s{TMP0}, 1, s{S_XCC}")
        A(f"v_mov_b32 v21, s{TMP0}")
        A("s_mov_b64 exec, 1")
        A(f"global_atomic_add v{VDBG}, v21, s[14:15] offset:4 sc1")
        A(f"s_cmp_eq_u32 s{S_NT}, 0")
        A("s_cbranch_scc0 L_noep")
        A(f"s_memrealtime s[{S_EP}:{S_EP+1}]")
        A("s_waitcnt lgkmcnt(0)")
        A(f"s_lshr_b64 s[{S_EP}:{S_EP+1}], s[{S_EP}:{S_EP+1}], 6")
        A(f"s_or_b32 s{S_EP}, s{S_EP}, 0x80000000")
        A(f"v_mov_b32 v21, s{S_EP}")
        A(f"global_store_dword v{VDBG}, v21, s[14:15] sc1")
        A.label("L_noep")
        A("s_mov_b64 exec, -1")
        A.label("L_nohello")
    A(f"s_lshl_b32 s{TMP0}, s{S_WAVE}, 13")
    A(f"s_and_b32 s{TMP1}, s{S_NT}, 3")
    A(f"s_lshl_b32 s{TMP1}, s{TMP1}, 8")
    A(f"s_add_u32 s{TMP0}, s{TMP0}, s{TMP1}")
    A(f"v_add_u32 v{VW2}, s{TMP0}, v{VW2}")
    A(f"s_mov_b32 s{S_SEL0}, 0x05040100")
    A(f"s_mov_b32 s{S_SEL1}, 0x07060302")
    A("v_lshrrev_b32 v5, 3, v3")
    A("v_and_b32 v6, 7, v3")
    A("v_lshlrev_b32 v5, 10, v5")
    A("v_lshl_add_u32 v5, v6, 7, v5")
    A("v_lshrrev_b32 v6, 1, v3")
    A("v_xor_b32 v6, v6, v4")
    A("v_lshl_add_u32 v7, v6, 4, v5")
    A("v_xor_b32 v8, 64, v7")
    for sl in range(3):
        A(f"v_add_u32 v{VXA+sl*2}, {R[sl] + XOFF}, v7")
        A(f"v_add_u32 v{VXA+sl*2+1}, {R[sl] + XOFF}, v8")
    A("v_lshrrev_b32 v5, 2, v3")
    A("v_and_b32 v6, 3, v3")
    A("v_lshrrev_b32 v7, 1, v6")
    A(f"s_lshl_b32 s{TMP0}, s{S_NQ}, 1")
    A(f"v_or_b32 v7, s{TMP0}, v7")
    A("v_lshrrev_b32 v8, 1, v5")
    A("v_lshlrev_b32 v8, 2, v8")
    A("v_and_b32 v9, 1, v4")
    A("v_lshl_or_b32 v8, v9, 1, v8")
    A("v_xor_b32 v7, v7, v8")
    A("v_lshlrev_b32 v7, 4, v7")
    A("v_lshl_add_u32 v7, v5, 7, v7")
    A("v_lshl_add_u32 v7, v4, 10, v7")
    A("v_and_b32 v6, 1, v6")
    A("v_lshl_add_u32 v7, v6, 3, v7")
    for sl in range(3):
        A(f"v_add_u32 v{VWA+sl}, {R[sl]}, v7")
    A("v_lshlrev_b32 v5, 3, v4")
    A("v_sub_u32 v5, v5, v3")
    A("v_add_u32 v5, 7, v5")
    A("v_cmp_lt_u32 vcc, 21, v5")
    A("v_mov_b32 v6, 22")
    A(f"s_lshl_b32 s{TMP0}, s{S_WAVE}, 4")
    A("v_cndmask_b32 v5, v5, v6, vcc")
    A("v_mul_u32_u24 v5, 144, v5")
    A(f"s_add_u32 s{TMP0}, s{TMP0}, {DW_OFF}")
    A(f"v_add_u32 v9, s{TMP0}, v5")
    if mh == 0:
        A(f"s_waitcnt vmcnt({Q.after('dw')})")
        A(f"ds_write_b128 v29, {vr(DUM)} offset:0" if False else f"v_add_u32 v29, {DW_OFF}, v29")
        A(f"ds_write_b128 v29, {vr(DUM)}")
    A(f"s_waitcnt vmcnt({Q.after('st0')}) lgkmcnt(0)")
    A("s_barrier")
    stamp(A, 2)

    def reads(j):
        c, ks = j >> 1, j & 1
        sl, buf = c % 3, j & 1
        Rr = []
        for part in range(2):
            for h in range(2):
                d = WF + buf * 8 + part * 4 + h * 2
                Rr.append(f"ds_read_b64_tr_b16 v[{d}:{d+1}], v{VWA+sl} offset:{part*8192 + ks*4096 + h*512}")
        for tt in range(NT):
            tile = (mh * 8 + tt) if tt < 8 else 16
            d = XF + buf * 36 + tt * 4
            Rr.append(f"ds_read_b128 {vr(d)}, v{VXA+sl*2+ks} offset:{tile*2048}")
        return Rr
    for r in reads(0): A(r)
    pf(A, PFD + 3, mh)
    dma_stage(A, Q, 2, mh)
    extra = []
    for j in range(16):
        buf = j & 1
        boundary = (j & 1) == 1 and j < 15
        cn = (j + 1) >> 1
        if boundary:
            A(f"s_waitcnt vmcnt({Q.after(f'st{cn}')}) lgkmcnt(0)")
            A("s_barrier")
        stg = None
        if mh == 0 and boundary: stg = cn + 2
        if mh == 1 and (j & 1) == 0 and j >= 2: stg = (j >> 1) + 2
        if stg is not None:
            if stg < 8:
                pf(A, PFD + 1 + stg, mh)
                dma_stage(A, Q, stg, mh)
            elif stg == 9:
                w2_dma(A, Q, [0, 1, 2, 3])
            if stg == 6 and PFD and mh == 1:
                A(f"s_cmp_lt_u32 s{S_NQ}, 2")
                A("s_cbranch_scc0 L_nopf_W2all")
                A(f"s_lshr_b32 s{TMP0}, s2, 3")
                A(f"s_lshl_b32 s{TMP0}, s{TMP0}, 1")
                A(f"s_add_u32 s{TMP0}, s{TMP0}, s{S_NQ}")
                A(f"s_lshl_b32 s{TMP0}, s{TMP0}, 13")
                A("v_lshlrev_b32 v5, 7, v1")
                A(f"buffer_load_dword v2, v5, s[40:43], s{TMP0} offen")
                A.label("L_nopf_W2all")
        if PRET and j == PRET:
            A(f"s_lshl_b32 s{TMP2}, s{S_NT}, 3")
            A(f"s_add_u32 s{TMP2}, s{TMP2}, s{S_WAVE}")
            A(f"s_lshl_b32 s{TMP2}, s{TMP2}, 9")
            A(f"s_lshl_b32 s{TMP3}, s{S_MT}, 18")
            A(f"s_add_u32 s{TMP2}, s{TMP2}, s{TMP3}")
            A("v_lshrrev_b32 v5, 2, v1")
            A("v_and_b32 v5, 7, v5")
            A("v_lshlrev_b32 v5, 15, v5")
            A("v_and_b32 v6, 3, v1")
            A("v_lshl_add_u32 v5, v6, 7, v5")
            A(f"s_mov_b64 exec, 0xffffffff")
            A(f"buffer_load_dword v2, v5, s[36:39], s{TMP2} offen{PRETF}")
            A(f"s_mov_b64 exec, 1")
            A(f"s_lshl_b32 s{TMP2}, s{S_MT}, 7")
            A(f"s_add_u32 s{TMP2}, s{TMP2}, {FLAG_OFF}")
            A(f"buffer_load_dword v2, v5, s[36:39], s{TMP2} offen")
            A(f"s_mov_b64 exec, -1")
            Q.add("pret", 2)
        Rn = reads(j + 1) if j < 15 else []
        if j == 2:
            Rn = [f"ds_read_b128 {vr(RRT + 4*e)}, v9 offset:{e*144}" for e in range(8)] + Rn
        if j == 4:
            extra = t_build_ops()
        issued = 0
        for tt in range(NT):
            for part in range(2):
                if part == 0 and not boundary:
                    A(f"s_waitcnt lgkmcnt({min(15, (NT - 1 - tt) + issued)})")
                a = ACC + (tt * 2 + part) * 4
                cin = "0" if j == 0 else vr(a)
                A(f"v_mfma_f32_16x16x32_bf16 {vr(a)}, {vr(XF + buf*36 + tt*4)}, {vr(WF + buf*8 + part*4)}, {cin}")
                k = 2 if j == 2 and issued < 10 else 1
                for _ in range(k):
                    if issued < len(Rn):
                        A(Rn[issued]); issued += 1
                    elif extra:
                        A(extra.pop(0))
        assert issued == len(Rn)
    assert not extra
    stamp(A, 3)
    if mh == 0:
        A(f"global_load_dwordx2 v[30:31], v{VDBG}, s[14:15] sc1")
    A(f"s_lshl_b32 s{TMP0}, s{S_NQ}, 4")
    A(f"v_add_u32 v5, s{TMP0}, v3")
    A(f"v_mul_u32_u24 v5, {HT_STRIDE}, v5")
    A(f"v_add_u32 v5, {HT_OFF}, v5")
    A("v_lshl_add_u32 v6, v4, 4, v5")
    A("v_lshl_add_u32 v7, v4, 3, v5")
    A("s_nop 1")
    T0 = XF
    for p in range(4):
        a_regs = [ACC + ((2*p + o) * 2 + 0) * 4 + r for o in range(2) for r in range(4)]
        b_regs = [ACC + ((2*p + o) * 2 + 1) * 4 + r for o in range(2) for r in range(4)]
        O = T0 + 8 + 4 * (p & 1)
        for op in glu_ops(a_regs, b_regs, [T0 + i for i in range(8)], [O + i for i in range(4)]): A(op)
        A(f"ds_write_b128 v6, {vr(O)} offset:{(4*mh + p) * 64}")
    if mh == 0:
        a_regs = [ACC + 16 * 4 + r for r in range(4)]
        b_regs = [ACC + 17 * 4 + r for r in range(4)]
        O = T0 + 16
        for op in glu_ops(a_regs, b_regs, [T0 + i for i in range(4)], [O, O + 1]): A(op)
        A("v_cmp_gt_u32 vcc, 2, v4")
        A("s_nop 1")
        A(f"v_cndmask_b32 v{O}, 0, v{O}, vcc")
        A(f"v_cndmask_b32 v{O+1}, 0, v{O+1}, vcc")
        A(f"ds_write_b64 v7, v[{O}:{O+1}] offset:512")
    else:
        A(f"global_load_dwordx2 v[30:31], v{VDBG}, s[14:15] sc1")

def epilogue1(A):
    A(f"s_mul_i32 s{TMP0}, s{S_WAVE}, {8*HT_STRIDE}")
    A(f"s_add_u32 s{TMP0}, s{TMP0}, {HT_OFF}")
    A("v_lshlrev_b32 v5, 5, v3")
    A("v_lshl_add_u32 v5, v4, 4, v5")
    A(f"v_add_u32 v5, s{TMP0}, v5")
    A("s_waitcnt lgkmcnt(0)")
    A("s_barrier")
    stamp(A, 4)
    HA, Y, T0 = 32, 64, 96
    for j in range(8):
        A(f"ds_read_b128 {vr(HA + 4*j)}, v5 offset:{j*HT_STRIDE}")
    w2_dma(A, None, [4, 5, 6])
    for j in range(8):
        A(f"s_waitcnt lgkmcnt({7-j})")
        A(f"v_mfma_f32_16x16x32_bf16 {vr(Y + 4*j)}, {vr(HA + 4*j)}, {vr(TT + 4*j)}, 0")
    A(f"s_lshl_b32 s{TMP2}, s{S_NT}, 3")
    A(f"s_add_u32 s{TMP2}, s{TMP2}, s{S_WAVE}")
    A(f"s_lshl_b32 s{TMP2}, s{TMP2}, 9")
    A(f"s_lshl_b32 s{TMP3}, s{S_MT}, 18")
    A(f"s_add_u32 s{TMP2}, s{TMP2}, s{TMP3}")
    A("v_lshlrev_b32 v6, 16, v4")
    A("v_lshl_add_u32 v6, v3, 4, v6")
    A("v_add_u32 v7, 0x8000, v6")
    A("s_waitcnt vmcnt(6)")
    A(f"v_readfirstlane_b32 s{S_EP}, v30")
    A(f"v_readfirstlane_b32 s{S_FAST}, v31")
    A(f"s_lshl_b32 s{TMP0}, 8, s{S_XCC}")
    for r in range(4):
        y = [Y + 4*j + r for j in range(8)]
        t = [T0 + 8*(r & 1) + i for i in range(8)]
        O = T0 + 16 + 4 * r
        for op in glu_ops(y, y, t, [O + i for i in range(4)]): A(op)
    A(f"s_cmp_eq_u32 s{S_FAST}, s{TMP0}")
    A(f"s_cselect_b32 s{S_FAST}, {1 if FAST else 0}, 0")
    A("s_cbranch_scc0 L_slowst" if FAST else "s_branch L_slowst")
    for r in range(4):
        A(f"buffer_store_dwordx4 {vr(T0 + 16 + 4*r)}, v{6 + (r>>1)}, s[36:39], s{TMP2} offen offset:{(r&1)*256}{SST}")
    A("s_branch L_stdone")
    A.label("L_slowst")
    for r in range(4):
        A(f"buffer_store_dwordx4 {vr(T0 + 16 + 4*r)}, v{6 + (r>>1)}, s[36:39], s{TMP2} offen offset:{(r&1)*256} sc1")
    A.label("L_stdone")
    stamp(A, 5)
    A("s_waitcnt vmcnt(0)")
    A("s_barrier")
    stamp(A, 6)
    A(f"s_cmp_ge_u32 s{S_WAVE}, 4")
    A("s_cbranch_scc1 L_Btail")
    A(f"s_mov_b32 s{S_SPIN}, 0")
    A.label("L_ep_chk")
    A(f"s_cmp_lg_u32 s{S_EP}, 0")
    A("s_cbranch_scc1 L_ep_ok")
    A(f"global_load_dwordx2 v[30:31], v{VDBG}, s[14:15] sc1")
    A(f"s_add_u32 s{S_SPIN}, s{S_SPIN}, 1")
    A("s_waitcnt vmcnt(0)")
    A(f"v_readfirstlane_b32 s{S_EP}, v30")
    A(f"s_cmp_lt_u32 s{S_SPIN}, 0x40000")
    A("s_cbranch_scc1 L_ep_chk")
    A.label("L_ep_ok")
    A(f"s_not_b32 s{S_EP+1}, s{S_EP}")
    A(f"s_lshl_b32 s{TMP2}, s{S_MT}, 7")
    A(f"s_add_u32 s{TMP2}, s{TMP2}, {FLAG_OFF}")
    A(f"s_cmp_eq_u32 s{S_WAVE}, 0")
    A("s_cbranch_scc0 L_noflag")
    A(f"s_lshl_b32 s{TMP0}, s{S_NT}, 3")
    A(f"v_mov_b32 v11, s{TMP0}")
    A(f"v_mov_b32 v16, s{S_EP}")
    A(f"v_mov_b32 v17, s{S_EP+1}")
    A("s_mov_b64 exec, 1")
    A(f"s_cmp_eq_u32 s{S_FAST}, 1")
    A("s_cbranch_scc0 L_slowflag")
    A(f"buffer_store_dwordx2 v[16:17], v11, s[36:39], s{TMP2} offen")
    A("s_branch L_flagdone")
    A.label("L_slowflag")
    A(f"buffer_store_dwordx2 v[16:17], v11, s[36:39], s{TMP2} offen sc1")
    A.label("L_flagdone")
    A("s_mov_b64 exec, -1")
    A.label("L_noflag")
    w2_dma(A, None, [7])
    A("v_and_b32 v11, 7, v1")
    A("v_lshlrev_b32 v11, 3, v11")
    A(f"s_mov_b32 s{S_SPIN}, 0")

def phase2(A):
    SF, ACC2, WF2 = 128, 64, 32
    A(f"s_lshr_b32 s{TMP0}, s{S_NT}, 2")
    A(f"s_lshl_b32 s{TMP0}, s{TMP0}, 2")
    A(f"s_add_u32 s{TMP0}, s{TMP0}, s{S_WAVE}")
    A(f"s_lshl_b32 s{TMP3}, s{TMP0}, 15")
    A(f"s_lshl_b32 s{TMP1}, s{S_MT}, 18")
    A(f"s_add_u32 s{TMP1}, s{TMP1}, s{TMP3}")
    A("v_lshlrev_b32 v12, 4, v1")
    A(f"v_add_u32 v12, s{TMP1}, v12")
    A("v_lshrrev_b32 v5, 2, v3")
    A("v_and_b32 v6, 3, v3")
    A("v_lshrrev_b32 v7, 1, v6")
    A("v_and_b32 v8, 1, v4")
    A("v_lshl_or_b32 v7, v8, 1, v7")
    A("v_lshrrev_b32 v8, 1, v5")
    A("v_lshlrev_b32 v8, 2, v8")
    A("v_lshrrev_b32 v9, 1, v4")
    A("v_lshl_or_b32 v8, v9, 1, v8")
    A("v_xor_b32 v7, v7, v8")
    A("v_lshlrev_b32 v7, 4, v7")
    A("v_lshl_add_u32 v7, v5, 7, v7")
    A("v_lshl_add_u32 v7, v9, 10, v7")
    A("v_and_b32 v6, 1, v6")
    A("v_lshl_add_u32 v13, v6, 3, v7")
    A("v_xor_b32 v14, 64, v13")
    for wdw in (1, 2):
        A(f"v_add_u32 v{13+2*wdw}, {wdw*0x10000}, v13")
        A(f"v_add_u32 v{14+2*wdw}, {wdw*0x10000}, v14")
    for s_ in range(8):
        A(f"s_add_u32 s{TMP0}, s{S_NT}, {s_}")
        A(f"s_and_b32 s{TMP0}, s{TMP0}, 7")
        A(f"s_lshl_b32 s{20+s_}, s{TMP0}, 12")
    def reads(j):
        c, kq = j >> 2, j & 3
        buf = j & 1
        Rr = []
        for ct in range(4):
            part, ctp = ct >> 1, ct & 1
            for h in range(2):
                off = W2POS[c] + part * 8192 + kq * 2048 + h * 512
                base = 13 + ctp + 2 * (off >> 16)
                d = WF2 + buf * 16 + ct * 4 + h * 2
                Rr.append(f"ds_read_b64_tr_b16 v[{d}:{d+1}], v{base} offset:{off & 0xffff}")
        return Rr
    def sload(j):
        return f"buffer_load_dwordx4 {vr(SF + j*4)}, v12, s[36:39], s{20 + (j>>2)} offen offset:{(j&3)*1024}{SLD}"
    for r in reads(0): A(r)
    A.label("L_poll")
    A(f"buffer_load_dwordx2 v[20:21], v11, s[36:39], s{TMP2} offen sc1")
    A(f"s_add_u32 s{S_SPIN}, s{S_SPIN}, 1")
    A("s_waitcnt vmcnt(0)")
    A(f"v_cmp_ne_u64 vcc, s[{S_EP}:{S_EP+1}], v[20:21]")
    A(f"s_cmp_ge_u32 s{S_SPIN}, 0x40000")
    A("s_cbranch_scc1 L_poll_done")
    A("s_cbranch_vccnz L_poll")
    A.label("L_poll_done")
    stamp(A, 7)
    for j in range(SAHEAD): A(sload(j))
    stamp(A, 8)
    for j in range(32):
        buf = j & 1
        Rn = reads(j + 1) if j < 31 else []
        nissued = min(32, SAHEAD + j)
        for ct in range(4):
            w = f"lgkmcnt({6 if j < 31 else 6 - 2*ct})"
            if ct == 0:
                w = f"vmcnt({nissued - 1 - j}) " + w
            A(f"s_waitcnt {w}")
            if j == 27 and ct == 0:
                A("s_barrier")
            if P2ST and ct == 0 and j in (1, 4, 8, 16, 24, 28):
                stamp(A, 1 + (1, 4, 8, 16, 24, 28).index(j))
            a = ACC2 + ct * 16
            cin = "0" if j == 0 else vr(a, 16)
            A(f"v_mfma_f32_32x32x16_bf16 {vr(a,16)}, {vr(WF2 + buf*16 + ct*4)}, {vr(SF + j*4)}, {cin}")
            for r in Rn[2*ct:2*ct+2]: A(r)
            if ct == 1 and SAHEAD + j < 32:
                A(sload(SAHEAD + j))
    stamp(A, 9)
    A("v_and_b32 v5, 31, v1")
    A("v_lshrrev_b32 v6, 5, v1")
    A("v_and_b32 v7, 7, v5")
    A("v_xor_b32 v7, v7, v6")
    A("v_lshlrev_b32 v7, 4, v7")
    A("v_lshl_add_u32 v7, v5, 7, v7")
    A(f"s_lshl_b32 s{TMP0}, s{S_WAVE}, 12")
    A(f"s_add_u32 s{TMP0}, s{TMP0}, {OSTG}")
    A(f"v_add_u32 v7, s{TMP0}, v7")
    for x in (1, 2, 3):
        A(f"v_xor_b32 v{7+x}, {32*x}, v7")
    A("v_lshrrev_b32 v5, 3, v1")
    A("v_and_b32 v6, 7, v1")
    A("v_xor_b32 v11, v5, v6")
    A("v_lshlrev_b32 v11, 4, v11")
    A("v_lshl_add_u32 v11, v5, 7, v11")
    A(f"v_add_u32 v11, s{TMP0}, v11")
    A("v_lshlrev_b32 v12, 4, v6")
    A("v_lshl_add_u32 v12, v5, 10, v12")
    A(f"s_and_b32 s{TMP1}, s{S_NT}, 3")
    A(f"s_lshl_b32 s{TMP1}, s{TMP1}, 8")
    A(f"s_add_u32 s{TMP3}, s{TMP3}, s{TMP1}")
    P = 16
    for half in range(2):
        for ctp in range(2):
            for qq in range(2):
                a = ACC2 + (half * 2 + ctp) * 16 + qq * 8
                O = P + 4 * (ctp * 2 + qq)
                A(f"v_cvt_pk_bf16_f32 v{O}, v{a}, v{a+1}")
                A(f"v_cvt_pk_bf16_f32 v{O+1}, v{a+2}, v{a+3}")
                A(f"v_cvt_pk_bf16_f32 v{O+2}, v{a+4}, v{a+5}")
                A(f"v_cvt_pk_bf16_f32 v{O+3}, v{a+6}, v{a+7}")
                A("s_nop 1")
                A(f"v_permlane32_swap_b32 v{O}, v{O+2}")
                A(f"v_permlane32_swap_b32 v{O+1}, v{O+3}")
                A(f"ds_write_b128 v{7 + 2*ctp + qq}, {vr(O)}")
        A("s_waitcnt lgkmcnt(0)")
        for i in range(4):
            A(f"ds_read_b128 {vr(32 + 16*half + 4*i)}, v11 offset:{i*1024}")
        for i in range(4):
            A(f"s_waitcnt lgkmcnt({3-i})")
            A(f"s_add_u32 s{TMP0}, s{TMP3}, {i*8192 + half*128}")
            A(f"buffer_store_dwordx4 {vr(32 + 16*half + 4*i)}, v12, s[32:35], s{TMP0} offen{OST}")

def write_stamps(A, ns):
    A("s_waitcnt vmcnt(0)")
    stamp(A, ns - 2)
    A(f"s_mov_b32 s{S_STB+2*(ns-1)}, s{S_FAST}")
    A(f"s_mov_b32 s{S_STB+2*(ns-1)+1}, 0")
    A(f"s_add_u32 s{S_STB+2*(ns-1)}, s{S_STB+2*(ns-1)}, s{S_STB}")
    A(f"s_addc_u32 s{S_STB+2*(ns-1)+1}, s{S_STB+1}, 0")
    A(f"s_memrealtime s[{S_EP}:{S_EP+1}]")
    A("s_waitcnt lgkmcnt(0)")
    A(f"s_cmp_eq_u32 s{S_WAVE}, 0")
    A("s_cbranch_scc0 L_end")
    A("s_mov_b64 exec, 1")
    A(f"s_mul_i32 s{TMP0}, s2, {8*(ns+1)}")
    A(f"s_add_u32 s{TMP0}, s{TMP0}, {STAMP_OFF}")
    A(f"v_mov_b32 v3, s{TMP0}")
    for j in range(ns):
        A(f"v_mov_b32 v4, s{S_STB+2*j}"); A(f"v_mov_b32 v5, s{S_STB+1+2*j}")
        A(f"buffer_store_dwordx2 v[4:5], v3, s[36:39], 0 offen offset:{8*j}")
        A("s_nop 1")
    A(f"v_mov_b32 v4, s{S_EP}"); A(f"v_mov_b32 v5, s{S_EP+1}")
    A(f"buffer_store_dwordx2 v[4:5], v3, s[36:39], 0 offen offset:{8*ns}")

def gen(A):
    A.raw(f".globl {KN}")
    A.raw(".p2align 8")
    A.raw(f".type {KN},@function")
    A.label(KN)
    prologue(A)
    path(A, 0)
    A("s_branch L_epi")
    A.label("L_path1")
    path(A, 1)
    A.label("L_epi")
    epilogue1(A)
    phase2(A)
    if STAMPS:
        write_stamps(A, 12)
    if DIAG:
        a, b, k = [int(v) for v in DIAG.split(",")]
        A("s_waitcnt vmcnt(0)")
        stamp(A, 10)
        A("s_waitcnt lgkmcnt(0)")
        A(f"s_sub_u32 s{TMP0}, s{S_STB+2*b}, s{S_STB+2*a}")
        A(f"s_mul_i32 s{TMP0}, s{TMP0}, {k}")
        A(f"s_add_u32 s{TMP0}, s{TMP0}, 4000")
        A.label("L_diag")
        A("s_sleep 4")
        A(f"s_memrealtime s[{S_EP}:{S_EP+1}]")
        A("s_waitcnt lgkmcnt(0)")
        A(f"s_sub_u32 s{TMP1}, s{S_EP}, s{S_STB}")
        A(f"s_cmp_lt_u32 s{TMP1}, s{TMP0}")
        A("s_cbranch_scc1 L_diag")
    A("s_endpgm")
    A.label("L_Btail")
    w2_dma(A, None, [7])
    A("s_waitcnt vmcnt(0)")
    A("s_barrier")
    A.label("L_end")
    A("s_endpgm")

A = Asm()
A.raw(f"; @launch grid=(256,1,1) block=(512,1,1) lds={LDS_TOTAL}")
A.raw('.amdgcn_target "amdgcn-amd-amdhsa--gfx950"')
A.raw(".text")
gen(A)
A.raw('.section .rodata,"a"')
A.raw(f""".p2align 6
.amdhsa_kernel {KN}
  .amdhsa_next_free_vgpr 256
  .amdhsa_next_free_sgpr 100
  .amdhsa_accum_offset 256
  .amdhsa_group_segment_fixed_size 0
  .amdhsa_kernarg_size 56
  .amdhsa_user_sgpr_count 2
  .amdhsa_user_sgpr_kernarg_segment_ptr 1
  .amdhsa_system_sgpr_workgroup_id_x 1
.end_amdhsa_kernel""")
open(OUT, "w").write("\n".join(A.L) + "\n")
```

```python
import sys

class Asm:
    def __init__(self):
        self.L = []
    def __call__(self, s):
        self.L.append("    " + s)
    def label(self, s):
        self.L.append(s + ":")
    def raw(self, s):
        self.L.append(s)

def vr(b, n=4):
    return f"v[{b}:{b+n-1}]"

OUT = sys.argv[1]
def opt(name, default):
    for a in sys.argv:
        if a.startswith("--" + name + "="):
            return a.split("=", 1)[1]
    return default
STAMPS = "--stamps" in sys.argv
XNT = " nt" if opt("xnt", "1") == "1" else ""
ROT = opt("rot", "xcd")
PFD = int(opt("pfd", "2"))
PFMODE = opt("pfmode", "pre")
FAST = opt("fast", "1") == "1"
SAHEAD = int(opt("sahead", "10"))
SLD = opt("sld", "sc1")
SLD = "" if SLD == "plain" else " " + SLD.replace("+", " ")
SST = opt("sst", "plain")
SST = "" if SST == "plain" else " " + SST.replace("+", " ")
OST = opt("ost", "plain")
OST = "" if OST == "plain" else " " + OST.replace("+", " ")
P2ST = "--p2st" in sys.argv
PRET = int(opt("pret", "0"))
PRETF = " nt" if opt("pretnt", "0") == "1" else ""
WNT = " nt" if opt("wnt", "0") == "1" else ""
KN = "standalone__conformer_conv_module__speech_kernel"

NEG_LOG2E = 0xbfb8aa3b
STG = 49 * 1024
R = [0, STG, 2 * STG]
DW_OFF = 3 * STG
LDS_TOTAL = 163840
XOFF = 16384
HT_OFF = R[2]
HT_STRIDE = 560
W2POS = [R[0], R[0] + 16384, R[0] + 32768, R[2] + 36864, R[1], R[1] + 16384, R[1] + 32768, R[2]]
OSTG = R[2] + 16384
FLAG_OFF = 0x800000
STAMP_OFF = 0x900000

S_WAVE, S_MT, S_NT, S_ROT, S_NQ = 44, 45, 46, 47, 48
S_XCC = 49
S_T0 = 50
S_M3 = 51
TMP0, TMP1, TMP2, TMP3 = 52, 53, 54, 55
S_M0W, S_M0X = 56, 57
S_EP = 58
S_SEL0, S_SEL1 = 60, 61
S_SPIN = 62
S_FAST = 63
S_STB = 64

DIAG = opt("diag", "")
def stamp(A, idx):
    if STAMPS:
        A(f"s_memtime s[{S_STB+2*idx}:{S_STB+2*idx+1}]")
    elif DIAG:
        A(f"s_memrealtime s[{S_STB+2*idx}:{S_STB+2*idx+1}]")

class VQ:
    def __init__(self):
        self.q = []
    def add(self, tag, n=1):
        self.q += [tag] * n
    def after(self, tag):
        idx = max(i for i, t in enumerate(self.q) if t == tag)
        return min(63, len(self.q) - 1 - idx)

def glu_ops(a_regs, b_regs, t, out_regs):
    n = len(a_regs)
    ops = []
    for i in range(n): ops.append(f"v_mul_f32 v{t[i]}, 0x{NEG_LOG2E:x}, v{b_regs[i]}")
    for i in range(n): ops.append(f"v_exp_f32 v{t[i]}, v{t[i]}")
    for i in range(n): ops.append(f"v_add_f32 v{t[i]}, 1.0, v{t[i]}")
    for i in range(n): ops.append(f"v_rcp_f32 v{t[i]}, v{t[i]}")
    for i in range(n): ops.append(f"v_mul_f32 v{t[i]}, v{a_regs[i]}, v{t[i]}")
    for i in range(n // 2): ops.append(f"v_cvt_pk_bf16_f32 v{out_regs[i]}, v{t[2*i]}, v{t[2*i+1]}")
    return ops

VX = 10
VS, VW = 14, 15
VPX, VPW = 16, 17
VXA, VWA = 18, 24
VW2 = 27
VDBG = 28
ACC, XF, WF, TT, RRT = 32, 104, 176, 192, 224
DUM = 224

def srds(A):
    A(f"s_lshr_b32 s{TMP0}, s{S_MT}, 4")
    A(f"s_mul_i32 s{TMP0}, s{TMP0}, 4096000")
    A(f"s_add_u32 s20, s4, s{TMP0}"); A("s_addc_u32 s21, s5, 0"); A("s_mov_b32 s22, 4096000"); A("s_mov_b32 s23, 0x20000")
    A("s_mov_b32 s24, s6"); A("s_mov_b32 s25, s7"); A("s_mov_b32 s26, 1048576"); A("s_mov_b32 s27, 0x20000")
def srds2(A):
    A("s_mov_b32 s28, s8"); A("s_mov_b32 s29, s9"); A("s_mov_b32 s30, 15360"); A("s_mov_b32 s31, 0x20000")
    A("s_mov_b32 s36, s16"); A("s_mov_b32 s37, s17"); A("s_mov_b32 s38, 0x1000000"); A("s_mov_b32 s39, 0x20000")
    A("s_mov_b32 s40, s10"); A("s_mov_b32 s41, s11"); A("s_mov_b32 s42, 524288"); A("s_mov_b32 s43, 0x20000")
    A(f"s_mul_i32 s{TMP0}, s{S_MT}, 256000")
    A(f"s_add_u32 s32, s12, s{TMP0}"); A("s_addc_u32 s33, s13, 0"); A("s_mov_b32 s34, 256000"); A("s_mov_b32 s35, 0x20000")

def chunk_regs(A, c):
    A(f"s_add_u32 s{TMP0}, s{S_ROT}, {c}")
    A(f"s_and_b32 s{TMP0}, s{TMP0}, 7")
    A(f"s_lshl_b32 s{TMP1}, s{TMP0}, 17")
    A(f"s_lshl_b32 s{TMP0}, s{TMP0}, 7")

def dma_stage(A, Q, c, mh):
    base = R[c % 3]
    chunk_regs(A, c)
    A(f"s_add_u32 s{TMP2}, s{TMP1}, 1024")
    if mh == 1:
        A(f"s_cmp_eq_u32 s{S_WAVE}, 7")
        A(f"s_cbranch_scc0 L_noS_{c}")
        A(f"s_mov_b32 m0, {base + XOFF + 32*1024}")
        A("s_nop 0")
        A(f"buffer_load_dwordx4 v{VS}, s[20:23], s{TMP0} offen{XNT} lds")
        A.label(f"L_noS_{c}")
    ops = []
    for part in range(2):
        ops.append((f"s_add_u32 m0, s{S_M0W}, {base + part*8192}", f"buffer_load_dwordx4 v{VW}, s[24:27], s{TMP1+part} offen{WNT} lds"))
    for q in range(4):
        ops.append((f"s_add_u32 m0, s{S_M0X}, {base + q*1024}", f"buffer_load_dwordx4 v{VX+q}, s[20:23], s{TMP0} offen{XNT} lds"))
    if mh == 1:
        ops = ops[2:] + ops[:2]
    for m, l in ops:
        A(m); A("s_nop 0"); A(l)
    Q.add(f"st{c}", 6)

def pf(A, c, mh):
    if PFD == 0 or c > 7: return
    for kind, wv in (("x", c), ("w", (c + 4) & 7)):
        if (wv >> 2) != mh: continue
        A(f"s_cmp_eq_u32 s{S_WAVE}, {wv}")
        A(f"s_cbranch_scc0 L_nopf_{kind}{c}")
        chunk_regs(A, c)
        if kind == "w":
            A(f"buffer_load_dword v2, v{VPW}, s[24:27], s{TMP1} offen")
        else:
            A(f"buffer_load_dword v2, v{VPX}, s[20:23], s{TMP0} offen{XNT}")
        A.label(f"L_nopf_{kind}{c}")

def w2_dma(A, Q, steps):
    for s_ in steps:
        A(f"s_add_u32 s{TMP0}, s{S_NT}, {s_}")
        A(f"s_and_b32 s{TMP0}, s{TMP0}, 7")
        A(f"s_lshl_b32 s{TMP0}, s{TMP0}, 16")
        A(f"s_add_u32 s{TMP1}, s{TMP0}, 128")
        for part in range(2):
            A(f"s_add_u32 m0, s{S_M0W}, {W2POS[s_] + part*8192}")
            A("s_nop 0")
            A(f"buffer_load_dwordx4 v{VW2}, s[40:43], s{TMP0+part} offen lds")
        if Q: Q.add("w2", 2)

def t_build_ops():
    ops = []
    for j in range(8):
        for d in range(4):
            ops.append(f"v_perm_b32 v{TT + 4*j + d}, v{RRT + 4*(2*d+1) + (j>>1)}, v{RRT + 4*(2*d) + (j>>1)}, s{S_SEL0 + (j&1)}")
    return ops

def prologue(A):
    A("s_cmp_ge_u32 s2, 256")
    A("s_cbranch_scc1 L_end")
    stamp(A, 0)
    A("s_load_dwordx8 s[4:11], s[0:1], 0")
    A("s_load_dwordx4 s[12:15], s[0:1], 32")
    A("s_load_dwordx2 s[16:17], s[0:1], 48")
    A("v_lshrrev_b32 v2, 6, v0")
    A("v_and_b32 v1, 63, v0")
    A(f"v_readfirstlane_b32 s{S_WAVE}, v2")
    A(f"s_and_b32 s{TMP0}, s2, 7")
    A(f"s_lshr_b32 s{TMP1}, s2, 3")
    A(f"s_lshr_b32 s{S_M3}, s{TMP1}, 3")
    A(f"s_lshl_b32 s{S_MT}, s{TMP0}, 2")
    A(f"s_add_u32 s{S_MT}, s{S_MT}, s{S_M3}")
    A(f"s_and_b32 s{S_NT}, s{TMP1}, 7")
    if ROT == "xcd":
        A(f"s_mov_b32 s{S_ROT}, s{TMP0}")
    elif ROT == "mn":
        A(f"s_lshl_b32 s{S_ROT}, s{S_M3}, 1")
        A(f"s_add_u32 s{S_ROT}, s{S_ROT}, s{S_NT}")
    elif ROT == "halfm":
        A(f"s_and_b32 s{S_ROT}, s{S_NT}, 6")
        A(f"s_add_u32 s{S_ROT}, s{S_ROT}, s{S_M3}")
    else:
        A(f"s_mov_b32 s{S_ROT}, 0")
    A(f"s_and_b32 s{S_T0}, s{S_MT}, 15")
    A(f"s_mul_i32 s{S_T0}, s{S_T0}, 250")
    A(f"s_sub_i32 s{S_T0}, s{S_T0}, 7")
    A(f"s_and_b32 s{S_NQ}, s{S_WAVE}, 3")
    A(f"s_lshl_b32 s{S_M0W}, s{S_WAVE}, 10")
    A(f"s_lshl_b32 s{S_M0X}, s{S_WAVE}, 12")
    A(f"s_add_u32 s{S_M0X}, s{S_M0X}, {XOFF}")
    A("v_lshrrev_b32 v5, 3, v1")
    A("v_and_b32 v6, 7, v1")
    A("v_lshrrev_b32 v7, 2, v5")
    A("v_and_b32 v8, 3, v5")
    A("v_lshl_add_u32 v7, v7, 3, v8")
    A(f"s_lshl_b32 s{TMP0}, s{S_WAVE}, 5")
    A(f"s_add_i32 s{TMP0}, s{TMP0}, s{S_T0}")
    A(f"v_add_u32 v7, s{TMP0}, v7")
    A("v_lshrrev_b32 v8, 1, v5")
    A("v_xor_b32 v8, v8, v6")
    A("v_lshlrev_b32 v8, 4, v8")
    A("v_xor_b32 v9, 64, v8")
    A("v_mov_b32 v20, 0x80000000")
    for o in range(2):
        for u in range(2):
            d = VX + 2 * o + u
            A(f"v_add_u32 v21, {16*u+4*o}, v7")
            A(f"v_lshl_add_u32 v{d}, v21, 10, v{8+u}")
            if u == 0:
                A("v_cmp_gt_i32 vcc, 0, v21")
                A("s_nop 1")
                A(f"v_cndmask_b32 v{d}, v{d}, v20, vcc")
    A(f"s_add_i32 s{TMP0}, s{S_T0}, 256")
    A(f"v_add_u32 v21, s{TMP0}, v5")
    A(f"v_lshl_add_u32 v{VS}, v21, 10, v8")
    A("v_lshrrev_b32 v21, 1, v5")
    A("v_and_b32 v21, 1, v21")
    A("v_lshlrev_b32 v21, 2, v21")
    A(f"s_and_b32 s{TMP0}, s{S_WAVE}, 1")
    A(f"s_lshl_b32 s{TMP0}, s{TMP0}, 1")
    A(f"v_or_b32 v21, s{TMP0}, v21")
    A("v_xor_b32 v21, v21, v6")
    A("v_lshlrev_b32 v21, 4, v21")
    A(f"v_lshl_add_u32 v{VW}, v5, 11, v21")
    A(f"v_lshl_add_u32 v{VW2}, v5, 10, v21")
    A(f"s_lshl_b32 s{TMP0}, s{S_WAVE}, 14")
    A(f"s_lshl_b32 s{TMP1}, s{S_NT}, 7")
    A(f"s_add_u32 s{TMP0}, s{TMP0}, s{TMP1}")
    A(f"v_add_u32 v{VW}, s{TMP0}, v{VW}")
    if PFD:
        A(f"s_mul_i32 s{TMP0}, s{S_NT}, 33")
        A(f"s_add_i32 s{TMP0}, s{TMP0}, s{S_T0}")
        A(f"v_add_u32 v21, s{TMP0}, v1")
        A(f"v_lshlrev_b32 v{VPX}, 10, v21")
        A("v_cmp_gt_i32 vcc, 0, v21")
        A("v_lshrrev_b32 v22, 1, v1")
        A("v_lshlrev_b32 v22, 11, v22")
        A(f"v_cndmask_b32 v{VPX}, v{VPX}, v20, vcc")
        A("v_cmp_lt_u32 vcc, 32, v1")
        A("v_and_b32 v21, 1, v1")
        A(f"v_lshl_add_u32 v{VPW}, v21, 10, v22")
        A(f"v_cndmask_b32 v{VPX}, v{VPX}, v20, vcc")
        A(f"s_lshl_b32 s{TMP0}, s{S_M3}, 15")
        A(f"s_add_u32 s{TMP0}, s{TMP0}, s{TMP1}")
        A(f"v_add_u32 v{VPW}, s{TMP0}, v{VPW}")
        A("v_cmp_lt_u32 vcc, 31, v1")
        A("s_nop 1")
        A(f"v_cndmask_b32 v{VPW}, v{VPW}, v20, vcc")
    A(f"s_cmp_ge_u32 s{S_WAVE}, 4")
    A("s_waitcnt lgkmcnt(0)")
    A("s_cbranch_scc1 L_path1")

def path(A, mh):
    NT = 9 if mh == 0 else 8
    Q = VQ()
    srds(A)
    stamp(A, 1)
    if PFMODE == "pre":
        for c in range(1, 1 + PFD): pf(A, c, mh)
    dma_stage(A, Q, 0, mh)
    A("s_barrier")
    if PFMODE != "pre":
        for c in range(1, 1 + PFD): pf(A, c, mh)
    srds2(A)
    A("v_and_b32 v3, 15, v1")
    A("v_lshrrev_b32 v4, 4, v1")
    if mh == 0:
        A("v_lshrrev_b32 v21, 3, v0")
        A("v_subrev_u32 v22, 7, v21")
        A("v_lshlrev_b32 v23, 10, v22")
        A("v_lshl_add_u32 v23, v6, 4, v23")
        A(f"s_lshl_b32 s{TMP1}, s{S_NT}, 7")
        A(f"v_add_u32 v23, s{TMP1}, v23")
        A("v_cmp_gt_i32 vcc, 0, v22")
        A("v_mul_u32_u24 v29, 144, v21")
        A("v_lshl_add_u32 v29, v6, 4, v29")
        A("v_cndmask_b32 v23, v23, v20, vcc")
        A(f"buffer_load_dwordx4 {vr(DUM)}, v23, s[28:31], 0 offen"); Q.add("dw")
    pf(A, PFD + 1, mh)
    pf(A, PFD + 2, mh)
    dma_stage(A, Q, 1, mh)
    A(f"s_lshl_b32 s{TMP0}, s{S_MT}, 3")
    A(f"v_mov_b32 v{VDBG}, s{TMP0}")
    A(f"s_getreg_b32 s{S_XCC}, hwreg(HW_REG_XCC_ID, 0, 4)")
    A(f"s_and_b32 s{S_XCC}, s{S_XCC}, 7")
    A(f"s_lshl_b32 s{S_XCC}, s{S_XCC}, 2")
    if mh == 1:
        A(f"s_cmp_eq_u32 s{S_WAVE}, 5")
        A("s_cbranch_scc0 L_nohello")
        A(f"s_lshl_b32 s{TMP0}, 1, s{S_XCC}")
        A(f"v_mov_b32 v21, s{TMP0}")
        A("s_mov_b64 exec, 1")
        A(f"global_atomic_add v{VDBG}, v21, s[14:15] offset:4 sc1")
        A(f"s_cmp_eq_u32 s{S_NT}, 0")
        A("s_cbranch_scc0 L_noep")
        A(f"s_memrealtime s[{S_EP}:{S_EP+1}]")
        A("s_waitcnt lgkmcnt(0)")
        A(f"s_lshr_b64 s[{S_EP}:{S_EP+1}], s[{S_EP}:{S_EP+1}], 6")
        A(f"s_or_b32 s{S_EP}, s{S_EP}, 0x80000000")
        A(f"v_mov_b32 v21, s{S_EP}")
        A(f"global_store_dword v{VDBG}, v21, s[14:15] sc1")
        A.label("L_noep")
        A("s_mov_b64 exec, -1")
        A.label("L_nohello")
    A(f"s_lshl_b32 s{TMP0}, s{S_WAVE}, 13")
    A(f"s_and_b32 s{TMP1}, s{S_NT}, 3")
    A(f"s_lshl_b32 s{TMP1}, s{TMP1}, 8")
    A(f"s_add_u32 s{TMP0}, s{TMP0}, s{TMP1}")
    A(f"v_add_u32 v{VW2}, s{TMP0}, v{VW2}")
    A(f"s_mov_b32 s{S_SEL0}, 0x05040100")
    A(f"s_mov_b32 s{S_SEL1}, 0x07060302")
    A("v_lshrrev_b32 v5, 3, v3")
    A("v_and_b32 v6, 7, v3")
    A("v_lshlrev_b32 v5, 10, v5")
    A("v_lshl_add_u32 v5, v6, 7, v5")
    A("v_lshrrev_b32 v6, 1, v3")
    A("v_xor_b32 v6, v6, v4")
    A("v_lshl_add_u32 v7, v6, 4, v5")
    A("v_xor_b32 v8, 64, v7")
    for sl in range(3):
        A(f"v_add_u32 v{VXA+sl*2}, {R[sl] + XOFF}, v7")
        A(f"v_add_u32 v{VXA+sl*2+1}, {R[sl] + XOFF}, v8")
    A("v_lshrrev_b32 v5, 2, v3")
    A("v_and_b32 v6, 3, v3")
    A("v_lshrrev_b32 v7, 1, v6")
    A(f"s_lshl_b32 s{TMP0}, s{S_NQ}, 1")
    A(f"v_or_b32 v7, s{TMP0}, v7")
    A("v_lshrrev_b32 v8, 1, v5")
    A("v_lshlrev_b32 v8, 2, v8")
    A("v_and_b32 v9, 1, v4")
    A("v_lshl_or_b32 v8, v9, 1, v8")
    A("v_xor_b32 v7, v7, v8")
    A("v_lshlrev_b32 v7, 4, v7")
    A("v_lshl_add_u32 v7, v5, 7, v7")
    A("v_lshl_add_u32 v7, v4, 10, v7")
    A("v_and_b32 v6, 1, v6")
    A("v_lshl_add_u32 v7, v6, 3, v7")
    for sl in range(3):
        A(f"v_add_u32 v{VWA+sl}, {R[sl]}, v7")
    A("v_lshlrev_b32 v5, 3, v4")
    A("v_sub_u32 v5, v5, v3")
    A("v_add_u32 v5, 7, v5")
    A("v_cmp_lt_u32 vcc, 21, v5")
    A("v_mov_b32 v6, 22")
    A(f"s_lshl_b32 s{TMP0}, s{S_WAVE}, 4")
    A("v_cndmask_b32 v5, v5, v6, vcc")
    A("v_mul_u32_u24 v5, 144, v5")
    A(f"s_add_u32 s{TMP0}, s{TMP0}, {DW_OFF}")
    A(f"v_add_u32 v9, s{TMP0}, v5")
    if mh == 0:
        A(f"s_waitcnt vmcnt({Q.after('dw')})")
        A(f"ds_write_b128 v29, {vr(DUM)} offset:0" if False else f"v_add_u32 v29, {DW_OFF}, v29")
        A(f"ds_write_b128 v29, {vr(DUM)}")
    A(f"s_waitcnt vmcnt({Q.after('st0')}) lgkmcnt(0)")
    A("s_barrier")
    stamp(A, 2)

    def reads(j):
        c, ks = j >> 1, j & 1
        sl, buf = c % 3, j & 1
        Rr = []
        for part in range(2):
            for h in range(2):
                d = WF + buf * 8 + part * 4 + h * 2
                Rr.append(f"ds_read_b64_tr_b16 v[{d}:{d+1}], v{VWA+sl} offset:{part*8192 + ks*4096 + h*512}")
        for tt in range(NT):
            tile = (mh * 8 + tt) if tt < 8 else 16
            d = XF + buf * 36 + tt * 4
            Rr.append(f"ds_read_b128 {vr(d)}, v{VXA+sl*2+ks} offset:{tile*2048}")
        return Rr
    for r in reads(0): A(r)
    pf(A, PFD + 3, mh)
    dma_stage(A, Q, 2, mh)
    extra = []
    for j in range(16):
        buf = j & 1
        boundary = (j & 1) == 1 and j < 15
        cn = (j + 1) >> 1
        if boundary:
            A(f"s_waitcnt vmcnt({Q.after(f'st{cn}')}) lgkmcnt(0)")
            A("s_barrier")
        stg = None
        if mh == 0 and boundary: stg = cn + 2
        if mh == 1 and (j & 1) == 0 and j >= 2: stg = (j >> 1) + 2
        if stg is not None:
            if stg < 8:
                pf(A, PFD + 1 + stg, mh)
                dma_stage(A, Q, stg, mh)
            elif stg == 9:
                w2_dma(A, Q, [0, 1, 2, 3])
            if stg == 6 and PFD and mh == 1:
                A(f"s_cmp_lt_u32 s{S_NQ}, 2")
                A("s_cbranch_scc0 L_nopf_W2all")
                A(f"s_lshr_b32 s{TMP0}, s2, 3")
                A(f"s_lshl_b32 s{TMP0}, s{TMP0}, 1")
                A(f"s_add_u32 s{TMP0}, s{TMP0}, s{S_NQ}")
                A(f"s_lshl_b32 s{TMP0}, s{TMP0}, 13")
                A("v_lshlrev_b32 v5, 7, v1")
                A(f"buffer_load_dword v2, v5, s[40:43], s{TMP0} offen")
                A.label("L_nopf_W2all")
        if PRET and j == PRET:
            A(f"s_lshl_b32 s{TMP2}, s{S_NT}, 3")
            A(f"s_add_u32 s{TMP2}, s{TMP2}, s{S_WAVE}")
            A(f"s_lshl_b32 s{TMP2}, s{TMP2}, 9")
            A(f"s_lshl_b32 s{TMP3}, s{S_MT}, 18")
            A(f"s_add_u32 s{TMP2}, s{TMP2}, s{TMP3}")
            A("v_lshrrev_b32 v5, 2, v1")
            A("v_and_b32 v5, 7, v5")
            A("v_lshlrev_b32 v5, 15, v5")
            A("v_and_b32 v6, 3, v1")
            A("v_lshl_add_u32 v5, v6, 7, v5")
            A(f"s_mov_b64 exec, 0xffffffff")
            A(f"buffer_load_dword v2, v5, s[36:39], s{TMP2} offen{PRETF}")
            A(f"s_mov_b64 exec, 1")
            A(f"s_lshl_b32 s{TMP2}, s{S_MT}, 7")
            A(f"s_add_u32 s{TMP2}, s{TMP2}, {FLAG_OFF}")
            A(f"buffer_load_dword v2, v5, s[36:39], s{TMP2} offen")
            A(f"s_mov_b64 exec, -1")
            Q.add("pret", 2)
        Rn = reads(j + 1) if j < 15 else []
        if j == 2:
            Rn = [f"ds_read_b128 {vr(RRT + 4*e)}, v9 offset:{e*144}" for e in range(8)] + Rn
        if j == 4:
            extra = t_build_ops()
        issued = 0
        for tt in range(NT):
            for part in range(2):
                if part == 0 and not boundary:
                    A(f"s_waitcnt lgkmcnt({min(15, (NT - 1 - tt) + issued)})")
                a = ACC + (tt * 2 + part) * 4
                cin = "0" if j == 0 else vr(a)
                A(f"v_mfma_f32_16x16x32_bf16 {vr(a)}, {vr(XF + buf*36 + tt*4)}, {vr(WF + buf*8 + part*4)}, {cin}")
                k = 2 if j == 2 and issued < 10 else 1
                for _ in range(k):
                    if issued < len(Rn):
                        A(Rn[issued]); issued += 1
                    elif extra:
                        A(extra.pop(0))
        assert issued == len(Rn)
    assert not extra
    stamp(A, 3)
    if mh == 0:
        A(f"global_load_dwordx2 v[30:31], v{VDBG}, s[14:15] sc1")
    A(f"s_lshl_b32 s{TMP0}, s{S_NQ}, 4")
    A(f"v_add_u32 v5, s{TMP0}, v3")
    A(f"v_mul_u32_u24 v5, {HT_STRIDE}, v5")
    A(f"v_add_u32 v5, {HT_OFF}, v5")
    A("v_lshl_add_u32 v6, v4, 4, v5")
    A("v_lshl_add_u32 v7, v4, 3, v5")
    A("s_nop 1")
    T0 = XF
    for p in range(4):
        a_regs = [ACC + ((2*p + o) * 2 + 0) * 4 + r for o in range(2) for r in range(4)]
        b_regs = [ACC + ((2*p + o) * 2 + 1) * 4 + r for o in range(2) for r in range(4)]
        O = T0 + 8 + 4 * (p & 1)
        for op in glu_ops(a_regs, b_regs, [T0 + i for i in range(8)], [O + i for i in range(4)]): A(op)
        A(f"ds_write_b128 v6, {vr(O)} offset:{(4*mh + p) * 64}")
    if mh == 0:
        a_regs = [ACC + 16 * 4 + r for r in range(4)]
        b_regs = [ACC + 17 * 4 + r for r in range(4)]
        O = T0 + 16
        for op in glu_ops(a_regs, b_regs, [T0 + i for i in range(4)], [O, O + 1]): A(op)
        A("v_cmp_gt_u32 vcc, 2, v4")
        A("s_nop 1")
        A(f"v_cndmask_b32 v{O}, 0, v{O}, vcc")
        A(f"v_cndmask_b32 v{O+1}, 0, v{O+1}, vcc")
        A(f"ds_write_b64 v7, v[{O}:{O+1}] offset:512")
    else:
        A(f"global_load_dwordx2 v[30:31], v{VDBG}, s[14:15] sc1")

def epilogue1(A):
    A(f"s_mul_i32 s{TMP0}, s{S_WAVE}, {8*HT_STRIDE}")
    A(f"s_add_u32 s{TMP0}, s{TMP0}, {HT_OFF}")
    A("v_lshlrev_b32 v5, 5, v3")
    A("v_lshl_add_u32 v5, v4, 4, v5")
    A(f"v_add_u32 v5, s{TMP0}, v5")
    A("s_waitcnt lgkmcnt(0)")
    A("s_barrier")
    stamp(A, 4)
    HA, Y, T0 = 32, 64, 96
    for j in range(8):
        A(f"ds_read_b128 {vr(HA + 4*j)}, v5 offset:{j*HT_STRIDE}")
    w2_dma(A, None, [4, 5, 6])
    for j in range(8):
        A(f"s_waitcnt lgkmcnt({7-j})")
        A(f"v_mfma_f32_16x16x32_bf16 {vr(Y + 4*j)}, {vr(HA + 4*j)}, {vr(TT + 4*j)}, 0")
    A(f"s_lshl_b32 s{TMP2}, s{S_NT}, 3")
    A(f"s_add_u32 s{TMP2}, s{TMP2}, s{S_WAVE}")
    A(f"s_lshl_b32 s{TMP2}, s{TMP2}, 9")
    A(f"s_lshl_b32 s{TMP3}, s{S_MT}, 18")
    A(f"s_add_u32 s{TMP2}, s{TMP2}, s{TMP3}")
    A("v_lshlrev_b32 v6, 16, v4")
    A("v_lshl_add_u32 v6, v3, 4, v6")
    A("v_add_u32 v7, 0x8000, v6")
    A("s_waitcnt vmcnt(6)")
    A(f"v_readfirstlane_b32 s{S_EP}, v30")
    A(f"v_readfirstlane_b32 s{S_FAST}, v31")
    A(f"s_lshl_b32 s{TMP0}, 8, s{S_XCC}")
    for r in range(4):
        y = [Y + 4*j + r for j in range(8)]
        t = [T0 + 8*(r & 1) + i for i in range(8)]
        O = T0 + 16 + 4 * r
        for op in glu_ops(y, y, t, [O + i for i in range(4)]): A(op)
    A(f"s_cmp_eq_u32 s{S_FAST}, s{TMP0}")
    A(f"s_cselect_b32 s{S_FAST}, {1 if FAST else 0}, 0")
    A("s_cbranch_scc0 L_slowst" if FAST else "s_branch L_slowst")
    for r in range(4):
        A(f"buffer_store_dwordx4 {vr(T0 + 16 + 4*r)}, v{6 + (r>>1)}, s[36:39], s{TMP2} offen offset:{(r&1)*256}{SST}")
    A("s_branch L_stdone")
    A.label("L_slowst")
    for r in range(4):
        A(f"buffer_store_dwordx4 {vr(T0 + 16 + 4*r)}, v{6 + (r>>1)}, s[36:39], s{TMP2} offen offset:{(r&1)*256} sc1")
    A.label("L_stdone")
    stamp(A, 5)
    A("s_waitcnt vmcnt(0)")
    A("s_barrier")
    stamp(A, 6)
    A(f"s_cmp_ge_u32 s{S_WAVE}, 4")
    A("s_cbranch_scc1 L_Btail")
    A(f"s_mov_b32 s{S_SPIN}, 0")
    A.label("L_ep_chk")
    A(f"s_cmp_lg_u32 s{S_EP}, 0")
    A("s_cbranch_scc1 L_ep_ok")
    A(f"global_load_dwordx2 v[30:31], v{VDBG}, s[14:15] sc1")
    A(f"s_add_u32 s{S_SPIN}, s{S_SPIN}, 1")
    A("s_waitcnt vmcnt(0)")
    A(f"v_readfirstlane_b32 s{S_EP}, v30")
    A(f"s_cmp_lt_u32 s{S_SPIN}, 0x40000")
    A("s_cbranch_scc1 L_ep_chk")
    A.label("L_ep_ok")
    A(f"s_not_b32 s{S_EP+1}, s{S_EP}")
    A(f"s_lshl_b32 s{TMP2}, s{S_MT}, 7")
    A(f"s_add_u32 s{TMP2}, s{TMP2}, {FLAG_OFF}")
    A(f"s_cmp_eq_u32 s{S_WAVE}, 0")
    A("s_cbranch_scc0 L_noflag")
    A(f"s_lshl_b32 s{TMP0}, s{S_NT}, 3")
    A(f"v_mov_b32 v11, s{TMP0}")
    A(f"v_mov_b32 v16, s{S_EP}")
    A(f"v_mov_b32 v17, s{S_EP+1}")
    A("s_mov_b64 exec, 1")
    A(f"s_cmp_eq_u32 s{S_FAST}, 1")
    A("s_cbranch_scc0 L_slowflag")
    A(f"buffer_store_dwordx2 v[16:17], v11, s[36:39], s{TMP2} offen")
    A("s_branch L_flagdone")
    A.label("L_slowflag")
    A(f"buffer_store_dwordx2 v[16:17], v11, s[36:39], s{TMP2} offen sc1")
    A.label("L_flagdone")
    A("s_mov_b64 exec, -1")
    A.label("L_noflag")
    w2_dma(A, None, [7])
    A("v_and_b32 v11, 7, v1")
    A("v_lshlrev_b32 v11, 3, v11")
    A(f"s_mov_b32 s{S_SPIN}, 0")

def phase2(A):
    SF, ACC2, WF2 = 128, 64, 32
    A(f"s_lshr_b32 s{TMP0}, s{S_NT}, 2")
    A(f"s_lshl_b32 s{TMP0}, s{TMP0}, 2")
    A(f"s_add_u32 s{TMP0}, s{TMP0}, s{S_WAVE}")
    A(f"s_lshl_b32 s{TMP3}, s{TMP0}, 15")
    A(f"s_lshl_b32 s{TMP1}, s{S_MT}, 18")
    A(f"s_add_u32 s{TMP1}, s{TMP1}, s{TMP3}")
    A("v_lshlrev_b32 v12, 4, v1")
    A(f"v_add_u32 v12, s{TMP1}, v12")
    A("v_lshrrev_b32 v5, 2, v3")
    A("v_and_b32 v6, 3, v3")
    A("v_lshrrev_b32 v7, 1, v6")
    A("v_and_b32 v8, 1, v4")
    A("v_lshl_or_b32 v7, v8, 1, v7")
    A("v_lshrrev_b32 v8, 1, v5")
    A("v_lshlrev_b32 v8, 2, v8")
    A("v_lshrrev_b32 v9, 1, v4")
    A("v_lshl_or_b32 v8, v9, 1, v8")
    A("v_xor_b32 v7, v7, v8")
    A("v_lshlrev_b32 v7, 4, v7")
    A("v_lshl_add_u32 v7, v5, 7, v7")
    A("v_lshl_add_u32 v7, v9, 10, v7")
    A("v_and_b32 v6, 1, v6")
    A("v_lshl_add_u32 v13, v6, 3, v7")
    A("v_xor_b32 v14, 64, v13")
    for wdw in (1, 2):
        A(f"v_add_u32 v{13+2*wdw}, {wdw*0x10000}, v13")
        A(f"v_add_u32 v{14+2*wdw}, {wdw*0x10000}, v14")
    for s_ in range(8):
        A(f"s_add_u32 s{TMP0}, s{S_NT}, {s_}")
        A(f"s_and_b32 s{TMP0}, s{TMP0}, 7")
        A(f"s_lshl_b32 s{20+s_}, s{TMP0}, 12")
    def reads(j):
        c, kq = j >> 2, j & 3
        buf = j & 1
        Rr = []
        for ct in range(4):
            part, ctp = ct >> 1, ct & 1
            for h in range(2):
                off = W2POS[c] + part * 8192 + kq * 2048 + h * 512
                base = 13 + ctp + 2 * (off >> 16)
                d = WF2 + buf * 16 + ct * 4 + h * 2
                Rr.append(f"ds_read_b64_tr_b16 v[{d}:{d+1}], v{base} offset:{off & 0xffff}")
        return Rr
    def sload(j):
        return f"buffer_load_dwordx4 {vr(SF + j*4)}, v12, s[36:39], s{20 + (j>>2)} offen offset:{(j&3)*1024}{SLD}"
    for r in reads(0): A(r)
    A.label("L_poll")
    A(f"buffer_load_dwordx2 v[20:21], v11, s[36:39], s{TMP2} offen sc1")
    A(f"s_add_u32 s{S_SPIN}, s{S_SPIN}, 1")
    A("s_waitcnt vmcnt(0)")
    A(f"v_cmp_ne_u64 vcc, s[{S_EP}:{S_EP+1}], v[20:21]")
    A(f"s_cmp_ge_u32 s{S_SPIN}, 0x40000")
    A("s_cbranch_scc1 L_poll_done")
    A("s_cbranch_vccnz L_poll")
    A.label("L_poll_done")
    stamp(A, 7)
    for j in range(SAHEAD): A(sload(j))
    stamp(A, 8)
    for j in range(32):
        buf = j & 1
        Rn = reads(j + 1) if j < 31 else []
        nissued = min(32, SAHEAD + j)
        for ct in range(4):
            w = f"lgkmcnt({6 if j < 31 else 6 - 2*ct})"
            if ct == 0:
                w = f"vmcnt({nissued - 1 - j}) " + w
            A(f"s_waitcnt {w}")
            if j == 27 and ct == 0:
                A("s_barrier")
            if P2ST and ct == 0 and j in (1, 4, 8, 16, 24, 28):
                stamp(A, 1 + (1, 4, 8, 16, 24, 28).index(j))
            a = ACC2 + ct * 16
            cin = "0" if j == 0 else vr(a, 16)
            A(f"v_mfma_f32_32x32x16_bf16 {vr(a,16)}, {vr(WF2 + buf*16 + ct*4)}, {vr(SF + j*4)}, {cin}")
            for r in Rn[2*ct:2*ct+2]: A(r)
            if ct == 1 and SAHEAD + j < 32:
                A(sload(SAHEAD + j))
    stamp(A, 9)
    A("v_and_b32 v5, 31, v1")
    A("v_lshrrev_b32 v6, 5, v1")
    A("v_and_b32 v7, 7, v5")
    A("v_xor_b32 v7, v7, v6")
    A("v_lshlrev_b32 v7, 4, v7")
    A("v_lshl_add_u32 v7, v5, 7, v7")
    A(f"s_lshl_b32 s{TMP0}, s{S_WAVE}, 12")
    A(f"s_add_u32 s{TMP0}, s{TMP0}, {OSTG}")
    A(f"v_add_u32 v7, s{TMP0}, v7")
    for x in (1, 2, 3):
        A(f"v_xor_b32 v{7+x}, {32*x}, v7")
    A("v_lshrrev_b32 v5, 3, v1")
    A("v_and_b32 v6, 7, v1")
    A("v_xor_b32 v11, v5, v6")
    A("v_lshlrev_b32 v11, 4, v11")
    A("v_lshl_add_u32 v11, v5, 7, v11")
    A(f"v_add_u32 v11, s{TMP0}, v11")
    A("v_lshlrev_b32 v12, 4, v6")
    A("v_lshl_add_u32 v12, v5, 10, v12")
    A(f"s_and_b32 s{TMP1}, s{S_NT}, 3")
    A(f"s_lshl_b32 s{TMP1}, s{TMP1}, 8")
    A(f"s_add_u32 s{TMP3}, s{TMP3}, s{TMP1}")
    P = 16
    for half in range(2):
        for ctp in range(2):
            for qq in range(2):
                a = ACC2 + (half * 2 + ctp) * 16 + qq * 8
                O = P + 4 * (ctp * 2 + qq)
                A(f"v_cvt_pk_bf16_f32 v{O}, v{a}, v{a+1}")
                A(f"v_cvt_pk_bf16_f32 v{O+1}, v{a+2}, v{a+3}")
                A(f"v_cvt_pk_bf16_f32 v{O+2}, v{a+4}, v{a+5}")
                A(f"v_cvt_pk_bf16_f32 v{O+3}, v{a+6}, v{a+7}")
                A("s_nop 1")
                A(f"v_permlane32_swap_b32 v{O}, v{O+2}")
                A(f"v_permlane32_swap_b32 v{O+1}, v{O+3}")
                A(f"ds_write_b128 v{7 + 2*ctp + qq}, {vr(O)}")
        A("s_waitcnt lgkmcnt(0)")
        for i in range(4):
            A(f"ds_read_b128 {vr(32 + 16*half + 4*i)}, v11 offset:{i*1024}")
        for i in range(4):
            A(f"s_waitcnt lgkmcnt({3-i})")
            A(f"s_add_u32 s{TMP0}, s{TMP3}, {i*8192 + half*128}")
            A(f"buffer_store_dwordx4 {vr(32 + 16*half + 4*i)}, v12, s[32:35], s{TMP0} offen{OST}")

def write_stamps(A, ns):
    A("s_waitcnt vmcnt(0)")
    stamp(A, ns - 2)
    A(f"s_mov_b32 s{S_STB+2*(ns-1)}, s{S_FAST}")
    A(f"s_mov_b32 s{S_STB+2*(ns-1)+1}, 0")
    A(f"s_add_u32 s{S_STB+2*(ns-1)}, s{S_STB+2*(ns-1)}, s{S_STB}")
    A(f"s_addc_u32 s{S_STB+2*(ns-1)+1}, s{S_STB+1}, 0")
    A(f"s_memrealtime s[{S_EP}:{S_EP+1}]")
    A("s_waitcnt lgkmcnt(0)")
    A(f"s_cmp_eq_u32 s{S_WAVE}, 0")
    A("s_cbranch_scc0 L_end")
    A("s_mov_b64 exec, 1")
    A(f"s_mul_i32 s{TMP0}, s2, {8*(ns+1)}")
    A(f"s_add_u32 s{TMP0}, s{TMP0}, {STAMP_OFF}")
    A(f"v_mov_b32 v3, s{TMP0}")
    for j in range(ns):
        A(f"v_mov_b32 v4, s{S_STB+2*j}"); A(f"v_mov_b32 v5, s{S_STB+1+2*j}")
        A(f"buffer_store_dwordx2 v[4:5], v3, s[36:39], 0 offen offset:{8*j}")
        A("s_nop 1")
    A(f"v_mov_b32 v4, s{S_EP}"); A(f"v_mov_b32 v5, s{S_EP+1}")
    A(f"buffer_store_dwordx2 v[4:5], v3, s[36:39], 0 offen offset:{8*ns}")

def gen(A):
    A.raw(f".globl {KN}")
    A.raw(".p2align 8")
    A.raw(f".type {KN},@function")
    A.label(KN)
    prologue(A)
    path(A, 0)
    A("s_branch L_epi")
    A.label("L_path1")
    path(A, 1)
    A.label("L_epi")
    epilogue1(A)
    phase2(A)
    if STAMPS:
        write_stamps(A, 12)
    if DIAG:
        a, b, k = [int(v) for v in DIAG.split(",")]
        A("s_waitcnt vmcnt(0)")
        stamp(A, 10)
        A("s_waitcnt lgkmcnt(0)")
        A(f"s_sub_u32 s{TMP0}, s{S_STB+2*b}, s{S_STB+2*a}")
        A(f"s_mul_i32 s{TMP0}, s{TMP0}, {k}")
        A(f"s_add_u32 s{TMP0}, s{TMP0}, 4000")
        if opt("diagfast", "0") == "1":
            A(f"s_mul_i32 s{TMP1}, s{S_FAST}, 2000")
            A(f"s_add_u32 s{TMP0}, s{TMP0}, s{TMP1}")
        if opt("diagfast", "0") == "2":
            A(f"s_xor_b32 s{TMP1}, s{S_FAST}, 1")
            A(f"s_mul_i32 s{TMP1}, s{TMP1}, 2000")
            A(f"s_add_u32 s{TMP0}, s{TMP0}, s{TMP1}")
        A.label("L_diag")
        A("s_sleep 4")
        A(f"s_memrealtime s[{S_EP}:{S_EP+1}]")
        A("s_waitcnt lgkmcnt(0)")
        A(f"s_sub_u32 s{TMP1}, s{S_EP}, s{S_STB}")
        A(f"s_cmp_lt_u32 s{TMP1}, s{TMP0}")
        A("s_cbranch_scc1 L_diag")
    A("s_endpgm")
    A.label("L_Btail")
    w2_dma(A, None, [7])
    A("s_waitcnt vmcnt(0)")
    A("s_barrier")
    A.label("L_end")
    A("s_endpgm")

A = Asm()
A.raw(f"; @launch grid=(256,1,1) block=(512,1,1) lds={LDS_TOTAL}")
A.raw('.amdgcn_target "amdgcn-amd-amdhsa--gfx950"')
A.raw(".text")
gen(A)
A.raw('.section .rodata,"a"')
A.raw(f""".p2align 6
.amdhsa_kernel {KN}
  .amdhsa_next_free_vgpr 256
  .amdhsa_next_free_sgpr 100
  .amdhsa_accum_offset 256
  .amdhsa_group_segment_fixed_size 0
  .amdhsa_kernarg_size 56
  .amdhsa_user_sgpr_count 2
  .amdhsa_user_sgpr_kernarg_segment_ptr 1
  .amdhsa_system_sgpr_workgroup_id_x 1
.end_amdhsa_kernel""")
open(OUT, "w").write("\n".join(A.L) + "\n")
```

```python
import sys

class Asm:
    def __init__(self): self.L = []
    def __call__(self, s): self.L.append("    " + s)
    def label(self, s): self.L.append(s + ":")
    def raw(self, s): self.L.append(s)

def vr(b, n=4): return f"v[{b}:{b+n-1}]"
OUT = sys.argv[1]
def opt(name, default):
    for a in sys.argv:
        if a.startswith("--" + name + "="): return a.split("=", 1)[1]
    return default
def pol(name, default):
    v = opt(name, default)
    return "" if v == "plain" else " " + v.replace("+", " ")
STAMPS = "--stamps" in sys.argv
S1ST = "--s1st" in sys.argv
DRST = "--drst" in sys.argv
XNT = pol("xnt", "nt")
SST = pol("sst", "nt")
OST = pol("ost", "nt")
PTF = pol("ptf", "nt")
ROT = opt("rot", "xcd")
FAST = opt("fast", "1") == "1"
PRE = opt("pre", "1") == "1"
CTOUCH = opt("ctouch", "1") == "1"
SAHEAD = int(opt("sahead", "10"))
NPRE = int(opt("npre", "4"))
KN = "standalone__conformer_conv_module__speech_kernel"

NEG_LOG2E = 0xbfb8aa3b
STG = 49 * 1024
R = [0, STG, 2 * STG]
DW_OFF = 3 * STG
LDS_TOTAL = 163840
XOFF = 16384
HT_OFF = R[2]
HT_STRIDE = 560
W2POS = [R[2] + 36864, R[0], R[0] + 16384, R[0] + 32768, R[1], R[1] + 16384, R[1] + 32768, R[2]]
OSTG = R[2] + 16384
FLAG_OFF = 0x800000
STAMP_OFF = 0x900000

S_WAVE, S_MT, S_NT, S_ROT, S_NQ, S_XCC, S_T0, S_M3 = 44, 45, 46, 47, 48, 49, 50, 51
TMP0, TMP1, TMP2, TMP3 = 52, 53, 54, 55
S_M0W, S_M0X = 56, 57
S_EP = 58
S_SEL0, S_SEL1, S_SPIN, S_FAST = 60, 61, 62, 63
S_C = 64
S_STB = 66
S_CH = 92

def stamp(A, idx, force=False):
    if S1ST and not force and 3 <= idx <= 9: return
    if STAMPS: A(f"s_memtime s[{S_STB+2*idx}:{S_STB+2*idx+1}]")

class VQ:
    def __init__(self): self.q = []
    def add(self, tag, n=1): self.q += [tag] * n
    def after(self, tag):
        idx = max(i for i, t in enumerate(self.q) if t == tag)
        return min(63, len(self.q) - 1 - idx)

def glu_sc(a, b, t):
    n = len(a); ops = []
    for i in range(n): ops.append(f"v_mul_f32 v{t[i]}, s{S_C}, v{b[i]}")
    for i in range(n): ops.append(f"v_exp_f32 v{t[i]}, v{t[i]}")
    for i in range(n): ops.append(f"v_add_f32 v{t[i]}, 1.0, v{t[i]}")
    for i in range(n): ops.append(f"v_rcp_f32 v{t[i]}, v{t[i]}")
    for i in range(n): ops.append(f"v_mul_f32 v{t[i]}, v{a[i]}, v{t[i]}")
    return ops
def glu_pk(a, b, t):
    n = len(a); ops = []
    for i in range(0, n, 2):
        assert b[i] % 2 == 0 and b[i+1] == b[i] + 1 and t[i] % 2 == 0 and a[i+1] == a[i] + 1 and a[i] % 2 == 0
        ops.append(f"v_pk_mul_f32 v[{t[i]}:{t[i]+1}], v[{b[i]}:{b[i]+1}], s[{S_C}:{S_C+1}]")
    for i in range(n): ops.append(f"v_exp_f32 v{t[i]}, v{t[i]}")
    for i in range(0, n, 2): ops.append(f"v_pk_add_f32 v[{t[i]}:{t[i]+1}], v[{t[i]}:{t[i]+1}], 1.0 op_sel_hi:[1,0]")
    for i in range(n): ops.append(f"v_rcp_f32 v{t[i]}, v{t[i]}")
    for i in range(0, n, 2): ops.append(f"v_pk_mul_f32 v[{t[i]}:{t[i]+1}], v[{a[i]}:{a[i]+1}], v[{t[i]}:{t[i]+1}]")
    return ops
def glu(pk, a, b, t, out):
    ops = (glu_pk if pk else glu_sc)(a, b, t)
    for i in range(len(a) // 2): ops.append(f"v_cvt_pk_bf16_f32 v{out[i]}, v{t[2*i]}, v{t[2*i+1]}")
    return ops

VX, VS, VW = 10, 14, 15
VXA, VWA = 18, 24
VW2, VDBG, VW2B = 27, 28, 29
ACC, XF, WF, TT, RRT = 32, 104, 176, 192, 224
DUM = 224

def chunk_regs(A, c):
    if ROT == "hyb" and c >= 2:
        A(f"s_lshl_b32 s{TMP1}, s{S_CH + c - 2}, 17")
        A(f"s_lshl_b32 s{TMP0}, s{S_CH + c - 2}, 7")
        return
    A(f"s_add_u32 s{TMP0}, s{S_ROT}, {c}")
    A(f"s_and_b32 s{TMP0}, s{TMP0}, 7")
    A(f"s_lshl_b32 s{TMP1}, s{TMP0}, 17")
    A(f"s_lshl_b32 s{TMP0}, s{TMP0}, 7")

def dma_stage(A, Q, c, mh):
    base = R[c % 3]
    chunk_regs(A, c)
    A(f"s_add_u32 s{TMP2}, s{TMP1}, 1024")
    if mh != 0:
        A(f"s_cmp_eq_u32 s{S_WAVE}, 7")
        A(f"s_cbranch_scc0 L_noS_{c}")
        A(f"s_mov_b32 m0, {base + XOFF + 32*1024}")
        A("s_nop 0")
        A(f"buffer_load_dwordx4 v{VS}, s[20:23], s{TMP0} offen{XNT} lds")
        A.label(f"L_noS_{c}")
    ops = []
    for part in range(2):
        ops.append((f"s_add_u32 m0, s{S_M0W}, {base + part*8192}", f"buffer_load_dwordx4 v{VW}, s[24:27], s{TMP1+part} offen lds"))
    for q in range(4):
        ops.append((f"s_add_u32 m0, s{S_M0X}, {base + q*1024}", f"buffer_load_dwordx4 v{VX+q}, s[20:23], s{TMP0} offen{XNT} lds"))
    if mh == 1: ops = ops[2:] + ops[:2]
    for m, l in ops:
        A(m); A("s_nop 0"); A(l)
    Q.add(f"st{c}", 6)

def w2_dma2(A, steps, vlo, vhi, dlo, dhi, sa=TMP0):
    for s_ in steps:
        A(f"s_add_u32 s{sa}, s{S_NT}, {s_}")
        A(f"s_and_b32 s{sa}, s{sa}, 7")
        A(f"s_lshl_b32 s{sa}, s{sa}, 16")
        A(f"s_add_u32 s{sa+1}, s{sa}, 128")
        for v, d in ((vlo, dlo), (vhi, dhi)):
            for part in range(2):
                A(f"s_add_u32 m0, s{S_M0W}, {W2POS[s_] + part*8192 + d}")
                A("s_nop 0")
                A(f"buffer_load_dwordx4 v{v}, s[40:43], s{sa+part} offen lds")

def prologue(A, Q):
    A("s_cmp_ge_u32 s2, 256")
    A("s_cbranch_scc1 L_end")
    stamp(A, 0)
    if STAMPS: A("s_memrealtime s[98:99]")
    A("s_load_dwordx8 s[4:11], s[0:1], 0")
    A("s_load_dwordx4 s[12:15], s[0:1], 32")
    A("s_load_dwordx2 s[16:17], s[0:1], 48")
    if CTOUCH:
        A("s_getpc_b64 s[18:19]")
        A.label("L_pc")
        A("v_lshlrev_b32 v5, 6, v0")
        A("v_and_b32 v6, 1, v0")
        A("v_lshl_or_b32 v6, v6, 20, v5")
        A("v_cmp_gt_u32 vcc, L_code_end-L_pc, v6")
        A("s_and_saveexec_b64 s[90:91], vcc")
        A("s_cbranch_execz L_noct")
        A("global_load_dword v2, v5, s[18:19]")
        A.label("L_noct")
        A("s_mov_b64 exec, -1")
    A("v_lshrrev_b32 v7, 6, v0")
    A("v_and_b32 v1, 63, v0")
    A(f"v_readfirstlane_b32 s{S_WAVE}, v7")
    A(f"s_and_b32 s{S_ROT}, s2, 7")
    A(f"s_lshr_b32 s{TMP1}, s2, 3")
    A(f"s_lshr_b32 s{S_M3}, s{TMP1}, 3")
    A(f"s_lshl_b32 s{S_MT}, s{S_ROT}, 2")
    A(f"s_add_u32 s{S_MT}, s{S_MT}, s{S_M3}")
    A(f"s_and_b32 s{S_NT}, s{TMP1}, 7")
    if ROT == "halfm":
        A(f"s_and_b32 s{S_ROT}, s{S_NT}, 6")
        A(f"s_add_u32 s{S_ROT}, s{S_ROT}, s{S_M3}")
    A(f"s_and_b32 s{S_T0}, s{S_MT}, 15")
    A(f"s_mul_i32 s{S_T0}, s{S_T0}, 250")
    A(f"s_sub_i32 s{S_T0}, s{S_T0}, 7")
    A(f"s_lshl_b32 s{S_M0W}, s{S_WAVE}, 10")
    A(f"s_lshl_b32 s{S_M0X}, s{S_WAVE}, 12")
    A(f"s_add_u32 s{S_M0X}, s{S_M0X}, {XOFF}")
    A("v_lshrrev_b32 v5, 3, v1")
    A("v_and_b32 v6, 7, v1")
    A("v_lshrrev_b32 v21, 1, v5")
    A("v_and_b32 v22, 1, v21")
    A("v_lshlrev_b32 v22, 2, v22")
    A(f"s_and_b32 s{TMP0}, s{S_WAVE}, 1")
    A(f"s_lshl_b32 s{TMP0}, s{TMP0}, 1")
    A(f"v_or_b32 v22, s{TMP0}, v22")
    A("v_xor_b32 v22, v22, v6")
    A("v_lshlrev_b32 v22, 4, v22")
    A(f"v_lshl_add_u32 v{VW}, v5, 11, v22")
    A(f"v_lshl_add_u32 v{VW2}, v5, 10, v22")
    A(f"s_lshl_b32 s{TMP0}, s{S_WAVE}, 14")
    A(f"s_lshl_b32 s{TMP1}, s{S_NT}, 7")
    A(f"s_add_u32 s{TMP0}, s{TMP0}, s{TMP1}")
    A(f"v_add_u32 v{VW}, s{TMP0}, v{VW}")
    A("v_lshrrev_b32 v7, 2, v5")
    A("v_and_b32 v8, 3, v5")
    A("v_lshl_add_u32 v7, v7, 3, v8")
    A(f"s_lshl_b32 s{TMP0}, s{S_WAVE}, 5")
    A(f"s_add_i32 s{TMP0}, s{TMP0}, s{S_T0}")
    A(f"v_add_u32 v7, s{TMP0}, v7")
    A("v_xor_b32 v8, v21, v6")
    A("v_lshlrev_b32 v8, 4, v8")
    A("v_xor_b32 v9, 64, v8")
    A("v_mov_b32 v20, 0x80000000")
    A(f"v_lshl_add_u32 v{VX}, v7, 10, v8")
    A(f"v_lshl_add_u32 v{VX+1}, v7, 10, v9")
    A(f"v_add_u32 v{VX+2}, 0x1000, v{VX}")
    A(f"v_add_u32 v{VX+3}, 0x5000, v{VX+1}")
    A(f"v_add_u32 v{VX+1}, 0x4000, v{VX+1}")
    A("v_cmp_gt_i32 vcc, 0, v7")
    A("v_cmp_gt_i32 s[90:91], -4, v7")
    A(f"s_add_i32 s{TMP0}, s{S_T0}, 256")
    A(f"v_add_u32 v21, s{TMP0}, v5")
    A(f"v_cndmask_b32 v{VX}, v{VX}, v20, vcc")
    A(f"v_cndmask_b32 v{VX+2}, v{VX+2}, v20, s[90:91]")
    A(f"v_lshl_add_u32 v{VS}, v21, 10, v8")
    A(f"s_lshr_b32 s{TMP0}, s{S_MT}, 4")
    A(f"s_mul_i32 s{TMP0}, s{TMP0}, 4096000")
    A("s_mov_b32 s22, 4096000"); A("s_mov_b32 s23, 0x20000")
    A("s_mov_b32 s26, 1048576"); A("s_mov_b32 s27, 0x20000")
    A("s_waitcnt lgkmcnt(0)")
    A(f"s_add_u32 s20, s4, s{TMP0}"); A("s_addc_u32 s21, s5, 0")
    A("s_mov_b32 s24, s6"); A("s_mov_b32 s25, s7")
    stamp(A, 1)
    dma_stage(A, Q, 0, None)
    A("s_mov_b32 s28, s8"); A("s_mov_b32 s29, s9"); A("s_mov_b32 s30, 15360"); A("s_mov_b32 s31, 0x20000")
    A("v_lshrrev_b32 v21, 3, v0")
    A("v_subrev_u32 v22, 7, v21")
    A("v_lshlrev_b32 v23, 10, v22")
    A("v_lshl_add_u32 v23, v6, 4, v23")
    A(f"s_lshl_b32 s{TMP3}, s{S_NT}, 7")
    A(f"v_add_u32 v23, s{TMP3}, v23")
    A("v_cmp_gt_i32 vcc, 0, v22")
    A("v_mul_u32_u24 v16, 144, v21")
    A("v_lshl_add_u32 v16, v6, 4, v16")
    A("v_cndmask_b32 v23, v23, v20, vcc")
    A(f"v_add_u32 v16, {DW_OFF}, v16")
    A("s_barrier")
    A(f"s_cmp_lt_u32 s{S_WAVE}, 4")
    A("s_cbranch_scc0 L_nodw")
    A(f"buffer_load_dwordx4 {vr(DUM)}, v23, s[28:31], 0 offen")
    A.label("L_nodw")
    dma_stage(A, Q, 1, None)
    A("s_mov_b32 s36, s16"); A("s_mov_b32 s37, s17"); A("s_mov_b32 s38, 0x1000000"); A("s_mov_b32 s39, 0x20000")
    A("s_mov_b32 s40, s10"); A("s_mov_b32 s41, s11"); A("s_mov_b32 s42, 524288"); A("s_mov_b32 s43, 0x20000")
    A(f"s_mul_i32 s{TMP0}, s{S_MT}, 256000")
    A(f"s_add_u32 s32, s12, s{TMP0}"); A("s_addc_u32 s33, s13, 0"); A("s_mov_b32 s34, 256000"); A("s_mov_b32 s35, 0x20000")
    A(f"s_and_b32 s{S_NQ}, s{S_WAVE}, 3")
    A("v_and_b32 v3, 15, v1")
    A("v_lshrrev_b32 v4, 4, v1")
    if ROT == "hyb":
        A(f"s_lshl_b32 s{TMP0}, s{S_M3}, 1")
        A(f"s_add_u32 s{TMP0}, s{TMP0}, s{S_NT}")
        for _ in range(2):
            A(f"s_sub_u32 s{TMP1}, s{TMP0}, 6")
            A(f"s_cmp_ge_u32 s{TMP0}, 6")
            A(f"s_cselect_b32 s{TMP0}, s{TMP1}, s{TMP0}")
        for k in range(6):
            A(f"s_add_u32 s{TMP1}, s{TMP0}, {k}")
            A(f"s_sub_u32 s{TMP2}, s{TMP1}, 6")
            A(f"s_cmp_ge_u32 s{TMP1}, 6")
            A(f"s_cselect_b32 s{TMP1}, s{TMP2}, s{TMP1}")
            A(f"s_add_u32 s{TMP1}, s{TMP1}, s{S_ROT}")
            A(f"s_add_u32 s{TMP1}, s{TMP1}, 2")
            A(f"s_and_b32 s{S_CH + k}, s{TMP1}, 7")
    A(f"s_lshl_b32 s{TMP0}, s{S_MT}, 3")
    A(f"v_mov_b32 v{VDBG}, s{TMP0}")
    A(f"s_getreg_b32 s{S_XCC}, hwreg(HW_REG_XCC_ID, 0, 4)")
    A(f"s_and_b32 s{S_XCC}, s{S_XCC}, 7")
    A(f"s_lshl_b32 s{S_XCC}, s{S_XCC}, 2")
    A(f"s_cmp_eq_u32 s{S_WAVE}, 5")
    A("s_cbranch_scc0 L_nohello")
    A(f"s_lshl_b32 s{TMP0}, 1, s{S_XCC}")
    A(f"v_mov_b32 v21, s{TMP0}")
    A("s_mov_b64 exec, 1")
    A(f"global_atomic_add v{VDBG}, v21, s[14:15] offset:4 sc1")
    A(f"s_cmp_eq_u32 s{S_NT}, 0")
    A("s_cbranch_scc0 L_noep")
    A(f"s_memrealtime s[{S_EP}:{S_EP+1}]")
    A("s_waitcnt lgkmcnt(0)")
    A(f"s_lshr_b64 s[{S_EP}:{S_EP+1}], s[{S_EP}:{S_EP+1}], 6")
    A(f"s_or_b32 s{S_EP}, s{S_EP}, 0x80000000")
    A(f"v_mov_b32 v21, s{S_EP}")
    A(f"global_store_dword v{VDBG}, v21, s[14:15] sc1")
    A.label("L_noep")
    A("s_mov_b64 exec, -1")
    A.label("L_nohello")
    A(f"s_lshl_b32 s{TMP0}, s{S_WAVE}, 13")
    A(f"s_and_b32 s{TMP1}, s{S_NT}, 3")
    A(f"s_lshl_b32 s{TMP1}, s{TMP1}, 8")
    A(f"s_add_u32 s{TMP0}, s{TMP0}, s{TMP1}")
    A(f"v_add_u32 v{VW2}, s{TMP0}, v{VW2}")
    A(f"v_xor_b32 v{VW2B}, 0x8000, v{VW2}")
    A(f"s_mov_b32 s{S_SEL0}, 0x05040100")
    A(f"s_mov_b32 s{S_SEL1}, 0x07060302")
    A(f"s_mov_b32 s{S_C}, 0x{NEG_LOG2E:x}")
    A(f"s_mov_b32 s{S_C+1}, 0x{NEG_LOG2E:x}")
    A("v_lshrrev_b32 v5, 3, v3")
    A("v_and_b32 v6, 7, v3")
    A("v_lshlrev_b32 v5, 10, v5")
    A("v_lshl_add_u32 v5, v6, 7, v5")
    A("v_lshrrev_b32 v6, 1, v3")
    A("v_xor_b32 v6, v6, v4")
    A("v_lshl_add_u32 v7, v6, 4, v5")
    A("v_xor_b32 v8, 64, v7")
    for sl in range(3):
        A(f"v_add_u32 v{VXA+sl*2}, {R[sl] + XOFF}, v7")
        A(f"v_add_u32 v{VXA+sl*2+1}, {R[sl] + XOFF}, v8")
    A("v_lshrrev_b32 v5, 2, v3")
    A("v_and_b32 v6, 3, v3")
    A("v_lshrrev_b32 v7, 1, v6")
    A(f"s_lshl_b32 s{TMP0}, s{S_NQ}, 1")
    A(f"v_or_b32 v7, s{TMP0}, v7")
    A("v_lshrrev_b32 v8, 1, v5")
    A("v_lshlrev_b32 v8, 2, v8")
    A("v_and_b32 v9, 1, v4")
    A("v_lshl_or_b32 v8, v9, 1, v8")
    A("v_xor_b32 v7, v7, v8")
    A("v_lshlrev_b32 v7, 4, v7")
    A("v_lshl_add_u32 v7, v5, 7, v7")
    A("v_lshl_add_u32 v7, v4, 10, v7")
    A("v_and_b32 v6, 1, v6")
    A("v_lshl_add_u32 v7, v6, 3, v7")
    for sl in range(3):
        A(f"v_add_u32 v{VWA+sl}, {R[sl]}, v7")
    A("v_lshlrev_b32 v5, 3, v4")
    A("v_sub_u32 v5, v5, v3")
    A("v_add_u32 v5, 7, v5")
    A("v_cmp_lt_u32 vcc, 21, v5")
    A("v_mov_b32 v6, 22")
    A(f"s_lshl_b32 s{TMP0}, s{S_WAVE}, 4")
    A("v_cndmask_b32 v5, v5, v6, vcc")
    A("v_mul_u32_u24 v5, 144, v5")
    A(f"s_add_u32 s{TMP0}, s{TMP0}, {DW_OFF}")
    A(f"v_add_u32 v9, s{TMP0}, v5")
    A(f"s_cmp_ge_u32 s{S_WAVE}, 4")
    A("s_cbranch_scc1 L_path1")

def path(A, mh, Q0):
    NT = 9 if mh == 0 else 8
    Q = VQ(); Q.q = list(Q0.q)
    A(f"s_waitcnt vmcnt({Q.after('st0')})")
    if mh == 0:
        A(f"ds_write_b128 v16, {vr(DUM)}")
        A("s_waitcnt lgkmcnt(0)")
    A("s_barrier")
    stamp(A, 2)
    def reads(j):
        c, ks = j >> 1, j & 1
        sl, buf = c % 3, j & 1
        Rr = []
        for part in range(2):
            for h in range(2):
                d = WF + buf * 8 + part * 4 + h * 2
                Rr.append(f"ds_read_b64_tr_b16 v[{d}:{d+1}], v{VWA+sl} offset:{part*8192 + ks*4096 + h*512}")
        for tt in range(NT):
            tile = (mh * 8 + tt) if tt < 8 else 16
            d = XF + buf * 36 + tt * 4
            Rr.append(f"ds_read_b128 {vr(d)}, v{VXA+sl*2+ks} offset:{tile*2048}")
        return Rr
    def tail_loads():
        A(f"global_load_dwordx2 v[30:31], v{VDBG}, s[14:15] sc1")
        Q.add("misc", 1)
        if mh == 0:
            w2_dma2(A, [0], VW2, VW2B, 0, 4096)
            Q.add("w2", 4)
            A(f"s_cmp_lt_u32 s{S_NQ}, 2")
            A("s_cbranch_scc0 L_nopf_W2all")
            A(f"s_lshr_b32 s{TMP0}, s2, 3")
            A(f"s_lshl_b32 s{TMP0}, s{TMP0}, 1")
            A(f"s_add_u32 s{TMP0}, s{TMP0}, s{S_NQ}")
            A(f"s_lshl_b32 s{TMP0}, s{TMP0}, 13")
            A("v_lshlrev_b32 v5, 7, v1")
            A(f"buffer_load_dword v2, v5, s[40:43], s{TMP0} offen")
            A.label("L_nopf_W2all")
            if PRE:
                A(f"s_lshl_b32 s{TMP2}, s{S_NT}, 3")
                A(f"s_add_u32 s{TMP2}, s{TMP2}, s{S_WAVE}")
                A(f"s_lshl_b32 s{TMP2}, s{TMP2}, 9")
                A(f"s_lshl_b32 s{TMP3}, s{S_MT}, 18")
                A(f"s_add_u32 s{TMP2}, s{TMP2}, s{TMP3}")
                A("v_lshrrev_b32 v5, 2, v1")
                A("v_and_b32 v5, 7, v5")
                A("v_lshlrev_b32 v5, 15, v5")
                A("v_and_b32 v6, 3, v1")
                A("v_lshl_add_u32 v5, v6, 7, v5")
                A("v_lshrrev_b32 v6, 5, v1")
                A("v_lshl_add_u32 v5, v6, 11, v5")
                A(f"buffer_load_dword v2, v5, s[36:39], s{TMP2} offen{PTF}")
                A(f"s_mov_b64 exec, 15")
                A(f"s_lshl_b32 s{TMP2}, s{S_MT}, 9")
                A(f"s_add_u32 s{TMP2}, s{TMP2}, {FLAG_OFF}")
                A(f"buffer_load_dword v2, v5, s[36:39], s{TMP2} offen{PTF}")
                A(f"s_mov_b64 exec, -1")
                Q.add("misc", 2)
    for r in reads(0): A(r)
    if mh == 1: dma_stage(A, Q, 2, mh)
    extra = []
    for j in range(16):
        buf = j & 1
        cn = (j + 1) >> 1
        boundary = (j & 1) == 1 and j < 15 and not (mh == 0 and j == 13)
        if boundary:
            A(f"s_waitcnt vmcnt({Q.after(f'st{cn}')}) lgkmcnt(0)")
            A("s_barrier")
            if S1ST: stamp(A, 2 + cn, True)
            if cn == 6:
                if mh == 1:
                    A("s_setprio 3")
                    tail_loads()
                else:
                    tail_loads()
                    A(f"s_waitcnt vmcnt({Q.after('st7')})")
                    A("s_barrier")
                    if S1ST: stamp(A, 9, True)
                    A("s_setprio 1")
        stg = None
        if mh == 0 and (j & 1) == 1 and j < 15: stg = cn + 2
        if mh == 1 and (j & 1) == 0 and j >= 2 and j != 10: stg = (j >> 1) + 2
        if mh == 1 and j == 9: stg = 7
        if stg is not None and stg < 8: dma_stage(A, Q, stg, mh)
        Rn = reads(j + 1) if j < 15 else []
        if j == 2:
            Rn = [f"ds_read_b128 {vr(RRT + 4*e)}, v9 offset:{e*144}" for e in range(8)] + Rn
        if j == 3:
            extra = [f"v_perm_b32 v{TT + 4*jj + d}, v{RRT + 4*(2*d+1) + (jj>>1)}, v{RRT + 4*(2*d) + (jj>>1)}, s{S_SEL0 + (jj&1)}" for jj in range(8) for d in range(4)]
        issued = 0
        for tt in range(NT):
            for part in range(2):
                if part == 0 and not boundary:
                    A(f"s_waitcnt lgkmcnt({min(15, (NT - 1 - tt) + issued)})")
                a = ACC + (tt * 2 + part) * 4
                cin = "0" if j == 0 else vr(a)
                A(f"v_mfma_f32_16x16x32_bf16 {vr(a)}, {vr(XF + buf*36 + tt*4)}, {vr(WF + buf*8 + part*4)}, {cin}")
                k = 2 if (j == 2 and issued < 10) else 1
                for _ in range(k):
                    if issued < len(Rn):
                        A(Rn[issued]); issued += 1
                    elif extra:
                        A(extra.pop(0))
        assert issued == len(Rn)
        if j == 0 and mh == 0: dma_stage(A, Q, 2, mh)
    assert not extra
    A("s_setprio 0")
    stamp(A, 3)
    pk = (mh == 0)
    A(f"s_lshl_b32 s{TMP0}, s{S_NQ}, 4")
    A(f"v_add_u32 v5, s{TMP0}, v3")
    A(f"v_mul_u32_u24 v5, {HT_STRIDE}, v5")
    A(f"v_add_u32 v5, {HT_OFF}, v5")
    A("v_lshl_add_u32 v6, v4, 4, v5")
    A("v_lshl_add_u32 v7, v4, 3, v5")
    A("s_nop 1")
    T0 = XF
    for p in range(4):
        a = [ACC + ((2*p + o) * 2 + 0) * 4 + r for o in range(2) for r in range(4)]
        b = [ACC + ((2*p + o) * 2 + 1) * 4 + r for o in range(2) for r in range(4)]
        O = T0 + 8 + 4 * (p & 1)
        for op in glu(pk, a, b, [T0 + i for i in range(8)], [O + i for i in range(4)]): A(op)
        A(f"ds_write_b128 v6, {vr(O)} offset:{(4*mh + p) * 64}")
    if mh == 0:
        a = [ACC + 16 * 4 + r for r in range(4)]
        b = [ACC + 17 * 4 + r for r in range(4)]
        O = T0 + 16
        A("v_cmp_gt_u32 vcc, 2, v4")
        for op in glu(pk, a, b, [T0 + i for i in range(4)], [O, O + 1]): A(op)
        A(f"v_cndmask_b32 v{O}, 0, v{O}, vcc")
        A(f"v_cndmask_b32 v{O+1}, 0, v{O+1}, vcc")
        A(f"ds_write_b64 v7, v[{O}:{O+1}] offset:512")
        A(f"s_waitcnt vmcnt({Q.after('w2')})")

def epilogue1(A):
    A(f"s_mul_i32 s{TMP0}, s{S_WAVE}, {8*HT_STRIDE}")
    A(f"s_add_u32 s{TMP0}, s{TMP0}, {HT_OFF}")
    A("v_lshlrev_b32 v5, 5, v3")
    A("v_lshl_add_u32 v5, v4, 4, v5")
    A(f"v_add_u32 v5, s{TMP0}, v5")
    A(f"s_lshl_b32 s{TMP2}, s{S_NT}, 3")
    A(f"s_add_u32 s{TMP2}, s{TMP2}, s{S_WAVE}")
    A(f"s_lshl_b32 s{TMP1}, s{TMP2}, 3")
    A(f"v_mov_b32 v11, s{TMP1}")
    A(f"s_lshl_b32 s{TMP2}, s{TMP2}, 9")
    A(f"s_lshl_b32 s{TMP3}, s{S_MT}, 18")
    A(f"s_add_u32 s{TMP2}, s{TMP2}, s{TMP3}")
    A("v_lshlrev_b32 v6, 16, v4")
    A("v_lshl_add_u32 v6, v3, 4, v6")
    A("v_add_u32 v7, 0x8000, v6")
    A(f"s_lshl_b32 s{TMP3}, s{S_MT}, 9")
    A(f"s_add_u32 s{TMP3}, s{TMP3}, {FLAG_OFF}")
    A("s_waitcnt lgkmcnt(0)")
    A("s_barrier")
    stamp(A, 4)
    HA, Y, T0, O0 = 32, 64, 96, 160
    for j in range(8):
        A(f"ds_read_b128 {vr(HA + 4*j)}, v5 offset:{j*HT_STRIDE}")
    for j in range(8):
        A(f"s_waitcnt lgkmcnt({7-j})")
        A(f"v_mfma_f32_16x16x32_bf16 {vr(Y + 4*j)}, {vr(HA + 4*j)}, {vr(TT + 4*j)}, 0")
    A("s_waitcnt vmcnt(0)")
    if DRST: stamp(A, 2)
    A(f"v_readfirstlane_b32 s{S_EP}, v30")
    A(f"v_readfirstlane_b32 s{S_FAST}, v31")
    A(f"s_lshl_b32 s{TMP0}, 8, s{S_XCC}")
    A(f"s_cmp_eq_u32 s{S_FAST}, s{TMP0}")
    A(f"s_cselect_b32 s{S_FAST}, {1 if FAST else 0}, 0")
    A("s_nop 2")
    for half in range(2):
        y = [Y + 4*j + 2*half + rr for j in range(8) for rr in range(2)]
        t = [T0 + 16*half + i for i in range(16)]
        for op in glu_pk(y, y, t): A(op)
        for rr in range(2):
            for i in range(4):
                A(f"v_cvt_pk_bf16_f32 v{O0 + 4*(2*half+rr) + i}, v{t[2*(2*i) + rr]}, v{t[2*(2*i+1) + rr]}")
    A(f"s_cmp_lg_u32 s{S_EP}, 0")
    A(f"s_cselect_b32 s{S_FAST}, s{S_FAST}, 0")
    A(f"s_not_b32 s{S_EP+1}, s{S_EP}")
    A(f"v_mov_b32 v16, s{S_EP}")
    A(f"v_mov_b32 v17, s{S_EP+1}")
    A(f"s_cmp_eq_u32 s{S_FAST}, 1")
    A("s_cbranch_scc0 L_slow")
    for r in range(4):
        A(f"buffer_store_dwordx4 {vr(O0 + 4*r)}, v{6 + (r>>1)}, s[36:39], s{TMP2} offen offset:{(r&1)*256}{SST}")
    stamp(A, 5)
    A(f"s_cmp_ge_u32 s{S_WAVE}, 4")
    A("s_cbranch_scc0 L_Afast")
    A("s_mov_b64 exec, 1")
    A("s_waitcnt vmcnt(0)")
    if DRST: stamp(A, 1)
    A(f"buffer_store_dwordx2 v[16:17], v11, s[36:39], s{TMP3} offen")
    A("s_mov_b64 exec, -1")
    A.label("L_Btail")
    A("s_barrier")
    stamp(A, 6)
    w2_dma2(A, range(NPRE + 1, 8), VW2, VW2B, 0, -4096)
    A("s_waitcnt vmcnt(0)")
    A("s_barrier")
    if STAMPS:
        A("s_waitcnt lgkmcnt(0)")
        A(f"s_cmp_eq_u32 s{S_WAVE}, 4")
        A("s_cbranch_scc0 L_end")
        A("s_mov_b64 exec, 1")
        A(f"s_mul_i32 s{TMP0}, s2, {8*8}")
        A(f"s_add_u32 s{TMP0}, s{TMP0}, {STAMP_OFF + 0x40000}")
        A(f"v_mov_b32 v3, s{TMP0}")
        for j in range(7):
            A(f"v_mov_b32 v4, s{S_STB+2*j}"); A(f"v_mov_b32 v5, s{S_STB+2*j+1}")
            A(f"buffer_store_dwordx2 v[4:5], v3, s[36:39], 0 offen offset:{8*j}")
            A("s_nop 1")
    A("s_endpgm")
    A.label("L_Afast")
    w2_dma2(A, range(1, NPRE + 1), VW2, VW2B, 0, 4096)
    A("s_mov_b64 exec, 1")
    A(f"s_waitcnt vmcnt({4*NPRE})")
    if DRST: stamp(A, 1)
    A(f"buffer_store_dwordx2 v[16:17], v11, s[36:39], s{TMP3} offen")
    A("s_mov_b64 exec, -1")
    A.label("L_Ajoin")

def slow_path(A):
    O0 = 160
    A.label("L_slow")
    for r in range(4):
        A(f"buffer_store_dwordx4 {vr(O0 + 4*r)}, v{6 + (r>>1)}, s[36:39], s{TMP2} offen offset:{(r&1)*256} sc1")
    A(f"s_mov_b32 s{S_SPIN}, 0")
    A.label("L_ep_chk")
    A(f"s_cmp_lg_u32 s{S_EP}, 0")
    A("s_cbranch_scc1 L_ep_ok")
    A(f"global_load_dwordx2 v[30:31], v{VDBG}, s[14:15] sc1")
    A(f"s_add_u32 s{S_SPIN}, s{S_SPIN}, 1")
    A("s_waitcnt vmcnt(0)")
    A(f"v_readfirstlane_b32 s{S_EP}, v30")
    A(f"s_cmp_lt_u32 s{S_SPIN}, 0x40000")
    A("s_cbranch_scc1 L_ep_chk")
    A.label("L_ep_ok")
    A(f"s_not_b32 s{S_EP+1}, s{S_EP}")
    A(f"v_mov_b32 v16, s{S_EP}")
    A(f"v_mov_b32 v17, s{S_EP+1}")
    A("s_mov_b64 exec, 1")
    A("s_waitcnt vmcnt(0)")
    A(f"buffer_store_dwordx2 v[16:17], v11, s[36:39], s{TMP3} offen sc1")
    A("s_mov_b64 exec, -1")
    A(f"s_cmp_ge_u32 s{S_WAVE}, 4")
    A("s_cbranch_scc1 L_Btail")
    w2_dma2(A, range(1, NPRE + 1), VW2, VW2B, 0, 4096)
    A("s_waitcnt vmcnt(0)")
    A("s_branch L_Ajoin")

def phase2(A):
    SF, ACC2, WF2 = 128, 64, 32
    S_FL = TMP2
    A(f"s_mov_b32 s{S_FL}, s{TMP3}")
    A(f"s_lshr_b32 s{TMP0}, s{S_NT}, 2")
    A(f"s_lshl_b32 s{TMP0}, s{TMP0}, 2")
    A(f"s_add_u32 s{TMP0}, s{TMP0}, s{S_WAVE}")
    A(f"s_lshl_b32 s{TMP3}, s{TMP0}, 15")
    A(f"s_lshl_b32 s{TMP1}, s{S_MT}, 18")
    A(f"s_add_u32 s{TMP1}, s{TMP1}, s{TMP3}")
    A("v_lshlrev_b32 v12, 4, v1")
    A(f"v_add_u32 v12, s{TMP1}, v12")
    A("v_lshrrev_b32 v5, 2, v3")
    A("v_and_b32 v6, 3, v3")
    A("v_lshrrev_b32 v7, 1, v6")
    A("v_and_b32 v8, 1, v4")
    A("v_lshl_or_b32 v7, v8, 1, v7")
    A("v_lshrrev_b32 v8, 1, v5")
    A("v_lshlrev_b32 v8, 2, v8")
    A("v_lshrrev_b32 v9, 1, v4")
    A("v_lshl_or_b32 v8, v9, 1, v8")
    A("v_xor_b32 v7, v7, v8")
    A("v_lshlrev_b32 v7, 4, v7")
    A("v_lshl_add_u32 v7, v5, 7, v7")
    A("v_lshl_add_u32 v7, v9, 10, v7")
    A("v_and_b32 v6, 1, v6")
    A("v_lshl_add_u32 v22, v6, 3, v7")
    A("v_xor_b32 v23, 64, v22")
    for wdw in (1, 2):
        A(f"v_add_u32 v{22+2*wdw}, {wdw*0x10000}, v22")
        A(f"v_add_u32 v{23+2*wdw}, {wdw*0x10000}, v23")
    for s_ in range(8):
        A(f"s_add_u32 s{TMP0}, s{S_NT}, {s_}")
        A(f"s_and_b32 s{TMP0}, s{TMP0}, 7")
        A(f"s_lshl_b32 s{20+s_}, s{TMP0}, 12")
    A(f"s_lshl_b32 s{TMP0}, s{S_NT}, 3")
    A(f"v_add_u32 v13, s{TMP0}, v1")
    A("v_and_b32 v13, 63, v13")
    A("v_lshlrev_b32 v13, 3, v13")
    A(f"s_mov_b32 s{S_SPIN}, 0")
    def reads(j):
        c, kq = j >> 2, j & 3
        buf = j & 1
        Rr = []
        for ct in range(4):
            part, ctp = ct >> 1, ct & 1
            for h in range(2):
                off = W2POS[c] + part * 8192 + kq * 2048 + h * 512
                base = 22 + ctp + 2 * (off >> 16)
                d = WF2 + buf * 16 + ct * 4 + h * 2
                Rr.append(f"ds_read_b64_tr_b16 v[{d}:{d+1}], v{base} offset:{off & 0xffff}")
        return Rr
    def sload(j):
        return f"buffer_load_dwordx4 {vr(SF + j*4)}, v12, s[36:39], s{20 + (j>>2)} offen offset:{(j&3)*1024} sc1"
    for r in reads(0): A(r)
    A("s_waitcnt vmcnt(1)")
    A("s_barrier")
    stamp(A, 6)
    for j in range(4): A(sload(j))
    A(f"buffer_load_dwordx2 v[20:21], v13, s[36:39], s{S_FL} offen sc1")
    S_MK = 28
    spins = []
    def check(k):
        reg = S_MK + (k >> 2)
        A(f"s_bfe_u32 s{TMP0}, s{reg}, {((k & 3) * 8) | (8 << 16)}")
        A(f"s_cmp_eq_u32 s{TMP0}, 0xff")
        A(f"s_cbranch_scc0 L_spin{k}")
        A.label(f"L_back{k}")
        spins.append(k)
    def step(j, vm, pre=None):
        buf = j & 1
        Rn = reads(j + 1) if j < 31 else []
        for ct in range(4):
            w = f"lgkmcnt({6 if j < 31 else 6 - 2*ct})"
            if ct == 0 and vm is not None: w = f"vmcnt({vm}) " + w
            A(f"s_waitcnt {w}")
            if j == 4 * (NPRE + 1) - 1 and ct == 0:
                A("s_barrier")
            a = ACC2 + ct * 16
            cin = "0" if j == 0 else vr(a, 16)
            A(f"v_mfma_f32_32x32x16_bf16 {vr(a,16)}, {vr(WF2 + buf*16 + ct*4)}, {vr(SF + j*4)}, {cin}")
            for r in Rn[2*ct:2*ct+2]: A(r)
            if pre: pre(ct)
    step(0, 4)
    A("s_waitcnt vmcnt(0)")
    A(f"v_cmp_eq_u64 s[{S_MK}:{S_MK+1}], s[{S_EP}:{S_EP+1}], v[20:21]")
    nissued = [4]
    def issue_upto(n):
        while nissued[0] < min(32, n):
            jj = nissued[0]
            if jj % 4 == 0: check(jj // 4)
            A(sload(jj)); nissued[0] += 1
    for j in range(1, 32):
        target = min(32, j + 1 + SAHEAD)
        vm = None if j < 4 else nissued[0] - 1 - j
        step(j, vm, lambda ct: issue_upto(min(target, nissued[0] + 2)))
        if j == 1: stamp(A, 7)
        if j == 4: stamp(A, 8)
    stamp(A, 9)
    A("v_and_b32 v5, 31, v1")
    A("v_lshrrev_b32 v6, 5, v1")
    A("v_and_b32 v7, 7, v5")
    A("v_xor_b32 v7, v7, v6")
    A("v_lshlrev_b32 v7, 4, v7")
    A("v_lshl_add_u32 v7, v5, 7, v7")
    A(f"s_lshl_b32 s{TMP0}, s{S_WAVE}, 12")
    A(f"s_add_u32 s{TMP0}, s{TMP0}, {OSTG}")
    A(f"v_add_u32 v7, s{TMP0}, v7")
    for x in (1, 2, 3): A(f"v_xor_b32 v{7+x}, {32*x}, v7")
    A("v_lshrrev_b32 v5, 3, v1")
    A("v_and_b32 v6, 7, v1")
    A("v_xor_b32 v11, v5, v6")
    A("v_lshlrev_b32 v11, 4, v11")
    A("v_lshl_add_u32 v11, v5, 7, v11")
    A(f"v_add_u32 v11, s{TMP0}, v11")
    A("v_lshlrev_b32 v12, 4, v6")
    A("v_lshl_add_u32 v12, v5, 10, v12")
    A(f"s_and_b32 s{TMP1}, s{S_NT}, 3")
    A(f"s_lshl_b32 s{TMP1}, s{TMP1}, 8")
    A(f"s_add_u32 s{TMP3}, s{TMP3}, s{TMP1}")
    P = 16
    for half in range(2):
        for ctp in range(2):
            for qq in range(2):
                a = ACC2 + (half * 2 + ctp) * 16 + qq * 8
                O = P + 4 * (ctp * 2 + qq)
                for i in range(4): A(f"v_cvt_pk_bf16_f32 v{O+i}, v{a+2*i}, v{a+2*i+1}")
                A("s_nop 1")
                A(f"v_permlane32_swap_b32 v{O}, v{O+2}")
                A(f"v_permlane32_swap_b32 v{O+1}, v{O+3}")
                A(f"ds_write_b128 v{7 + 2*ctp + qq}, {vr(O)}")
        A("s_waitcnt lgkmcnt(0)")
        for i in range(4): A(f"ds_read_b128 {vr(32 + 16*half + 4*i)}, v11 offset:{i*1024}")
        for i in range(4):
            A(f"s_waitcnt lgkmcnt({3-i})")
            A(f"s_add_u32 s{TMP0}, s{TMP3}, {i*8192 + half*128}")
            A(f"buffer_store_dwordx4 {vr(32 + 16*half + 4*i)}, v12, s[32:35], s{TMP0} offen{OST}")
    if STAMPS:
        ns = 12
        A("s_waitcnt vmcnt(0)")
        stamp(A, ns - 2)
        A(f"s_mov_b64 s[{S_STB+2*(ns-1)}:{S_STB+2*(ns-1)+1}], s[98:99]")
        A(f"s_memrealtime s[{S_EP}:{S_EP+1}]")
        A("s_waitcnt lgkmcnt(0)")
        A(f"s_cmp_eq_u32 s{S_WAVE}, 0")
        A("s_cbranch_scc0 L_end")
        A("s_mov_b64 exec, 1")
        A(f"s_mul_i32 s{TMP0}, s2, {8*(ns+1)}")
        A(f"s_add_u32 s{TMP0}, s{TMP0}, {STAMP_OFF}")
        A(f"v_mov_b32 v3, s{TMP0}")
        for j in range(ns):
            A(f"v_mov_b32 v4, s{S_STB+2*j}"); A(f"v_mov_b32 v5, s{S_STB+1+2*j}")
            A(f"buffer_store_dwordx2 v[4:5], v3, s[36:39], 0 offen offset:{8*j}")
            A("s_nop 1")
        A(f"v_mov_b32 v4, s{S_EP}"); A(f"v_mov_b32 v5, s{S_EP+1}")
        A(f"buffer_store_dwordx2 v[4:5], v3, s[36:39], 0 offen offset:{8*ns}")
    A.label("L_end")
    A("s_endpgm")
    for k in spins:
        reg = S_MK + (k >> 2)
        A.label(f"L_spin{k}")
        A(f"buffer_load_dwordx2 v[20:21], v13, s[36:39], s{S_FL} offen sc1")
        A(f"s_add_u32 s{S_SPIN}, s{S_SPIN}, 1")
        A("s_waitcnt vmcnt(0)")
        A(f"v_cmp_eq_u64 s[{S_MK}:{S_MK+1}], s[{S_EP}:{S_EP+1}], v[20:21]")
        A(f"s_cmp_ge_u32 s{S_SPIN}, 0x40000")
        A(f"s_cbranch_scc1 L_back{k}")
        A(f"s_bfe_u32 s{TMP0}, s{reg}, {((k & 3) * 8) | (8 << 16)}")
        A(f"s_cmp_eq_u32 s{TMP0}, 0xff")
        A(f"s_cbranch_scc0 L_spin{k}")
        A(f"s_branch L_back{k}")

A = Asm()
A.raw(f"; @launch grid=(256,1,1) block=(512,1,1) lds={LDS_TOTAL}")
A.raw('.amdgcn_target "amdgcn-amd-amdhsa--gfx950"')
A.raw(".text")
A.raw(f".globl {KN}")
A.raw(".p2align 8")
A.raw(f".type {KN},@function")
A.label(KN)
Q = VQ()
prologue(A, Q)
path(A, 0, Q)
A("s_branch L_epi")
A.label("L_path1")
path(A, 1, Q)
A.label("L_epi")
epilogue1(A)
phase2(A)
slow_path(A)
A.label("L_code_end")
A.raw('.section .rodata,"a"')
A.raw(f""".p2align 6
.amdhsa_kernel {KN}
  .amdhsa_next_free_vgpr 256
  .amdhsa_next_free_sgpr 102
  .amdhsa_accum_offset 256
  .amdhsa_group_segment_fixed_size 0
  .amdhsa_kernarg_size 56
  .amdhsa_user_sgpr_count 2
  .amdhsa_user_sgpr_kernarg_segment_ptr 1
  .amdhsa_system_sgpr_workgroup_id_x 1
.end_amdhsa_kernel""")
open(OUT, "w").write("\n".join(A.L) + "\n")
```

```python
import sys

class Asm:
    def __init__(self): self.L = []
    def __call__(self, s): self.L.append("    " + s)
    def label(self, s): self.L.append(s + ":")
    def raw(self, s): self.L.append(s)

def vr(b, n=4): return f"v[{b}:{b+n-1}]"
OUT = sys.argv[1]
def opt(name, default):
    for a in sys.argv:
        if a.startswith("--" + name + "="): return a.split("=", 1)[1]
    return default
def pol(name, default):
    v = opt(name, default)
    return "" if v == "plain" else " " + v.replace("+", " ")
STAMPS = "--stamps" in sys.argv
S1ST = "--s1st" in sys.argv
DRST = "--drst" in sys.argv
XNT = pol("xnt", "nt")
SST = pol("sst", "nt")
OST = pol("ost", "nt")
PTF = pol("ptf", "nt")
ROT = opt("rot", "xcd")
FAST = opt("fast", "1") == "1"
PRE = opt("pre", "1") == "1"
CTOUCH = opt("ctouch", "1") == "1"
PFA = int(opt("pfa", "0"))
PFB = opt("pfb", "0") == "1"
SAHEAD = int(opt("sahead", "10"))
NPRE = int(opt("npre", "4"))
KN = "standalone__conformer_conv_module__speech_kernel"

NEG_LOG2E = 0xbfb8aa3b
STG = 49 * 1024
R = [0, STG, 2 * STG]
DW_OFF = 3 * STG
LDS_TOTAL = 163840
XOFF = 16384
HT_OFF = R[2]
HT_STRIDE = 560
W2POS = [R[2] + 36864, R[0], R[0] + 16384, R[0] + 32768, R[1], R[1] + 16384, R[1] + 32768, R[2]]
OSTG = R[2] + 16384
FLAG_OFF = 0x800000
STAMP_OFF = 0x900000

S_WAVE, S_MT, S_NT, S_ROT, S_NQ, S_XCC, S_T0, S_M3 = 44, 45, 46, 47, 48, 49, 50, 51
TMP0, TMP1, TMP2, TMP3 = 52, 53, 54, 55
S_M0W, S_M0X = 56, 57
S_EP = 58
S_SEL0, S_SEL1, S_SPIN, S_FAST = 60, 61, 62, 63
S_C = 64
S_STB = 66
S_CH = 92

DIAG = opt("diag", "")
def stamp(A, idx, force=False):
    if S1ST and not force and 3 <= idx <= 9: return
    if STAMPS or DIAG: A(f"s_memtime s[{S_STB+2*idx}:{S_STB+2*idx+1}]")

class VQ:
    def __init__(self): self.q = []
    def add(self, tag, n=1): self.q += [tag] * n
    def after(self, tag):
        idx = max(i for i, t in enumerate(self.q) if t == tag)
        return min(63, len(self.q) - 1 - idx)

def glu_sc(a, b, t):
    n = len(a); ops = []
    for i in range(n): ops.append(f"v_mul_f32 v{t[i]}, s{S_C}, v{b[i]}")
    for i in range(n): ops.append(f"v_exp_f32 v{t[i]}, v{t[i]}")
    for i in range(n): ops.append(f"v_add_f32 v{t[i]}, 1.0, v{t[i]}")
    for i in range(n): ops.append(f"v_rcp_f32 v{t[i]}, v{t[i]}")
    for i in range(n): ops.append(f"v_mul_f32 v{t[i]}, v{a[i]}, v{t[i]}")
    return ops
def glu_pk(a, b, t):
    n = len(a); ops = []
    for i in range(0, n, 2):
        assert b[i] % 2 == 0 and b[i+1] == b[i] + 1 and t[i] % 2 == 0 and a[i+1] == a[i] + 1 and a[i] % 2 == 0
        ops.append(f"v_pk_mul_f32 v[{t[i]}:{t[i]+1}], v[{b[i]}:{b[i]+1}], s[{S_C}:{S_C+1}]")
    for i in range(n): ops.append(f"v_exp_f32 v{t[i]}, v{t[i]}")
    for i in range(0, n, 2): ops.append(f"v_pk_add_f32 v[{t[i]}:{t[i]+1}], v[{t[i]}:{t[i]+1}], 1.0 op_sel_hi:[1,0]")
    for i in range(n): ops.append(f"v_rcp_f32 v{t[i]}, v{t[i]}")
    for i in range(0, n, 2): ops.append(f"v_pk_mul_f32 v[{t[i]}:{t[i]+1}], v[{a[i]}:{a[i]+1}], v[{t[i]}:{t[i]+1}]")
    return ops
def glu(pk, a, b, t, out):
    ops = (glu_pk if pk else glu_sc)(a, b, t)
    for i in range(len(a) // 2): ops.append(f"v_cvt_pk_bf16_f32 v{out[i]}, v{t[2*i]}, v{t[2*i+1]}")
    return ops

VX, VS, VW = 10, 14, 15
VXA, VWA = 18, 24
VW2, VDBG, VW2B = 27, 28, 29
ACC, XF, WF, TT, RRT = 32, 104, 176, 192, 224
DUM = 224

def chunk_regs(A, c):
    if ROT == "hyb" and c >= 2:
        A(f"s_lshl_b32 s{TMP1}, s{S_CH + c - 2}, 17")
        A(f"s_lshl_b32 s{TMP0}, s{S_CH + c - 2}, 7")
        return
    A(f"s_add_u32 s{TMP0}, s{S_ROT}, {c}")
    A(f"s_and_b32 s{TMP0}, s{TMP0}, 7")
    A(f"s_lshl_b32 s{TMP1}, s{TMP0}, 17")
    A(f"s_lshl_b32 s{TMP0}, s{TMP0}, 7")

def dma_stage(A, Q, c, mh):
    base = R[c % 3]
    chunk_regs(A, c)
    A(f"s_add_u32 s{TMP2}, s{TMP1}, 1024")
    if mh != 0:
        A(f"s_cmp_eq_u32 s{S_WAVE}, 7")
        A(f"s_cbranch_scc0 L_noS_{c}")
        A(f"s_mov_b32 m0, {base + XOFF + 32*1024}")
        A("s_nop 0")
        A(f"buffer_load_dwordx4 v{VS}, s[20:23], s{TMP0} offen{XNT} lds")
        A.label(f"L_noS_{c}")
    ops = []
    for part in range(2):
        ops.append((f"s_add_u32 m0, s{S_M0W}, {base + part*8192}", f"buffer_load_dwordx4 v{VW}, s[24:27], s{TMP1+part} offen lds"))
    for q in range(4):
        ops.append((f"s_add_u32 m0, s{S_M0X}, {base + q*1024}", f"buffer_load_dwordx4 v{VX+q}, s[20:23], s{TMP0} offen{XNT} lds"))
    if mh == 1: ops = ops[2:] + ops[:2]
    for m, l in ops:
        A(m); A("s_nop 0"); A(l)
    Q.add(f"st{c}", 6)

def w2_dma2(A, steps, vlo, vhi, dlo, dhi, sa=TMP0):
    for s_ in steps:
        A(f"s_add_u32 s{sa}, s{S_NT}, {s_}")
        A(f"s_and_b32 s{sa}, s{sa}, 7")
        A(f"s_lshl_b32 s{sa}, s{sa}, 16")
        A(f"s_add_u32 s{sa+1}, s{sa}, 128")
        for v, d in ((vlo, dlo), (vhi, dhi)):
            for part in range(2):
                A(f"s_add_u32 m0, s{S_M0W}, {W2POS[s_] + part*8192 + d}")
                A("s_nop 0")
                A(f"buffer_load_dwordx4 v{v}, s[40:43], s{sa+part} offen lds")

def prologue(A, Q):
    A("s_cmp_ge_u32 s2, 256")
    A("s_cbranch_scc1 L_end")
    stamp(A, 0)
    if STAMPS or DIAG: A("s_memrealtime s[98:99]")
    A("s_load_dwordx8 s[4:11], s[0:1], 0")
    A("s_load_dwordx4 s[12:15], s[0:1], 32")
    A("s_load_dwordx2 s[16:17], s[0:1], 48")
    if CTOUCH:
        A("s_getpc_b64 s[18:19]")
        A.label("L_pc")
        A("v_lshlrev_b32 v5, 6, v0")
        A("v_and_b32 v6, 1, v0")
        A("v_lshl_or_b32 v6, v6, 20, v5")
        A("v_cmp_gt_u32 vcc, L_code_end-L_pc, v6")
        A("s_and_saveexec_b64 s[90:91], vcc")
        A("s_cbranch_execz L_noct")
        A("global_load_dword v2, v5, s[18:19]")
        A.label("L_noct")
        A("s_mov_b64 exec, -1")
    A("v_lshrrev_b32 v7, 6, v0")
    A("v_and_b32 v1, 63, v0")
    A(f"v_readfirstlane_b32 s{S_WAVE}, v7")
    A(f"s_and_b32 s{S_ROT}, s2, 7")
    A(f"s_lshr_b32 s{TMP1}, s2, 3")
    A(f"s_lshr_b32 s{S_M3}, s{TMP1}, 3")
    A(f"s_lshl_b32 s{S_MT}, s{S_ROT}, 2")
    A(f"s_add_u32 s{S_MT}, s{S_MT}, s{S_M3}")
    A(f"s_and_b32 s{S_NT}, s{TMP1}, 7")
    if ROT == "halfm":
        A(f"s_and_b32 s{S_ROT}, s{S_NT}, 6")
        A(f"s_add_u32 s{S_ROT}, s{S_ROT}, s{S_M3}")
    A(f"s_and_b32 s{S_T0}, s{S_MT}, 15")
    A(f"s_mul_i32 s{S_T0}, s{S_T0}, 250")
    A(f"s_sub_i32 s{S_T0}, s{S_T0}, 7")
    A(f"s_lshl_b32 s{S_M0W}, s{S_WAVE}, 10")
    A(f"s_lshl_b32 s{S_M0X}, s{S_WAVE}, 12")
    A(f"s_add_u32 s{S_M0X}, s{S_M0X}, {XOFF}")
    A("v_lshrrev_b32 v5, 3, v1")
    A("v_and_b32 v6, 7, v1")
    A("v_lshrrev_b32 v21, 1, v5")
    A("v_and_b32 v22, 1, v21")
    A("v_lshlrev_b32 v22, 2, v22")
    A(f"s_and_b32 s{TMP0}, s{S_WAVE}, 1")
    A(f"s_lshl_b32 s{TMP0}, s{TMP0}, 1")
    A(f"v_or_b32 v22, s{TMP0}, v22")
    A("v_xor_b32 v22, v22, v6")
    A("v_lshlrev_b32 v22, 4, v22")
    A(f"v_lshl_add_u32 v{VW}, v5, 11, v22")
    A(f"v_lshl_add_u32 v{VW2}, v5, 10, v22")
    A(f"s_lshl_b32 s{TMP0}, s{S_WAVE}, 14")
    A(f"s_lshl_b32 s{TMP1}, s{S_NT}, 7")
    A(f"s_add_u32 s{TMP0}, s{TMP0}, s{TMP1}")
    A(f"v_add_u32 v{VW}, s{TMP0}, v{VW}")
    A("v_lshrrev_b32 v7, 2, v5")
    A("v_and_b32 v8, 3, v5")
    A("v_lshl_add_u32 v7, v7, 3, v8")
    A(f"s_lshl_b32 s{TMP0}, s{S_WAVE}, 5")
    A(f"s_add_i32 s{TMP0}, s{TMP0}, s{S_T0}")
    A(f"v_add_u32 v7, s{TMP0}, v7")
    A("v_xor_b32 v8, v21, v6")
    A("v_lshlrev_b32 v8, 4, v8")
    A("v_xor_b32 v9, 64, v8")
    A("v_mov_b32 v20, 0x80000000")
    A(f"v_lshl_add_u32 v{VX}, v7, 10, v8")
    A(f"v_lshl_add_u32 v{VX+1}, v7, 10, v9")
    A(f"v_add_u32 v{VX+2}, 0x1000, v{VX}")
    A(f"v_add_u32 v{VX+3}, 0x5000, v{VX+1}")
    A(f"v_add_u32 v{VX+1}, 0x4000, v{VX+1}")
    A("v_cmp_gt_i32 vcc, 0, v7")
    A("v_cmp_gt_i32 s[90:91], -4, v7")
    A(f"s_add_i32 s{TMP0}, s{S_T0}, 256")
    A(f"v_add_u32 v21, s{TMP0}, v5")
    A(f"v_cndmask_b32 v{VX}, v{VX}, v20, vcc")
    A(f"v_cndmask_b32 v{VX+2}, v{VX+2}, v20, s[90:91]")
    A(f"v_lshl_add_u32 v{VS}, v21, 10, v8")
    A(f"s_lshr_b32 s{TMP0}, s{S_MT}, 4")
    A(f"s_mul_i32 s{TMP0}, s{TMP0}, 4096000")
    A("s_mov_b32 s22, 4096000"); A("s_mov_b32 s23, 0x20000")
    A("s_mov_b32 s26, 1048576"); A("s_mov_b32 s27, 0x20000")
    A("s_waitcnt lgkmcnt(0)")
    A(f"s_add_u32 s20, s4, s{TMP0}"); A("s_addc_u32 s21, s5, 0")
    A("s_mov_b32 s24, s6"); A("s_mov_b32 s25, s7")
    stamp(A, 1)
    dma_stage(A, Q, 0, None)
    A("s_mov_b32 s28, s8"); A("s_mov_b32 s29, s9"); A("s_mov_b32 s30, 15360"); A("s_mov_b32 s31, 0x20000")
    A("v_lshrrev_b32 v21, 3, v0")
    A("v_subrev_u32 v22, 7, v21")
    A("v_lshlrev_b32 v23, 10, v22")
    A("v_lshl_add_u32 v23, v6, 4, v23")
    A(f"s_lshl_b32 s{TMP3}, s{S_NT}, 7")
    A(f"v_add_u32 v23, s{TMP3}, v23")
    A("v_cmp_gt_i32 vcc, 0, v22")
    A("v_mul_u32_u24 v16, 144, v21")
    A("v_lshl_add_u32 v16, v6, 4, v16")
    A("v_cndmask_b32 v23, v23, v20, vcc")
    A(f"v_add_u32 v16, {DW_OFF}, v16")
    if PFA:
        A(f"s_mul_i32 s{TMP0}, s{S_NT}, 33")
        A(f"s_add_i32 s{TMP0}, s{TMP0}, s{S_T0}")
        A(f"v_add_u32 v21, s{TMP0}, v1")
        A(f"v_lshlrev_b32 v17, 10, v21")
        A("v_cmp_gt_i32 vcc, 0, v21")
        A("v_lshrrev_b32 v22, 1, v1")
        A("v_lshlrev_b32 v22, 11, v22")
        A(f"v_cndmask_b32 v17, v17, v20, vcc")
        A("v_and_b32 v21, 1, v1")
        A(f"v_lshl_add_u32 v22, v21, 10, v22")
        A(f"s_lshl_b32 s{TMP0}, s{S_M3}, 15")
        A(f"s_add_u32 s{TMP0}, s{TMP0}, s{TMP3}")
        A(f"v_add_u32 v22, s{TMP0}, v22")
        A(f"s_add_u32 s{TMP0}, s{S_ROT}, s{S_WAVE}")
        A(f"s_and_b32 s{TMP0}, s{TMP0}, 7")
        A(f"s_lshl_b32 s{TMP1}, s{TMP0}, 17")
        A(f"s_lshl_b32 s{TMP0}, s{TMP0}, 7")
    A("s_barrier")
    if PFA:
        A(f"s_cmp_lt_u32 s{S_WAVE}, {PFA}")
        A("s_cbranch_scc1 L_nopfa")
        A("s_mov_b64 exec, 0xffffffff")
        A(f"buffer_load_dword v2, v22, s[24:27], s{TMP1} offen")
        A("s_mov_b32 exec_hi, 1")
        A(f"buffer_load_dword v2, v17, s[20:23], s{TMP0} offen{XNT}")
        A("s_mov_b64 exec, -1")
        A.label("L_nopfa")
        if PFB: A("s_barrier")
    A(f"s_cmp_lt_u32 s{S_WAVE}, 4")
    A("s_cbranch_scc0 L_nodw")
    A(f"buffer_load_dwordx4 {vr(DUM)}, v23, s[28:31], 0 offen")
    A.label("L_nodw")
    dma_stage(A, Q, 1, None)
    A("s_mov_b32 s36, s16"); A("s_mov_b32 s37, s17"); A("s_mov_b32 s38, 0x1000000"); A("s_mov_b32 s39, 0x20000")
    A("s_mov_b32 s40, s10"); A("s_mov_b32 s41, s11"); A("s_mov_b32 s42, 524288"); A("s_mov_b32 s43, 0x20000")
    A(f"s_mul_i32 s{TMP0}, s{S_MT}, 256000")
    A(f"s_add_u32 s32, s12, s{TMP0}"); A("s_addc_u32 s33, s13, 0"); A("s_mov_b32 s34, 256000"); A("s_mov_b32 s35, 0x20000")
    A(f"s_and_b32 s{S_NQ}, s{S_WAVE}, 3")
    A("v_and_b32 v3, 15, v1")
    A("v_lshrrev_b32 v4, 4, v1")
    if ROT == "hyb":
        A(f"s_lshl_b32 s{TMP0}, s{S_M3}, 1")
        A(f"s_add_u32 s{TMP0}, s{TMP0}, s{S_NT}")
        for _ in range(2):
            A(f"s_sub_u32 s{TMP1}, s{TMP0}, 6")
            A(f"s_cmp_ge_u32 s{TMP0}, 6")
            A(f"s_cselect_b32 s{TMP0}, s{TMP1}, s{TMP0}")
        for k in range(6):
            A(f"s_add_u32 s{TMP1}, s{TMP0}, {k}")
            A(f"s_sub_u32 s{TMP2}, s{TMP1}, 6")
            A(f"s_cmp_ge_u32 s{TMP1}, 6")
            A(f"s_cselect_b32 s{TMP1}, s{TMP2}, s{TMP1}")
            A(f"s_add_u32 s{TMP1}, s{TMP1}, s{S_ROT}")
            A(f"s_add_u32 s{TMP1}, s{TMP1}, 2")
            A(f"s_and_b32 s{S_CH + k}, s{TMP1}, 7")
    A(f"s_lshl_b32 s{TMP0}, s{S_MT}, 3")
    A(f"v_mov_b32 v{VDBG}, s{TMP0}")
    A(f"s_getreg_b32 s{S_XCC}, hwreg(HW_REG_XCC_ID, 0, 4)")
    A(f"s_and_b32 s{S_XCC}, s{S_XCC}, 7")
    A(f"s_lshl_b32 s{S_XCC}, s{S_XCC}, 2")
    A(f"s_cmp_eq_u32 s{S_WAVE}, 5")
    A("s_cbranch_scc0 L_nohello")
    A(f"s_lshl_b32 s{TMP0}, 1, s{S_XCC}")
    A(f"v_mov_b32 v21, s{TMP0}")
    A("s_mov_b64 exec, 1")
    A(f"global_atomic_add v{VDBG}, v21, s[14:15] offset:4 sc1")
    A(f"s_cmp_eq_u32 s{S_NT}, 0")
    A("s_cbranch_scc0 L_noep")
    A(f"s_memrealtime s[{S_EP}:{S_EP+1}]")
    A("s_waitcnt lgkmcnt(0)")
    A(f"s_lshr_b64 s[{S_EP}:{S_EP+1}], s[{S_EP}:{S_EP+1}], 6")
    A(f"s_or_b32 s{S_EP}, s{S_EP}, 0x80000000")
    A(f"v_mov_b32 v21, s{S_EP}")
    A(f"global_store_dword v{VDBG}, v21, s[14:15] sc1")
    A.label("L_noep")
    A("s_mov_b64 exec, -1")
    A.label("L_nohello")
    A(f"s_lshl_b32 s{TMP0}, s{S_WAVE}, 13")
    A(f"s_and_b32 s{TMP1}, s{S_NT}, 3")
    A(f"s_lshl_b32 s{TMP1}, s{TMP1}, 8")
    A(f"s_add_u32 s{TMP0}, s{TMP0}, s{TMP1}")
    A(f"v_add_u32 v{VW2}, s{TMP0}, v{VW2}")
    A(f"v_xor_b32 v{VW2B}, 0x8000, v{VW2}")
    A(f"s_mov_b32 s{S_SEL0}, 0x05040100")
    A(f"s_mov_b32 s{S_SEL1}, 0x07060302")
    A(f"s_mov_b32 s{S_C}, 0x{NEG_LOG2E:x}")
    A(f"s_mov_b32 s{S_C+1}, 0x{NEG_LOG2E:x}")
    A("v_lshrrev_b32 v5, 3, v3")
    A("v_and_b32 v6, 7, v3")
    A("v_lshlrev_b32 v5, 10, v5")
    A("v_lshl_add_u32 v5, v6, 7, v5")
    A("v_lshrrev_b32 v6, 1, v3")
    A("v_xor_b32 v6, v6, v4")
    A("v_lshl_add_u32 v7, v6, 4, v5")
    A("v_xor_b32 v8, 64, v7")
    for sl in range(3):
        A(f"v_add_u32 v{VXA+sl*2}, {R[sl] + XOFF}, v7")
        A(f"v_add_u32 v{VXA+sl*2+1}, {R[sl] + XOFF}, v8")
    A("v_lshrrev_b32 v5, 2, v3")
    A("v_and_b32 v6, 3, v3")
    A("v_lshrrev_b32 v7, 1, v6")
    A(f"s_lshl_b32 s{TMP0}, s{S_NQ}, 1")
    A(f"v_or_b32 v7, s{TMP0}, v7")
    A("v_lshrrev_b32 v8, 1, v5")
    A("v_lshlrev_b32 v8, 2, v8")
    A("v_and_b32 v9, 1, v4")
    A("v_lshl_or_b32 v8, v9, 1, v8")
    A("v_xor_b32 v7, v7, v8")
    A("v_lshlrev_b32 v7, 4, v7")
    A("v_lshl_add_u32 v7, v5, 7, v7")
    A("v_lshl_add_u32 v7, v4, 10, v7")
    A("v_and_b32 v6, 1, v6")
    A("v_lshl_add_u32 v7, v6, 3, v7")
    for sl in range(3):
        A(f"v_add_u32 v{VWA+sl}, {R[sl]}, v7")
    A("v_lshlrev_b32 v5, 3, v4")
    A("v_sub_u32 v5, v5, v3")
    A("v_add_u32 v5, 7, v5")
    A("v_cmp_lt_u32 vcc, 21, v5")
    A("v_mov_b32 v6, 22")
    A(f"s_lshl_b32 s{TMP0}, s{S_WAVE}, 4")
    A("v_cndmask_b32 v5, v5, v6, vcc")
    A("v_mul_u32_u24 v5, 144, v5")
    A(f"s_add_u32 s{TMP0}, s{TMP0}, {DW_OFF}")
    A(f"v_add_u32 v9, s{TMP0}, v5")
    A(f"s_cmp_ge_u32 s{S_WAVE}, 4")
    A("s_cbranch_scc1 L_path1")

def path(A, mh, Q0):
    NT = 9 if mh == 0 else 8
    Q = VQ(); Q.q = list(Q0.q)
    A(f"s_waitcnt vmcnt({Q.after('st0')})")
    if mh == 0:
        A(f"ds_write_b128 v16, {vr(DUM)}")
        A("s_waitcnt lgkmcnt(0)")
    A("s_barrier")
    stamp(A, 2)
    def reads(j):
        c, ks = j >> 1, j & 1
        sl, buf = c % 3, j & 1
        Rr = []
        for part in range(2):
            for h in range(2):
                d = WF + buf * 8 + part * 4 + h * 2
                Rr.append(f"ds_read_b64_tr_b16 v[{d}:{d+1}], v{VWA+sl} offset:{part*8192 + ks*4096 + h*512}")
        for tt in range(NT):
            tile = (mh * 8 + tt) if tt < 8 else 16
            d = XF + buf * 36 + tt * 4
            Rr.append(f"ds_read_b128 {vr(d)}, v{VXA+sl*2+ks} offset:{tile*2048}")
        return Rr
    def tail_loads():
        A(f"global_load_dwordx2 v[30:31], v{VDBG}, s[14:15] sc1")
        Q.add("misc", 1)
        if mh == 0:
            w2_dma2(A, [0], VW2, VW2B, 0, 4096)
            Q.add("w2", 4)
            A(f"s_cmp_lt_u32 s{S_NQ}, 2")
            A("s_cbranch_scc0 L_nopf_W2all")
            A(f"s_lshr_b32 s{TMP0}, s2, 3")
            A(f"s_lshl_b32 s{TMP0}, s{TMP0}, 1")
            A(f"s_add_u32 s{TMP0}, s{TMP0}, s{S_NQ}")
            A(f"s_lshl_b32 s{TMP0}, s{TMP0}, 13")
            A("v_lshlrev_b32 v5, 7, v1")
            A(f"buffer_load_dword v2, v5, s[40:43], s{TMP0} offen")
            A.label("L_nopf_W2all")
            if PRE:
                A(f"s_lshl_b32 s{TMP2}, s{S_NT}, 3")
                A(f"s_add_u32 s{TMP2}, s{TMP2}, s{S_WAVE}")
                A(f"s_lshl_b32 s{TMP2}, s{TMP2}, 9")
                A(f"s_lshl_b32 s{TMP3}, s{S_MT}, 18")
                A(f"s_add_u32 s{TMP2}, s{TMP2}, s{TMP3}")
                A("v_lshrrev_b32 v5, 2, v1")
                A("v_and_b32 v5, 7, v5")
                A("v_lshlrev_b32 v5, 15, v5")
                A("v_and_b32 v6, 3, v1")
                A("v_lshl_add_u32 v5, v6, 7, v5")
                A("v_lshrrev_b32 v6, 5, v1")
                A("v_lshl_add_u32 v5, v6, 11, v5")
                A(f"buffer_load_dword v2, v5, s[36:39], s{TMP2} offen{PTF}")
                A(f"s_mov_b64 exec, 15")
                A(f"s_lshl_b32 s{TMP2}, s{S_MT}, 9")
                A(f"s_add_u32 s{TMP2}, s{TMP2}, {FLAG_OFF}")
                A(f"buffer_load_dword v2, v5, s[36:39], s{TMP2} offen{PTF}")
                A(f"s_mov_b64 exec, -1")
                Q.add("misc", 2)
    for r in reads(0): A(r)
    if mh == 1: dma_stage(A, Q, 2, mh)
    extra = []
    for j in range(16):
        buf = j & 1
        cn = (j + 1) >> 1
        boundary = (j & 1) == 1 and j < 15 and not (mh == 0 and j == 13)
        if boundary:
            A(f"s_waitcnt vmcnt({Q.after(f'st{cn}')}) lgkmcnt(0)")
            A("s_barrier")
            if S1ST: stamp(A, 2 + cn, True)
            if cn == 6:
                if mh == 1:
                    A("s_setprio 3")
                    tail_loads()
                else:
                    tail_loads()
                    A(f"s_waitcnt vmcnt({Q.after('st7')})")
                    A("s_barrier")
                    if S1ST: stamp(A, 9, True)
                    A("s_setprio 1")
        stg = None
        if mh == 0 and (j & 1) == 1 and j < 15: stg = cn + 2
        if mh == 1 and (j & 1) == 0 and j >= 2 and j != 10: stg = (j >> 1) + 2
        if mh == 1 and j == 9: stg = 7
        if stg is not None and stg < 8: dma_stage(A, Q, stg, mh)
        Rn = reads(j + 1) if j < 15 else []
        if j == 2:
            Rn = [f"ds_read_b128 {vr(RRT + 4*e)}, v9 offset:{e*144}" for e in range(8)] + Rn
        if j == 3:
            extra = [f"v_perm_b32 v{TT + 4*jj + d}, v{RRT + 4*(2*d+1) + (jj>>1)}, v{RRT + 4*(2*d) + (jj>>1)}, s{S_SEL0 + (jj&1)}" for jj in range(8) for d in range(4)]
        issued = 0
        for tt in range(NT):
            for part in range(2):
                if part == 0 and not boundary:
                    A(f"s_waitcnt lgkmcnt({min(15, (NT - 1 - tt) + issued)})")
                a = ACC + (tt * 2 + part) * 4
                cin = "0" if j == 0 else vr(a)
                A(f"v_mfma_f32_16x16x32_bf16 {vr(a)}, {vr(XF + buf*36 + tt*4)}, {vr(WF + buf*8 + part*4)}, {cin}")
                k = 2 if (j == 2 and issued < 10) else 1
                for _ in range(k):
                    if issued < len(Rn):
                        A(Rn[issued]); issued += 1
                    elif extra:
                        A(extra.pop(0))
        assert issued == len(Rn)
        if j == 0 and mh == 0: dma_stage(A, Q, 2, mh)
    assert not extra
    A("s_setprio 0")
    stamp(A, 3)
    pk = (mh == 0)
    A(f"s_lshl_b32 s{TMP0}, s{S_NQ}, 4")
    A(f"v_add_u32 v5, s{TMP0}, v3")
    A(f"v_mul_u32_u24 v5, {HT_STRIDE}, v5")
    A(f"v_add_u32 v5, {HT_OFF}, v5")
    A("v_lshl_add_u32 v6, v4, 4, v5")
    A("v_lshl_add_u32 v7, v4, 3, v5")
    A("s_nop 1")
    T0 = XF
    for p in range(4):
        a = [ACC + ((2*p + o) * 2 + 0) * 4 + r for o in range(2) for r in range(4)]
        b = [ACC + ((2*p + o) * 2 + 1) * 4 + r for o in range(2) for r in range(4)]
        O = T0 + 8 + 4 * (p & 1)
        for op in glu(pk, a, b, [T0 + i for i in range(8)], [O + i for i in range(4)]): A(op)
        A(f"ds_write_b128 v6, {vr(O)} offset:{(4*mh + p) * 64}")
    if mh == 0:
        a = [ACC + 16 * 4 + r for r in range(4)]
        b = [ACC + 17 * 4 + r for r in range(4)]
        O = T0 + 16
        A("v_cmp_gt_u32 vcc, 2, v4")
        for op in glu(pk, a, b, [T0 + i for i in range(4)], [O, O + 1]): A(op)
        A(f"v_cndmask_b32 v{O}, 0, v{O}, vcc")
        A(f"v_cndmask_b32 v{O+1}, 0, v{O+1}, vcc")
        A(f"ds_write_b64 v7, v[{O}:{O+1}] offset:512")
        A(f"s_waitcnt vmcnt({Q.after('w2')})")

def epilogue1(A):
    A(f"s_mul_i32 s{TMP0}, s{S_WAVE}, {8*HT_STRIDE}")
    A(f"s_add_u32 s{TMP0}, s{TMP0}, {HT_OFF}")
    A("v_lshlrev_b32 v5, 5, v3")
    A("v_lshl_add_u32 v5, v4, 4, v5")
    A(f"v_add_u32 v5, s{TMP0}, v5")
    A(f"s_lshl_b32 s{TMP2}, s{S_NT}, 3")
    A(f"s_add_u32 s{TMP2}, s{TMP2}, s{S_WAVE}")
    A(f"s_lshl_b32 s{TMP1}, s{TMP2}, 3")
    A(f"v_mov_b32 v11, s{TMP1}")
    A(f"s_lshl_b32 s{TMP2}, s{TMP2}, 9")
    A(f"s_lshl_b32 s{TMP3}, s{S_MT}, 18")
    A(f"s_add_u32 s{TMP2}, s{TMP2}, s{TMP3}")
    A("v_lshlrev_b32 v6, 16, v4")
    A("v_lshl_add_u32 v6, v3, 4, v6")
    A("v_add_u32 v7, 0x8000, v6")
    A(f"s_lshl_b32 s{TMP3}, s{S_MT}, 9")
    A(f"s_add_u32 s{TMP3}, s{TMP3}, {FLAG_OFF}")
    A("s_waitcnt lgkmcnt(0)")
    A("s_barrier")
    stamp(A, 4)
    HA, Y, T0, O0 = 32, 64, 96, 160
    for j in range(8):
        A(f"ds_read_b128 {vr(HA + 4*j)}, v5 offset:{j*HT_STRIDE}")
    for j in range(8):
        A(f"s_waitcnt lgkmcnt({7-j})")
        A(f"v_mfma_f32_16x16x32_bf16 {vr(Y + 4*j)}, {vr(HA + 4*j)}, {vr(TT + 4*j)}, 0")
    A("s_waitcnt vmcnt(0)")
    if DRST: stamp(A, 2)
    A(f"v_readfirstlane_b32 s{S_EP}, v30")
    A(f"v_readfirstlane_b32 s{S_FAST}, v31")
    A(f"s_lshl_b32 s{TMP0}, 8, s{S_XCC}")
    A(f"s_cmp_eq_u32 s{S_FAST}, s{TMP0}")
    A(f"s_cselect_b32 s{S_FAST}, {1 if FAST else 0}, 0")
    A("s_nop 2")
    for half in range(2):
        y = [Y + 4*j + 2*half + rr for j in range(8) for rr in range(2)]
        t = [T0 + 16*half + i for i in range(16)]
        for op in glu_pk(y, y, t): A(op)
        for rr in range(2):
            for i in range(4):
                A(f"v_cvt_pk_bf16_f32 v{O0 + 4*(2*half+rr) + i}, v{t[2*(2*i) + rr]}, v{t[2*(2*i+1) + rr]}")
    A(f"s_cmp_lg_u32 s{S_EP}, 0")
    A(f"s_cselect_b32 s{S_FAST}, s{S_FAST}, 0")
    A(f"s_not_b32 s{S_EP+1}, s{S_EP}")
    A(f"v_mov_b32 v16, s{S_EP}")
    A(f"v_mov_b32 v17, s{S_EP+1}")
    A(f"s_cmp_eq_u32 s{S_FAST}, 1")
    A("s_cbranch_scc0 L_slow")
    for r in range(4):
        A(f"buffer_store_dwordx4 {vr(O0 + 4*r)}, v{6 + (r>>1)}, s[36:39], s{TMP2} offen offset:{(r&1)*256}{SST}")
    stamp(A, 5)
    A(f"s_cmp_ge_u32 s{S_WAVE}, 4")
    A("s_cbranch_scc0 L_Afast")
    A("s_mov_b64 exec, 1")
    A("s_waitcnt vmcnt(0)")
    if DRST: stamp(A, 1)
    A(f"buffer_store_dwordx2 v[16:17], v11, s[36:39], s{TMP3} offen")
    A("s_mov_b64 exec, -1")
    A.label("L_Btail")
    A("s_barrier")
    stamp(A, 6)
    w2_dma2(A, range(NPRE + 1, 8), VW2, VW2B, 0, -4096)
    A("s_waitcnt vmcnt(0)")
    A("s_barrier")
    if STAMPS:
        A("s_waitcnt lgkmcnt(0)")
        A(f"s_cmp_eq_u32 s{S_WAVE}, 4")
        A("s_cbranch_scc0 L_end")
        A("s_mov_b64 exec, 1")
        A(f"s_mul_i32 s{TMP0}, s2, {8*8}")
        A(f"s_add_u32 s{TMP0}, s{TMP0}, {STAMP_OFF + 0x40000}")
        A(f"v_mov_b32 v3, s{TMP0}")
        for j in range(7):
            A(f"v_mov_b32 v4, s{S_STB+2*j}"); A(f"v_mov_b32 v5, s{S_STB+2*j+1}")
            A(f"buffer_store_dwordx2 v[4:5], v3, s[36:39], 0 offen offset:{8*j}")
            A("s_nop 1")
    A("s_endpgm")
    A.label("L_Afast")
    w2_dma2(A, range(1, NPRE + 1), VW2, VW2B, 0, 4096)
    A("s_mov_b64 exec, 1")
    A(f"s_waitcnt vmcnt({4*NPRE})")
    if DRST: stamp(A, 1)
    A(f"buffer_store_dwordx2 v[16:17], v11, s[36:39], s{TMP3} offen")
    A("s_mov_b64 exec, -1")
    A.label("L_Ajoin")

def slow_path(A):
    O0 = 160
    A.label("L_slow")
    for r in range(4):
        A(f"buffer_store_dwordx4 {vr(O0 + 4*r)}, v{6 + (r>>1)}, s[36:39], s{TMP2} offen offset:{(r&1)*256} sc1")
    A(f"s_mov_b32 s{S_SPIN}, 0")
    A.label("L_ep_chk")
    A(f"s_cmp_lg_u32 s{S_EP}, 0")
    A("s_cbranch_scc1 L_ep_ok")
    A(f"global_load_dwordx2 v[30:31], v{VDBG}, s[14:15] sc1")
    A(f"s_add_u32 s{S_SPIN}, s{S_SPIN}, 1")
    A("s_waitcnt vmcnt(0)")
    A(f"v_readfirstlane_b32 s{S_EP}, v30")
    A(f"s_cmp_lt_u32 s{S_SPIN}, 0x40000")
    A("s_cbranch_scc1 L_ep_chk")
    A.label("L_ep_ok")
    A(f"s_not_b32 s{S_EP+1}, s{S_EP}")
    A(f"v_mov_b32 v16, s{S_EP}")
    A(f"v_mov_b32 v17, s{S_EP+1}")
    A("s_mov_b64 exec, 1")
    A("s_waitcnt vmcnt(0)")
    A(f"buffer_store_dwordx2 v[16:17], v11, s[36:39], s{TMP3} offen sc1")
    A("s_mov_b64 exec, -1")
    A(f"s_cmp_ge_u32 s{S_WAVE}, 4")
    A("s_cbranch_scc1 L_Btail")
    w2_dma2(A, range(1, NPRE + 1), VW2, VW2B, 0, 4096)
    A("s_waitcnt vmcnt(0)")
    A("s_branch L_Ajoin")

def phase2(A):
    SF, ACC2, WF2 = 128, 64, 32
    S_FL = TMP2
    A(f"s_mov_b32 s{S_FL}, s{TMP3}")
    A(f"s_lshr_b32 s{TMP0}, s{S_NT}, 2")
    A(f"s_lshl_b32 s{TMP0}, s{TMP0}, 2")
    A(f"s_add_u32 s{TMP0}, s{TMP0}, s{S_WAVE}")
    A(f"s_lshl_b32 s{TMP3}, s{TMP0}, 15")
    A(f"s_lshl_b32 s{TMP1}, s{S_MT}, 18")
    A(f"s_add_u32 s{TMP1}, s{TMP1}, s{TMP3}")
    A("v_lshlrev_b32 v12, 4, v1")
    A(f"v_add_u32 v12, s{TMP1}, v12")
    A("v_lshrrev_b32 v5, 2, v3")
    A("v_and_b32 v6, 3, v3")
    A("v_lshrrev_b32 v7, 1, v6")
    A("v_and_b32 v8, 1, v4")
    A("v_lshl_or_b32 v7, v8, 1, v7")
    A("v_lshrrev_b32 v8, 1, v5")
    A("v_lshlrev_b32 v8, 2, v8")
    A("v_lshrrev_b32 v9, 1, v4")
    A("v_lshl_or_b32 v8, v9, 1, v8")
    A("v_xor_b32 v7, v7, v8")
    A("v_lshlrev_b32 v7, 4, v7")
    A("v_lshl_add_u32 v7, v5, 7, v7")
    A("v_lshl_add_u32 v7, v9, 10, v7")
    A("v_and_b32 v6, 1, v6")
    A("v_lshl_add_u32 v22, v6, 3, v7")
    A("v_xor_b32 v23, 64, v22")
    for wdw in (1, 2):
        A(f"v_add_u32 v{22+2*wdw}, {wdw*0x10000}, v22")
        A(f"v_add_u32 v{23+2*wdw}, {wdw*0x10000}, v23")
    for s_ in range(8):
        A(f"s_add_u32 s{TMP0}, s{S_NT}, {s_}")
        A(f"s_and_b32 s{TMP0}, s{TMP0}, 7")
        A(f"s_lshl_b32 s{20+s_}, s{TMP0}, 12")
    A(f"s_lshl_b32 s{TMP0}, s{S_NT}, 3")
    A(f"v_add_u32 v13, s{TMP0}, v1")
    A("v_and_b32 v13, 63, v13")
    A("v_lshlrev_b32 v13, 3, v13")
    A(f"s_mov_b32 s{S_SPIN}, 0")
    def reads(j):
        c, kq = j >> 2, j & 3
        buf = j & 1
        Rr = []
        for ct in range(4):
            part, ctp = ct >> 1, ct & 1
            for h in range(2):
                off = W2POS[c] + part * 8192 + kq * 2048 + h * 512
                base = 22 + ctp + 2 * (off >> 16)
                d = WF2 + buf * 16 + ct * 4 + h * 2
                Rr.append(f"ds_read_b64_tr_b16 v[{d}:{d+1}], v{base} offset:{off & 0xffff}")
        return Rr
    def sload(j):
        return f"buffer_load_dwordx4 {vr(SF + j*4)}, v12, s[36:39], s{20 + (j>>2)} offen offset:{(j&3)*1024} sc1"
    for r in reads(0): A(r)
    A("s_waitcnt vmcnt(1)")
    A("s_barrier")
    stamp(A, 6)
    for j in range(4): A(sload(j))
    A(f"buffer_load_dwordx2 v[20:21], v13, s[36:39], s{S_FL} offen sc1")
    S_MK = 28
    spins = []
    def check(k):
        reg = S_MK + (k >> 2)
        A(f"s_bfe_u32 s{TMP0}, s{reg}, {((k & 3) * 8) | (8 << 16)}")
        A(f"s_cmp_eq_u32 s{TMP0}, 0xff")
        A(f"s_cbranch_scc0 L_spin{k}")
        A.label(f"L_back{k}")
        spins.append(k)
    def step(j, vm, pre=None):
        buf = j & 1
        Rn = reads(j + 1) if j < 31 else []
        for ct in range(4):
            w = f"lgkmcnt({6 if j < 31 else 6 - 2*ct})"
            if ct == 0 and vm is not None: w = f"vmcnt({vm}) " + w
            A(f"s_waitcnt {w}")
            if j == 4 * (NPRE + 1) - 1 and ct == 0:
                A("s_barrier")
            a = ACC2 + ct * 16
            cin = "0" if j == 0 else vr(a, 16)
            A(f"v_mfma_f32_32x32x16_bf16 {vr(a,16)}, {vr(WF2 + buf*16 + ct*4)}, {vr(SF + j*4)}, {cin}")
            for r in Rn[2*ct:2*ct+2]: A(r)
            if pre: pre(ct)
    step(0, 4)
    A("s_waitcnt vmcnt(0)")
    A(f"v_cmp_eq_u64 s[{S_MK}:{S_MK+1}], s[{S_EP}:{S_EP+1}], v[20:21]")
    nissued = [4]
    def issue_upto(n):
        while nissued[0] < min(32, n):
            jj = nissued[0]
            if jj % 4 == 0: check(jj // 4)
            A(sload(jj)); nissued[0] += 1
    for j in range(1, 32):
        target = min(32, j + 1 + SAHEAD)
        vm = None if j < 4 else nissued[0] - 1 - j
        step(j, vm, lambda ct: issue_upto(min(target, nissued[0] + 2)))
        if j == 1: stamp(A, 7)
        if j == 4: stamp(A, 8)
    stamp(A, 9)
    A("v_and_b32 v5, 31, v1")
    A("v_lshrrev_b32 v6, 5, v1")
    A("v_and_b32 v7, 7, v5")
    A("v_xor_b32 v7, v7, v6")
    A("v_lshlrev_b32 v7, 4, v7")
    A("v_lshl_add_u32 v7, v5, 7, v7")
    A(f"s_lshl_b32 s{TMP0}, s{S_WAVE}, 12")
    A(f"s_add_u32 s{TMP0}, s{TMP0}, {OSTG}")
    A(f"v_add_u32 v7, s{TMP0}, v7")
    for x in (1, 2, 3): A(f"v_xor_b32 v{7+x}, {32*x}, v7")
    A("v_lshrrev_b32 v5, 3, v1")
    A("v_and_b32 v6, 7, v1")
    A("v_xor_b32 v11, v5, v6")
    A("v_lshlrev_b32 v11, 4, v11")
    A("v_lshl_add_u32 v11, v5, 7, v11")
    A(f"v_add_u32 v11, s{TMP0}, v11")
    A("v_lshlrev_b32 v12, 4, v6")
    A("v_lshl_add_u32 v12, v5, 10, v12")
    A(f"s_and_b32 s{TMP1}, s{S_NT}, 3")
    A(f"s_lshl_b32 s{TMP1}, s{TMP1}, 8")
    A(f"s_add_u32 s{TMP3}, s{TMP3}, s{TMP1}")
    P = 16
    for half in range(2):
        for ctp in range(2):
            for qq in range(2):
                a = ACC2 + (half * 2 + ctp) * 16 + qq * 8
                O = P + 4 * (ctp * 2 + qq)
                for i in range(4): A(f"v_cvt_pk_bf16_f32 v{O+i}, v{a+2*i}, v{a+2*i+1}")
                A("s_nop 1")
                A(f"v_permlane32_swap_b32 v{O}, v{O+2}")
                A(f"v_permlane32_swap_b32 v{O+1}, v{O+3}")
                A(f"ds_write_b128 v{7 + 2*ctp + qq}, {vr(O)}")
        A("s_waitcnt lgkmcnt(0)")
        for i in range(4): A(f"ds_read_b128 {vr(32 + 16*half + 4*i)}, v11 offset:{i*1024}")
        for i in range(4):
            A(f"s_waitcnt lgkmcnt({3-i})")
            A(f"s_add_u32 s{TMP0}, s{TMP3}, {i*8192 + half*128}")
            A(f"buffer_store_dwordx4 {vr(32 + 16*half + 4*i)}, v12, s[32:35], s{TMP0} offen{OST}")
    if STAMPS:
        ns = 12
        A("s_waitcnt vmcnt(0)")
        stamp(A, ns - 2)
        A(f"s_mov_b64 s[{S_STB+2*(ns-1)}:{S_STB+2*(ns-1)+1}], s[98:99]")
        A(f"s_memrealtime s[{S_EP}:{S_EP+1}]")
        A("s_waitcnt lgkmcnt(0)")
        A(f"s_cmp_eq_u32 s{S_WAVE}, 0")
        A("s_cbranch_scc0 L_end")
        A("s_mov_b64 exec, 1")
        A(f"s_mul_i32 s{TMP0}, s2, {8*(ns+1)}")
        A(f"s_add_u32 s{TMP0}, s{TMP0}, {STAMP_OFF}")
        A(f"v_mov_b32 v3, s{TMP0}")
        for j in range(ns):
            A(f"v_mov_b32 v4, s{S_STB+2*j}"); A(f"v_mov_b32 v5, s{S_STB+1+2*j}")
            A(f"buffer_store_dwordx2 v[4:5], v3, s[36:39], 0 offen offset:{8*j}")
            A("s_nop 1")
        A(f"v_mov_b32 v4, s{S_EP}"); A(f"v_mov_b32 v5, s{S_EP+1}")
        A(f"buffer_store_dwordx2 v[4:5], v3, s[36:39], 0 offen offset:{8*ns}")
    if DIAG:
        a, b, wg = [int(v) for v in DIAG.split(",")]
        A("s_waitcnt vmcnt(0)")
        stamp(A, 10)
        A("s_waitcnt lgkmcnt(0)")
        A(f"s_sub_u32 s{TMP0}, s{S_STB+2*b}, s{S_STB+2*a}")
        if wg >= 0:
            A(f"s_cmp_eq_u32 s2, {wg}")
            A(f"s_cselect_b32 s{TMP0}, s{TMP0}, 0")
        A(f"s_lshr_b32 s{TMP0}, s{TMP0}, 1")
        A(f"s_add_u32 s{TMP0}, s{TMP0}, 3000")
        A.label("L_diag")
        A("s_sleep 4")
        A(f"s_memrealtime s[{S_EP}:{S_EP+1}]")
        A("s_waitcnt lgkmcnt(0)")
        A(f"s_sub_u32 s{TMP1}, s{S_EP}, s98")
        A(f"s_cmp_lt_u32 s{TMP1}, s{TMP0}")
        A("s_cbranch_scc1 L_diag")
    A.label("L_end")
    A("s_endpgm")
    for k in spins:
        reg = S_MK + (k >> 2)
        A.label(f"L_spin{k}")
        A(f"buffer_load_dwordx2 v[20:21], v13, s[36:39], s{S_FL} offen sc1")
        A(f"s_add_u32 s{S_SPIN}, s{S_SPIN}, 1")
        A("s_waitcnt vmcnt(0)")
        A(f"v_cmp_eq_u64 s[{S_MK}:{S_MK+1}], s[{S_EP}:{S_EP+1}], v[20:21]")
        A(f"s_cmp_ge_u32 s{S_SPIN}, 0x40000")
        A(f"s_cbranch_scc1 L_back{k}")
        A(f"s_bfe_u32 s{TMP0}, s{reg}, {((k & 3) * 8) | (8 << 16)}")
        A(f"s_cmp_eq_u32 s{TMP0}, 0xff")
        A(f"s_cbranch_scc0 L_spin{k}")
        A(f"s_branch L_back{k}")

A = Asm()
A.raw(f"; @launch grid=(256,1,1) block=(512,1,1) lds={LDS_TOTAL}")
A.raw('.amdgcn_target "amdgcn-amd-amdhsa--gfx950"')
A.raw(".text")
A.raw(f".globl {KN}")
A.raw(".p2align 8")
A.raw(f".type {KN},@function")
A.label(KN)
Q = VQ()
prologue(A, Q)
path(A, 0, Q)
A("s_branch L_epi")
A.label("L_path1")
path(A, 1, Q)
A.label("L_epi")
epilogue1(A)
phase2(A)
slow_path(A)
A.label("L_code_end")
A.raw('.section .rodata,"a"')
A.raw(f""".p2align 6
.amdhsa_kernel {KN}
  .amdhsa_next_free_vgpr 256
  .amdhsa_next_free_sgpr 102
  .amdhsa_accum_offset 256
  .amdhsa_group_segment_fixed_size 0
  .amdhsa_kernarg_size 56
  .amdhsa_user_sgpr_count 2
  .amdhsa_user_sgpr_kernarg_segment_ptr 1
  .amdhsa_system_sgpr_workgroup_id_x 1
.end_amdhsa_kernel""")
open(OUT, "w").write("\n".join(A.L) + "\n")
```

```python
import sys

class Asm:
    def __init__(self): self.L = []
    def __call__(self, s): self.L.append("    " + s)
    def label(self, s): self.L.append(s + ":")
    def raw(self, s): self.L.append(s)

def vr(b, n=4): return f"v[{b}:{b+n-1}]"
OUT = sys.argv[1]
def opt(name, default):
    for a in sys.argv:
        if a.startswith("--" + name + "="): return a.split("=", 1)[1]
    return default
def pol(name, default):
    v = opt(name, default)
    return "" if v == "plain" else " " + v.replace("+", " ")
STAMPS = "--stamps" in sys.argv
S1ST = "--s1st" in sys.argv
DRST = "--drst" in sys.argv
XNT = pol("xnt", "nt")
SST = pol("sst", "nt")
OST = pol("ost", "nt")
PTF = pol("ptf", "plain")
ROT = opt("rot", "xcd")
FAST = opt("fast", "1") == "1"
PRE = opt("pre", "1") == "1"
CTOUCH = opt("ctouch", "1") == "1"
PFA = int(opt("pfa", "0"))
PFB = opt("pfb", "0") == "1"
SAHEAD = int(opt("sahead", "10"))
NPRE = int(opt("npre", "4"))
KN = "standalone__conformer_conv_module__speech_kernel"

NEG_LOG2E = 0xbfb8aa3b
STG = 49 * 1024
R = [0, STG, 2 * STG]
DW_OFF = 3 * STG
LDS_TOTAL = 163840
XOFF = 16384
HT_OFF = R[2]
HT_STRIDE = 560
W2POS = [R[2] + 36864, R[0], R[0] + 16384, R[0] + 32768, R[1], R[1] + 16384, R[1] + 32768, R[2]]
OSTG = R[2] + 16384
FLAG_OFF = 0x800000
STAMP_OFF = 0x900000

S_WAVE, S_MT, S_NT, S_ROT, S_NQ, S_XCC, S_T0, S_M3 = 44, 45, 46, 47, 48, 49, 50, 51
TMP0, TMP1, TMP2, TMP3 = 52, 53, 54, 55
S_M0W, S_M0X = 56, 57
S_EP = 58
S_SEL0, S_SEL1, S_SPIN, S_FAST = 60, 61, 62, 63
S_C = 64
S_STB = 66
S_CH = 92

DIAG = opt("diag", "")
def stamp(A, idx, force=False):
    if S1ST and not force and 3 <= idx <= 9: return
    if STAMPS or DIAG: A(f"s_memtime s[{S_STB+2*idx}:{S_STB+2*idx+1}]")

class VQ:
    def __init__(self): self.q = []
    def add(self, tag, n=1): self.q += [tag] * n
    def after(self, tag):
        idx = max(i for i, t in enumerate(self.q) if t == tag)
        return min(63, len(self.q) - 1 - idx)

def glu_sc(a, b, t):
    n = len(a); ops = []
    for i in range(n): ops.append(f"v_mul_f32 v{t[i]}, s{S_C}, v{b[i]}")
    for i in range(n): ops.append(f"v_exp_f32 v{t[i]}, v{t[i]}")
    for i in range(n): ops.append(f"v_add_f32 v{t[i]}, 1.0, v{t[i]}")
    for i in range(n): ops.append(f"v_rcp_f32 v{t[i]}, v{t[i]}")
    for i in range(n): ops.append(f"v_mul_f32 v{t[i]}, v{a[i]}, v{t[i]}")
    return ops
def glu_pk(a, b, t):
    n = len(a); ops = []
    for i in range(0, n, 2):
        assert b[i] % 2 == 0 and b[i+1] == b[i] + 1 and t[i] % 2 == 0 and a[i+1] == a[i] + 1 and a[i] % 2 == 0
        ops.append(f"v_pk_mul_f32 v[{t[i]}:{t[i]+1}], v[{b[i]}:{b[i]+1}], s[{S_C}:{S_C+1}]")
    for i in range(n): ops.append(f"v_exp_f32 v{t[i]}, v{t[i]}")
    for i in range(0, n, 2): ops.append(f"v_pk_add_f32 v[{t[i]}:{t[i]+1}], v[{t[i]}:{t[i]+1}], 1.0 op_sel_hi:[1,0]")
    for i in range(n): ops.append(f"v_rcp_f32 v{t[i]}, v{t[i]}")
    for i in range(0, n, 2): ops.append(f"v_pk_mul_f32 v[{t[i]}:{t[i]+1}], v[{a[i]}:{a[i]+1}], v[{t[i]}:{t[i]+1}]")
    return ops
def glu(pk, a, b, t, out):
    ops = (glu_pk if pk else glu_sc)(a, b, t)
    for i in range(len(a) // 2): ops.append(f"v_cvt_pk_bf16_f32 v{out[i]}, v{t[2*i]}, v{t[2*i+1]}")
    return ops

VX, VS, VW = 10, 14, 15
VXA, VWA = 18, 24
VW2, VDBG, VW2B = 27, 28, 29
ACC, XF, WF, TT, RRT = 32, 104, 176, 192, 224
DUM = 224

def chunk_regs(A, c):
    if ROT == "hyb" and c >= 2:
        A(f"s_lshl_b32 s{TMP1}, s{S_CH + c - 2}, 17")
        A(f"s_lshl_b32 s{TMP0}, s{S_CH + c - 2}, 7")
        return
    A(f"s_add_u32 s{TMP0}, s{S_ROT}, {c}")
    A(f"s_and_b32 s{TMP0}, s{TMP0}, 7")
    A(f"s_lshl_b32 s{TMP1}, s{TMP0}, 17")
    A(f"s_lshl_b32 s{TMP0}, s{TMP0}, 7")

def dma_stage(A, Q, c, mh):
    base = R[c % 3]
    chunk_regs(A, c)
    A(f"s_add_u32 s{TMP2}, s{TMP1}, 1024")
    if mh != 0:
        A(f"s_cmp_eq_u32 s{S_WAVE}, 7")
        A(f"s_cbranch_scc0 L_noS_{c}")
        A(f"s_mov_b32 m0, {base + XOFF + 32*1024}")
        A("s_nop 0")
        A(f"buffer_load_dwordx4 v{VS}, s[20:23], s{TMP0} offen{XNT} lds")
        A.label(f"L_noS_{c}")
    ops = []
    for part in range(2):
        ops.append((f"s_add_u32 m0, s{S_M0W}, {base + part*8192}", f"buffer_load_dwordx4 v{VW}, s[24:27], s{TMP1+part} offen lds"))
    for q in range(4):
        ops.append((f"s_add_u32 m0, s{S_M0X}, {base + q*1024}", f"buffer_load_dwordx4 v{VX+q}, s[20:23], s{TMP0} offen{XNT} lds"))
    if mh == 1: ops = ops[2:] + ops[:2]
    for m, l in ops:
        A(m); A("s_nop 0"); A(l)
    Q.add(f"st{c}", 6)

def w2_dma2(A, steps, vlo, vhi, dlo, dhi, sa=TMP0):
    for s_ in steps:
        A(f"s_add_u32 s{sa}, s{S_NT}, {s_}")
        A(f"s_and_b32 s{sa}, s{sa}, 7")
        A(f"s_lshl_b32 s{sa}, s{sa}, 16")
        A(f"s_add_u32 s{sa+1}, s{sa}, 128")
        for v, d in ((vlo, dlo), (vhi, dhi)):
            for part in range(2):
                A(f"s_add_u32 m0, s{S_M0W}, {W2POS[s_] + part*8192 + d}")
                A("s_nop 0")
                A(f"buffer_load_dwordx4 v{v}, s[40:43], s{sa+part} offen lds")

def prologue(A, Q):
    A("s_cmp_ge_u32 s2, 256")
    A("s_cbranch_scc1 L_end")
    stamp(A, 0)
    if STAMPS or DIAG: A("s_memrealtime s[98:99]")
    A("s_load_dwordx8 s[4:11], s[0:1], 0")
    A("s_load_dwordx4 s[12:15], s[0:1], 32")
    A("s_load_dwordx2 s[16:17], s[0:1], 48")
    if CTOUCH:
        A("s_getpc_b64 s[18:19]")
        A.label("L_pc")
        A("v_lshlrev_b32 v5, 6, v0")
        A("v_and_b32 v6, 1, v0")
        A("v_lshl_or_b32 v6, v6, 20, v5")
        A("v_cmp_gt_u32 vcc, L_code_end-L_pc, v6")
        A("s_and_saveexec_b64 s[90:91], vcc")
        A("s_cbranch_execz L_noct")
        A("global_load_dword v2, v5, s[18:19]")
        A.label("L_noct")
        A("s_mov_b64 exec, -1")
    A("v_lshrrev_b32 v7, 6, v0")
    A("v_and_b32 v1, 63, v0")
    A(f"v_readfirstlane_b32 s{S_WAVE}, v7")
    A(f"s_and_b32 s{S_ROT}, s2, 7")
    A(f"s_lshr_b32 s{TMP1}, s2, 3")
    A(f"s_lshr_b32 s{S_M3}, s{TMP1}, 3")
    A(f"s_lshl_b32 s{S_MT}, s{S_ROT}, 2")
    A(f"s_add_u32 s{S_MT}, s{S_MT}, s{S_M3}")
    A(f"s_and_b32 s{S_NT}, s{TMP1}, 7")
    if ROT == "mn":
        A(f"s_lshl_b32 s{S_ROT}, s{S_M3}, 1")
        A(f"s_add_u32 s{S_ROT}, s{S_ROT}, s{S_NT}")
    if ROT == "halfm":
        A(f"s_and_b32 s{S_ROT}, s{S_NT}, 6")
        A(f"s_add_u32 s{S_ROT}, s{S_ROT}, s{S_M3}")
    A(f"s_and_b32 s{S_T0}, s{S_MT}, 15")
    A(f"s_mul_i32 s{S_T0}, s{S_T0}, 250")
    A(f"s_sub_i32 s{S_T0}, s{S_T0}, 7")
    A(f"s_lshl_b32 s{S_M0W}, s{S_WAVE}, 10")
    A(f"s_lshl_b32 s{S_M0X}, s{S_WAVE}, 12")
    A(f"s_add_u32 s{S_M0X}, s{S_M0X}, {XOFF}")
    A("v_lshrrev_b32 v5, 3, v1")
    A("v_and_b32 v6, 7, v1")
    A("v_lshrrev_b32 v21, 1, v5")
    A("v_and_b32 v22, 1, v21")
    A("v_lshlrev_b32 v22, 2, v22")
    A(f"s_and_b32 s{TMP0}, s{S_WAVE}, 1")
    A(f"s_lshl_b32 s{TMP0}, s{TMP0}, 1")
    A(f"v_or_b32 v22, s{TMP0}, v22")
    A("v_xor_b32 v22, v22, v6")
    A("v_lshlrev_b32 v22, 4, v22")
    A(f"v_lshl_add_u32 v{VW}, v5, 11, v22")
    A(f"v_lshl_add_u32 v{VW2}, v5, 10, v22")
    A(f"s_lshl_b32 s{TMP0}, s{S_WAVE}, 14")
    A(f"s_lshl_b32 s{TMP1}, s{S_NT}, 7")
    A(f"s_add_u32 s{TMP0}, s{TMP0}, s{TMP1}")
    A(f"v_add_u32 v{VW}, s{TMP0}, v{VW}")
    A("v_lshrrev_b32 v7, 2, v5")
    A("v_and_b32 v8, 3, v5")
    A("v_lshl_add_u32 v7, v7, 3, v8")
    A(f"s_lshl_b32 s{TMP0}, s{S_WAVE}, 5")
    A(f"s_add_i32 s{TMP0}, s{TMP0}, s{S_T0}")
    A(f"v_add_u32 v7, s{TMP0}, v7")
    A("v_xor_b32 v8, v21, v6")
    A("v_lshlrev_b32 v8, 4, v8")
    A("v_xor_b32 v9, 64, v8")
    A("v_mov_b32 v20, 0x80000000")
    A(f"v_lshl_add_u32 v{VX}, v7, 10, v8")
    A(f"v_lshl_add_u32 v{VX+1}, v7, 10, v9")
    A(f"v_add_u32 v{VX+2}, 0x1000, v{VX}")
    A(f"v_add_u32 v{VX+3}, 0x5000, v{VX+1}")
    A(f"v_add_u32 v{VX+1}, 0x4000, v{VX+1}")
    A("v_cmp_gt_i32 vcc, 0, v7")
    A("v_cmp_gt_i32 s[90:91], -4, v7")
    A(f"s_add_i32 s{TMP0}, s{S_T0}, 256")
    A(f"v_add_u32 v21, s{TMP0}, v5")
    A(f"v_cndmask_b32 v{VX}, v{VX}, v20, vcc")
    A(f"v_cndmask_b32 v{VX+2}, v{VX+2}, v20, s[90:91]")
    A(f"v_lshl_add_u32 v{VS}, v21, 10, v8")
    A(f"s_lshr_b32 s{TMP0}, s{S_MT}, 4")
    A(f"s_mul_i32 s{TMP0}, s{TMP0}, 4096000")
    A("s_mov_b32 s22, 4096000"); A("s_mov_b32 s23, 0x20000")
    A("s_mov_b32 s26, 1048576"); A("s_mov_b32 s27, 0x20000")
    A("s_waitcnt lgkmcnt(0)")
    A(f"s_add_u32 s20, s4, s{TMP0}"); A("s_addc_u32 s21, s5, 0")
    A("s_mov_b32 s24, s6"); A("s_mov_b32 s25, s7")
    stamp(A, 1)
    dma_stage(A, Q, 0, None)
    A("s_mov_b32 s28, s8"); A("s_mov_b32 s29, s9"); A("s_mov_b32 s30, 15360"); A("s_mov_b32 s31, 0x20000")
    A("v_lshrrev_b32 v21, 3, v0")
    A("v_subrev_u32 v22, 7, v21")
    A("v_lshlrev_b32 v23, 10, v22")
    A("v_lshl_add_u32 v23, v6, 4, v23")
    A(f"s_lshl_b32 s{TMP3}, s{S_NT}, 7")
    A(f"v_add_u32 v23, s{TMP3}, v23")
    A("v_cmp_gt_i32 vcc, 0, v22")
    A("v_mul_u32_u24 v16, 144, v21")
    A("v_lshl_add_u32 v16, v6, 4, v16")
    A("v_cndmask_b32 v23, v23, v20, vcc")
    A(f"v_add_u32 v16, {DW_OFF}, v16")
    if PFA:
        A(f"s_mul_i32 s{TMP0}, s{S_NT}, 33")
        A(f"s_add_i32 s{TMP0}, s{TMP0}, s{S_T0}")
        A(f"v_add_u32 v21, s{TMP0}, v1")
        A(f"v_lshlrev_b32 v17, 10, v21")
        A("v_cmp_gt_i32 vcc, 0, v21")
        A("v_lshrrev_b32 v22, 1, v1")
        A("v_lshlrev_b32 v22, 11, v22")
        A(f"v_cndmask_b32 v17, v17, v20, vcc")
        A("v_and_b32 v21, 1, v1")
        A(f"v_lshl_add_u32 v22, v21, 10, v22")
        A(f"s_lshl_b32 s{TMP0}, s{S_M3}, 15")
        A(f"s_add_u32 s{TMP0}, s{TMP0}, s{TMP3}")
        A(f"v_add_u32 v22, s{TMP0}, v22")
        A(f"s_add_u32 s{TMP0}, s{S_ROT}, s{S_WAVE}")
        A(f"s_and_b32 s{TMP0}, s{TMP0}, 7")
        A(f"s_lshl_b32 s{TMP1}, s{TMP0}, 17")
        A(f"s_lshl_b32 s{TMP0}, s{TMP0}, 7")
    A("s_barrier")
    if PFA:
        A(f"s_cmp_lt_u32 s{S_WAVE}, {PFA}")
        A("s_cbranch_scc1 L_nopfa")
        A("s_mov_b64 exec, 0xffffffff")
        A(f"buffer_load_dword v2, v22, s[24:27], s{TMP1} offen")
        A("s_mov_b32 exec_hi, 1")
        A(f"buffer_load_dword v2, v17, s[20:23], s{TMP0} offen{XNT}")
        A("s_mov_b64 exec, -1")
        A.label("L_nopfa")
        if PFB: A("s_barrier")
    A(f"s_cmp_lt_u32 s{S_WAVE}, 4")
    A("s_cbranch_scc0 L_nodw")
    A(f"buffer_load_dwordx4 {vr(DUM)}, v23, s[28:31], 0 offen")
    A.label("L_nodw")
    dma_stage(A, Q, 1, None)
    A("s_mov_b32 s36, s16"); A("s_mov_b32 s37, s17"); A("s_mov_b32 s38, 0x1000000"); A("s_mov_b32 s39, 0x20000")
    A("s_mov_b32 s40, s10"); A("s_mov_b32 s41, s11"); A("s_mov_b32 s42, 524288"); A("s_mov_b32 s43, 0x20000")
    A(f"s_mul_i32 s{TMP0}, s{S_MT}, 256000")
    A(f"s_add_u32 s32, s12, s{TMP0}"); A("s_addc_u32 s33, s13, 0"); A("s_mov_b32 s34, 256000"); A("s_mov_b32 s35, 0x20000")
    A(f"s_and_b32 s{S_NQ}, s{S_WAVE}, 3")
    A("v_and_b32 v3, 15, v1")
    A("v_lshrrev_b32 v4, 4, v1")
    if ROT == "hyb":
        A(f"s_lshl_b32 s{TMP0}, s{S_M3}, 1")
        A(f"s_add_u32 s{TMP0}, s{TMP0}, s{S_NT}")
        for _ in range(2):
            A(f"s_sub_u32 s{TMP1}, s{TMP0}, 6")
            A(f"s_cmp_ge_u32 s{TMP0}, 6")
            A(f"s_cselect_b32 s{TMP0}, s{TMP1}, s{TMP0}")
        for k in range(6):
            A(f"s_add_u32 s{TMP1}, s{TMP0}, {k}")
            A(f"s_sub_u32 s{TMP2}, s{TMP1}, 6")
            A(f"s_cmp_ge_u32 s{TMP1}, 6")
            A(f"s_cselect_b32 s{TMP1}, s{TMP2}, s{TMP1}")
            A(f"s_add_u32 s{TMP1}, s{TMP1}, s{S_ROT}")
            A(f"s_add_u32 s{TMP1}, s{TMP1}, 2")
            A(f"s_and_b32 s{S_CH + k}, s{TMP1}, 7")
    A(f"s_lshl_b32 s{TMP0}, s{S_MT}, 3")
    A(f"v_mov_b32 v{VDBG}, s{TMP0}")
    A(f"s_getreg_b32 s{S_XCC}, hwreg(HW_REG_XCC_ID, 0, 4)")
    A(f"s_and_b32 s{S_XCC}, s{S_XCC}, 7")
    A(f"s_lshl_b32 s{S_XCC}, s{S_XCC}, 2")
    A(f"s_cmp_eq_u32 s{S_WAVE}, 5")
    A("s_cbranch_scc0 L_nohello")
    A(f"s_lshl_b32 s{TMP0}, 1, s{S_XCC}")
    A(f"v_mov_b32 v21, s{TMP0}")
    A("s_mov_b64 exec, 1")
    A(f"global_atomic_add v{VDBG}, v21, s[14:15] offset:4 sc1")
    A(f"s_cmp_eq_u32 s{S_NT}, 0")
    A("s_cbranch_scc0 L_noep")
    A(f"s_memrealtime s[{S_EP}:{S_EP+1}]")
    A("s_waitcnt lgkmcnt(0)")
    A(f"s_lshr_b64 s[{S_EP}:{S_EP+1}], s[{S_EP}:{S_EP+1}], 6")
    A(f"s_or_b32 s{S_EP}, s{S_EP}, 0x80000000")
    A(f"v_mov_b32 v21, s{S_EP}")
    A(f"global_store_dword v{VDBG}, v21, s[14:15] sc1")
    A.label("L_noep")
    A("s_mov_b64 exec, -1")
    A.label("L_nohello")
    A(f"s_lshl_b32 s{TMP0}, s{S_WAVE}, 13")
    A(f"s_and_b32 s{TMP1}, s{S_NT}, 3")
    A(f"s_lshl_b32 s{TMP1}, s{TMP1}, 8")
    A(f"s_add_u32 s{TMP0}, s{TMP0}, s{TMP1}")
    A(f"v_add_u32 v{VW2}, s{TMP0}, v{VW2}")
    A(f"v_xor_b32 v{VW2B}, 0x8000, v{VW2}")
    A(f"s_mov_b32 s{S_SEL0}, 0x05040100")
    A(f"s_mov_b32 s{S_SEL1}, 0x07060302")
    A(f"s_mov_b32 s{S_C}, 0x{NEG_LOG2E:x}")
    A(f"s_mov_b32 s{S_C+1}, 0x{NEG_LOG2E:x}")
    A("v_lshrrev_b32 v5, 3, v3")
    A("v_and_b32 v6, 7, v3")
    A("v_lshlrev_b32 v5, 10, v5")
    A("v_lshl_add_u32 v5, v6, 7, v5")
    A("v_lshrrev_b32 v6, 1, v3")
    A("v_xor_b32 v6, v6, v4")
    A("v_lshl_add_u32 v7, v6, 4, v5")
    A("v_xor_b32 v8, 64, v7")
    for sl in range(3):
        A(f"v_add_u32 v{VXA+sl*2}, {R[sl] + XOFF}, v7")
        A(f"v_add_u32 v{VXA+sl*2+1}, {R[sl] + XOFF}, v8")
    A("v_lshrrev_b32 v5, 2, v3")
    A("v_and_b32 v6, 3, v3")
    A("v_lshrrev_b32 v7, 1, v6")
    A(f"s_lshl_b32 s{TMP0}, s{S_NQ}, 1")
    A(f"v_or_b32 v7, s{TMP0}, v7")
    A("v_lshrrev_b32 v8, 1, v5")
    A("v_lshlrev_b32 v8, 2, v8")
    A("v_and_b32 v9, 1, v4")
    A("v_lshl_or_b32 v8, v9, 1, v8")
    A("v_xor_b32 v7, v7, v8")
    A("v_lshlrev_b32 v7, 4, v7")
    A("v_lshl_add_u32 v7, v5, 7, v7")
    A("v_lshl_add_u32 v7, v4, 10, v7")
    A("v_and_b32 v6, 1, v6")
    A("v_lshl_add_u32 v7, v6, 3, v7")
    for sl in range(3):
        A(f"v_add_u32 v{VWA+sl}, {R[sl]}, v7")
    A("v_lshlrev_b32 v5, 3, v4")
    A("v_sub_u32 v5, v5, v3")
    A("v_add_u32 v5, 7, v5")
    A("v_cmp_lt_u32 vcc, 21, v5")
    A("v_mov_b32 v6, 22")
    A(f"s_lshl_b32 s{TMP0}, s{S_WAVE}, 4")
    A("v_cndmask_b32 v5, v5, v6, vcc")
    A("v_mul_u32_u24 v5, 144, v5")
    A(f"s_add_u32 s{TMP0}, s{TMP0}, {DW_OFF}")
    A(f"v_add_u32 v9, s{TMP0}, v5")
    A(f"s_cmp_ge_u32 s{S_WAVE}, 4")
    A("s_cbranch_scc1 L_path1")

def path(A, mh, Q0):
    NT = 9 if mh == 0 else 8
    Q = VQ(); Q.q = list(Q0.q)
    A(f"s_waitcnt vmcnt({Q.after('st0')})")
    if mh == 0:
        A(f"ds_write_b128 v16, {vr(DUM)}")
        A("s_waitcnt lgkmcnt(0)")
    A("s_barrier")
    stamp(A, 2)
    def reads(j):
        c, ks = j >> 1, j & 1
        sl, buf = c % 3, j & 1
        Rr = []
        for part in range(2):
            for h in range(2):
                d = WF + buf * 8 + part * 4 + h * 2
                Rr.append(f"ds_read_b64_tr_b16 v[{d}:{d+1}], v{VWA+sl} offset:{part*8192 + ks*4096 + h*512}")
        for tt in range(NT):
            tile = (mh * 8 + tt) if tt < 8 else 16
            d = XF + buf * 36 + tt * 4
            Rr.append(f"ds_read_b128 {vr(d)}, v{VXA+sl*2+ks} offset:{tile*2048}")
        return Rr
    def tail_loads():
        A(f"global_load_dwordx2 v[30:31], v{VDBG}, s[14:15] sc1")
        Q.add("misc", 1)
        if mh == 0:
            w2_dma2(A, [0], VW2, VW2B, 0, 4096)
            Q.add("w2", 4)
            A(f"s_cmp_lt_u32 s{S_NQ}, 2")
            A("s_cbranch_scc0 L_nopf_W2all")
            A(f"s_lshr_b32 s{TMP0}, s2, 3")
            A(f"s_lshl_b32 s{TMP0}, s{TMP0}, 1")
            A(f"s_add_u32 s{TMP0}, s{TMP0}, s{S_NQ}")
            A(f"s_lshl_b32 s{TMP0}, s{TMP0}, 13")
            A("v_lshlrev_b32 v5, 7, v1")
            A(f"buffer_load_dword v2, v5, s[40:43], s{TMP0} offen")
            A.label("L_nopf_W2all")
            if PRE:
                A(f"s_lshl_b32 s{TMP2}, s{S_NT}, 3")
                A(f"s_add_u32 s{TMP2}, s{TMP2}, s{S_WAVE}")
                A(f"s_lshl_b32 s{TMP2}, s{TMP2}, 9")
                A(f"s_lshl_b32 s{TMP3}, s{S_MT}, 18")
                A(f"s_add_u32 s{TMP2}, s{TMP2}, s{TMP3}")
                A("v_lshrrev_b32 v5, 2, v1")
                A("v_and_b32 v5, 7, v5")
                A("v_lshlrev_b32 v5, 15, v5")
                A("v_and_b32 v6, 3, v1")
                A("v_lshl_add_u32 v5, v6, 7, v5")
                A("v_lshrrev_b32 v6, 5, v1")
                A("v_lshl_add_u32 v5, v6, 11, v5")
                A(f"buffer_load_dword v2, v5, s[36:39], s{TMP2} offen{PTF}")
                A(f"s_mov_b64 exec, 15")
                A(f"s_lshl_b32 s{TMP2}, s{S_MT}, 9")
                A(f"s_add_u32 s{TMP2}, s{TMP2}, {FLAG_OFF}")
                A(f"buffer_load_dword v2, v5, s[36:39], s{TMP2} offen{PTF}")
                A(f"s_mov_b64 exec, -1")
                Q.add("misc", 2)
    for r in reads(0): A(r)
    if mh == 1: dma_stage(A, Q, 2, mh)
    extra = []
    for j in range(16):
        buf = j & 1
        cn = (j + 1) >> 1
        boundary = (j & 1) == 1 and j < 15 and not (mh == 0 and j == 13)
        if boundary:
            A(f"s_waitcnt vmcnt({Q.after(f'st{cn}')}) lgkmcnt(0)")
            A("s_barrier")
            if S1ST: stamp(A, 2 + cn, True)
            if cn == 6:
                if mh == 1:
                    A("s_setprio 3")
                    tail_loads()
                else:
                    tail_loads()
                    A(f"s_waitcnt vmcnt({Q.after('st7')})")
                    A("s_barrier")
                    if S1ST: stamp(A, 9, True)
                    A("s_setprio 1")
        stg = None
        if mh == 0 and (j & 1) == 1 and j < 15: stg = cn + 2
        if mh == 1 and (j & 1) == 0 and j >= 2 and j != 10: stg = (j >> 1) + 2
        if mh == 1 and j == 9: stg = 7
        if stg is not None and stg < 8: dma_stage(A, Q, stg, mh)
        Rn = reads(j + 1) if j < 15 else []
        if j == 2:
            Rn = [f"ds_read_b128 {vr(RRT + 4*e)}, v9 offset:{e*144}" for e in range(8)] + Rn
        if j == 3:
            extra = [f"v_perm_b32 v{TT + 4*jj + d}, v{RRT + 4*(2*d+1) + (jj>>1)}, v{RRT + 4*(2*d) + (jj>>1)}, s{S_SEL0 + (jj&1)}" for jj in range(8) for d in range(4)]
        issued = 0
        for tt in range(NT):
            for part in range(2):
                if part == 0 and not boundary:
                    A(f"s_waitcnt lgkmcnt({min(15, (NT - 1 - tt) + issued)})")
                a = ACC + (tt * 2 + part) * 4
                cin = "0" if j == 0 else vr(a)
                A(f"v_mfma_f32_16x16x32_bf16 {vr(a)}, {vr(XF + buf*36 + tt*4)}, {vr(WF + buf*8 + part*4)}, {cin}")
                k = 2 if (j == 2 and issued < 10) else 1
                for _ in range(k):
                    if issued < len(Rn):
                        A(Rn[issued]); issued += 1
                    elif extra:
                        A(extra.pop(0))
        assert issued == len(Rn)
        if j == 0 and mh == 0: dma_stage(A, Q, 2, mh)
    assert not extra
    A("s_setprio 0")
    stamp(A, 3)
    pk = (mh == 0)
    A(f"s_lshl_b32 s{TMP0}, s{S_NQ}, 4")
    A(f"v_add_u32 v5, s{TMP0}, v3")
    A(f"v_mul_u32_u24 v5, {HT_STRIDE}, v5")
    A(f"v_add_u32 v5, {HT_OFF}, v5")
    A("v_lshl_add_u32 v6, v4, 4, v5")
    A("v_lshl_add_u32 v7, v4, 3, v5")
    A("s_nop 1")
    T0 = XF
    for p in range(4):
        a = [ACC + ((2*p + o) * 2 + 0) * 4 + r for o in range(2) for r in range(4)]
        b = [ACC + ((2*p + o) * 2 + 1) * 4 + r for o in range(2) for r in range(4)]
        O = T0 + 8 + 4 * (p & 1)
        for op in glu(pk, a, b, [T0 + i for i in range(8)], [O + i for i in range(4)]): A(op)
        A(f"ds_write_b128 v6, {vr(O)} offset:{(4*mh + p) * 64}")
    if mh == 0:
        a = [ACC + 16 * 4 + r for r in range(4)]
        b = [ACC + 17 * 4 + r for r in range(4)]
        O = T0 + 16
        A("v_cmp_gt_u32 vcc, 2, v4")
        for op in glu(pk, a, b, [T0 + i for i in range(4)], [O, O + 1]): A(op)
        A(f"v_cndmask_b32 v{O}, 0, v{O}, vcc")
        A(f"v_cndmask_b32 v{O+1}, 0, v{O+1}, vcc")
        A(f"ds_write_b64 v7, v[{O}:{O+1}] offset:512")
        A(f"s_waitcnt vmcnt({Q.after('w2')})")

def epilogue1(A):
    A(f"s_mul_i32 s{TMP0}, s{S_WAVE}, {8*HT_STRIDE}")
    A(f"s_add_u32 s{TMP0}, s{TMP0}, {HT_OFF}")
    A("v_lshlrev_b32 v5, 5, v3")
    A("v_lshl_add_u32 v5, v4, 4, v5")
    A(f"v_add_u32 v5, s{TMP0}, v5")
    A(f"s_lshl_b32 s{TMP2}, s{S_NT}, 3")
    A(f"s_add_u32 s{TMP2}, s{TMP2}, s{S_WAVE}")
    A(f"s_lshl_b32 s{TMP1}, s{TMP2}, 3")
    A(f"v_mov_b32 v11, s{TMP1}")
    A(f"s_lshl_b32 s{TMP2}, s{TMP2}, 9")
    A(f"s_lshl_b32 s{TMP3}, s{S_MT}, 18")
    A(f"s_add_u32 s{TMP2}, s{TMP2}, s{TMP3}")
    A("v_lshlrev_b32 v6, 16, v4")
    A("v_lshl_add_u32 v6, v3, 4, v6")
    A("v_add_u32 v7, 0x8000, v6")
    A(f"s_lshl_b32 s{TMP3}, s{S_MT}, 9")
    A(f"s_add_u32 s{TMP3}, s{TMP3}, {FLAG_OFF}")
    A("s_waitcnt lgkmcnt(0)")
    A("s_barrier")
    stamp(A, 4)
    HA, Y, T0, O0 = 32, 64, 96, 160
    for j in range(8):
        A(f"ds_read_b128 {vr(HA + 4*j)}, v5 offset:{j*HT_STRIDE}")
    for j in range(8):
        A(f"s_waitcnt lgkmcnt({7-j})")
        A(f"v_mfma_f32_16x16x32_bf16 {vr(Y + 4*j)}, {vr(HA + 4*j)}, {vr(TT + 4*j)}, 0")
    A("s_waitcnt vmcnt(0)")
    if DRST: stamp(A, 2)
    A(f"v_readfirstlane_b32 s{S_EP}, v30")
    A(f"v_readfirstlane_b32 s{S_FAST}, v31")
    A(f"s_lshl_b32 s{TMP0}, 8, s{S_XCC}")
    A(f"s_cmp_eq_u32 s{S_FAST}, s{TMP0}")
    A(f"s_cselect_b32 s{S_FAST}, {1 if FAST else 0}, 0")
    A("s_nop 2")
    for half in range(2):
        y = [Y + 4*j + 2*half + rr for j in range(8) for rr in range(2)]
        t = [T0 + 16*half + i for i in range(16)]
        for op in glu_pk(y, y, t): A(op)
        for rr in range(2):
            for i in range(4):
                A(f"v_cvt_pk_bf16_f32 v{O0 + 4*(2*half+rr) + i}, v{t[2*(2*i) + rr]}, v{t[2*(2*i+1) + rr]}")
    A(f"s_cmp_lg_u32 s{S_EP}, 0")
    A(f"s_cselect_b32 s{S_FAST}, s{S_FAST}, 0")
    A(f"s_not_b32 s{S_EP+1}, s{S_EP}")
    A(f"v_mov_b32 v16, s{S_EP}")
    A(f"v_mov_b32 v17, s{S_EP+1}")
    A(f"s_cmp_eq_u32 s{S_FAST}, 1")
    A("s_cbranch_scc0 L_slow")
    for r in range(4):
        A(f"buffer_store_dwordx4 {vr(O0 + 4*r)}, v{6 + (r>>1)}, s[36:39], s{TMP2} offen offset:{(r&1)*256}{SST}")
    stamp(A, 5)
    A(f"s_cmp_ge_u32 s{S_WAVE}, 4")
    A("s_cbranch_scc0 L_Afast")
    A("s_mov_b64 exec, 1")
    A("s_waitcnt vmcnt(0)")
    if DRST: stamp(A, 1)
    A(f"buffer_store_dwordx2 v[16:17], v11, s[36:39], s{TMP3} offen")
    A("s_mov_b64 exec, -1")
    A.label("L_Btail")
    A("s_barrier")
    stamp(A, 6)
    w2_dma2(A, range(NPRE + 1, 8), VW2, VW2B, 0, -4096)
    A("s_waitcnt vmcnt(0)")
    A("s_barrier")
    if STAMPS:
        A("s_waitcnt lgkmcnt(0)")
        A(f"s_cmp_eq_u32 s{S_WAVE}, 4")
        A("s_cbranch_scc0 L_end")
        A("s_mov_b64 exec, 1")
        A(f"s_mul_i32 s{TMP0}, s2, {8*8}")
        A(f"s_add_u32 s{TMP0}, s{TMP0}, {STAMP_OFF + 0x40000}")
        A(f"v_mov_b32 v3, s{TMP0}")
        for j in range(7):
            A(f"v_mov_b32 v4, s{S_STB+2*j}"); A(f"v_mov_b32 v5, s{S_STB+2*j+1}")
            A(f"buffer_store_dwordx2 v[4:5], v3, s[36:39], 0 offen offset:{8*j}")
            A("s_nop 1")
    A("s_endpgm")
    A.label("L_Afast")
    w2_dma2(A, range(1, NPRE + 1), VW2, VW2B, 0, 4096)
    A("s_mov_b64 exec, 1")
    A(f"s_waitcnt vmcnt({4*NPRE})")
    if DRST: stamp(A, 1)
    A(f"buffer_store_dwordx2 v[16:17], v11, s[36:39], s{TMP3} offen")
    A("s_mov_b64 exec, -1")
    A.label("L_Ajoin")

def slow_path(A):
    O0 = 160
    A.label("L_slow")
    for r in range(4):
        A(f"buffer_store_dwordx4 {vr(O0 + 4*r)}, v{6 + (r>>1)}, s[36:39], s{TMP2} offen offset:{(r&1)*256} sc1")
    A(f"s_mov_b32 s{S_SPIN}, 0")
    A.label("L_ep_chk")
    A(f"s_cmp_lg_u32 s{S_EP}, 0")
    A("s_cbranch_scc1 L_ep_ok")
    A(f"global_load_dwordx2 v[30:31], v{VDBG}, s[14:15] sc1")
    A(f"s_add_u32 s{S_SPIN}, s{S_SPIN}, 1")
    A("s_waitcnt vmcnt(0)")
    A(f"v_readfirstlane_b32 s{S_EP}, v30")
    A(f"s_cmp_lt_u32 s{S_SPIN}, 0x40000")
    A("s_cbranch_scc1 L_ep_chk")
    A.label("L_ep_ok")
    A(f"s_not_b32 s{S_EP+1}, s{S_EP}")
    A(f"v_mov_b32 v16, s{S_EP}")
    A(f"v_mov_b32 v17, s{S_EP+1}")
    A("s_mov_b64 exec, 1")
    A("s_waitcnt vmcnt(0)")
    A(f"buffer_store_dwordx2 v[16:17], v11, s[36:39], s{TMP3} offen sc1")
    A("s_mov_b64 exec, -1")
    A(f"s_cmp_ge_u32 s{S_WAVE}, 4")
    A("s_cbranch_scc1 L_Btail")
    w2_dma2(A, range(1, NPRE + 1), VW2, VW2B, 0, 4096)
    A("s_waitcnt vmcnt(0)")
    A("s_branch L_Ajoin")

def phase2(A):
    SF, ACC2, WF2 = 128, 64, 32
    S_FL = TMP2
    A(f"s_mov_b32 s{S_FL}, s{TMP3}")
    A(f"s_lshr_b32 s{TMP0}, s{S_NT}, 2")
    A(f"s_lshl_b32 s{TMP0}, s{TMP0}, 2")
    A(f"s_add_u32 s{TMP0}, s{TMP0}, s{S_WAVE}")
    A(f"s_lshl_b32 s{TMP3}, s{TMP0}, 15")
    A(f"s_lshl_b32 s{TMP1}, s{S_MT}, 18")
    A(f"s_add_u32 s{TMP1}, s{TMP1}, s{TMP3}")
    A("v_lshlrev_b32 v12, 4, v1")
    A(f"v_add_u32 v12, s{TMP1}, v12")
    A("v_lshrrev_b32 v5, 2, v3")
    A("v_and_b32 v6, 3, v3")
    A("v_lshrrev_b32 v7, 1, v6")
    A("v_and_b32 v8, 1, v4")
    A("v_lshl_or_b32 v7, v8, 1, v7")
    A("v_lshrrev_b32 v8, 1, v5")
    A("v_lshlrev_b32 v8, 2, v8")
    A("v_lshrrev_b32 v9, 1, v4")
    A("v_lshl_or_b32 v8, v9, 1, v8")
    A("v_xor_b32 v7, v7, v8")
    A("v_lshlrev_b32 v7, 4, v7")
    A("v_lshl_add_u32 v7, v5, 7, v7")
    A("v_lshl_add_u32 v7, v9, 10, v7")
    A("v_and_b32 v6, 1, v6")
    A("v_lshl_add_u32 v22, v6, 3, v7")
    A("v_xor_b32 v23, 64, v22")
    for wdw in (1, 2):
        A(f"v_add_u32 v{22+2*wdw}, {wdw*0x10000}, v22")
        A(f"v_add_u32 v{23+2*wdw}, {wdw*0x10000}, v23")
    for s_ in range(8):
        A(f"s_add_u32 s{TMP0}, s{S_NT}, {s_}")
        A(f"s_and_b32 s{TMP0}, s{TMP0}, 7")
        A(f"s_lshl_b32 s{20+s_}, s{TMP0}, 12")
    A(f"s_lshl_b32 s{TMP0}, s{S_NT}, 3")
    A(f"v_add_u32 v13, s{TMP0}, v1")
    A("v_and_b32 v13, 63, v13")
    A("v_lshlrev_b32 v13, 3, v13")
    A(f"s_mov_b32 s{S_SPIN}, 0")
    def reads(j):
        c, kq = j >> 2, j & 3
        buf = j & 1
        Rr = []
        for ct in range(4):
            part, ctp = ct >> 1, ct & 1
            for h in range(2):
                off = W2POS[c] + part * 8192 + kq * 2048 + h * 512
                base = 22 + ctp + 2 * (off >> 16)
                d = WF2 + buf * 16 + ct * 4 + h * 2
                Rr.append(f"ds_read_b64_tr_b16 v[{d}:{d+1}], v{base} offset:{off & 0xffff}")
        return Rr
    def sload(j):
        return f"buffer_load_dwordx4 {vr(SF + j*4)}, v12, s[36:39], s{20 + (j>>2)} offen offset:{(j&3)*1024} sc1"
    for r in reads(0): A(r)
    A("s_waitcnt vmcnt(1)")
    A("s_barrier")
    stamp(A, 6)
    for j in range(4): A(sload(j))
    A(f"buffer_load_dwordx2 v[20:21], v13, s[36:39], s{S_FL} offen sc1")
    S_MK = 28
    spins = []
    def check(k):
        reg = S_MK + (k >> 2)
        A(f"s_bfe_u32 s{TMP0}, s{reg}, {((k & 3) * 8) | (8 << 16)}")
        A(f"s_cmp_eq_u32 s{TMP0}, 0xff")
        A(f"s_cbranch_scc0 L_spin{k}")
        A.label(f"L_back{k}")
        spins.append(k)
    def step(j, vm, pre=None):
        buf = j & 1
        Rn = reads(j + 1) if j < 31 else []
        for ct in range(4):
            w = f"lgkmcnt({6 if j < 31 else 6 - 2*ct})"
            if ct == 0 and vm is not None: w = f"vmcnt({vm}) " + w
            A(f"s_waitcnt {w}")
            if j == 4 * (NPRE + 1) - 1 and ct == 0:
                A("s_barrier")
            a = ACC2 + ct * 16
            cin = "0" if j == 0 else vr(a, 16)
            A(f"v_mfma_f32_32x32x16_bf16 {vr(a,16)}, {vr(WF2 + buf*16 + ct*4)}, {vr(SF + j*4)}, {cin}")
            for r in Rn[2*ct:2*ct+2]: A(r)
            if pre: pre(ct)
    step(0, 4)
    A("s_waitcnt vmcnt(0)")
    A(f"v_cmp_eq_u64 s[{S_MK}:{S_MK+1}], s[{S_EP}:{S_EP+1}], v[20:21]")
    nissued = [4]
    def issue_upto(n):
        while nissued[0] < min(32, n):
            jj = nissued[0]
            if jj % 4 == 0: check(jj // 4)
            A(sload(jj)); nissued[0] += 1
    for j in range(1, 32):
        target = min(32, j + 1 + SAHEAD)
        vm = None if j < 4 else nissued[0] - 1 - j
        step(j, vm, lambda ct: issue_upto(min(target, nissued[0] + 2)))
        if j == 1: stamp(A, 7)
        if j == 4: stamp(A, 8)
    stamp(A, 9)
    A("v_and_b32 v5, 31, v1")
    A("v_lshrrev_b32 v6, 5, v1")
    A("v_and_b32 v7, 7, v5")
    A("v_xor_b32 v7, v7, v6")
    A("v_lshlrev_b32 v7, 4, v7")
    A("v_lshl_add_u32 v7, v5, 7, v7")
    A(f"s_lshl_b32 s{TMP0}, s{S_WAVE}, 12")
    A(f"s_add_u32 s{TMP0}, s{TMP0}, {OSTG}")
    A(f"v_add_u32 v7, s{TMP0}, v7")
    for x in (1, 2, 3): A(f"v_xor_b32 v{7+x}, {32*x}, v7")
    A("v_lshrrev_b32 v5, 3, v1")
    A("v_and_b32 v6, 7, v1")
    A("v_xor_b32 v11, v5, v6")
    A("v_lshlrev_b32 v11, 4, v11")
    A("v_lshl_add_u32 v11, v5, 7, v11")
    A(f"v_add_u32 v11, s{TMP0}, v11")
    A("v_lshlrev_b32 v12, 4, v6")
    A("v_lshl_add_u32 v12, v5, 10, v12")
    A(f"s_and_b32 s{TMP1}, s{S_NT}, 3")
    A(f"s_lshl_b32 s{TMP1}, s{TMP1}, 8")
    A(f"s_add_u32 s{TMP3}, s{TMP3}, s{TMP1}")
    P = 16
    for half in range(2):
        for ctp in range(2):
            for qq in range(2):
                a = ACC2 + (half * 2 + ctp) * 16 + qq * 8
                O = P + 4 * (ctp * 2 + qq)
                for i in range(4): A(f"v_cvt_pk_bf16_f32 v{O+i}, v{a+2*i}, v{a+2*i+1}")
                A("s_nop 1")
                A(f"v_permlane32_swap_b32 v{O}, v{O+2}")
                A(f"v_permlane32_swap_b32 v{O+1}, v{O+3}")
                A(f"ds_write_b128 v{7 + 2*ctp + qq}, {vr(O)}")
        A("s_waitcnt lgkmcnt(0)")
        for i in range(4): A(f"ds_read_b128 {vr(32 + 16*half + 4*i)}, v11 offset:{i*1024}")
        for i in range(4):
            A(f"s_waitcnt lgkmcnt({3-i})")
            A(f"s_add_u32 s{TMP0}, s{TMP3}, {i*8192 + half*128}")
            A(f"buffer_store_dwordx4 {vr(32 + 16*half + 4*i)}, v12, s[32:35], s{TMP0} offen{OST}")
    if STAMPS:
        ns = 12
        A("s_waitcnt vmcnt(0)")
        stamp(A, ns - 2)
        A(f"s_mov_b64 s[{S_STB+2*(ns-1)}:{S_STB+2*(ns-1)+1}], s[98:99]")
        A(f"s_memrealtime s[{S_EP}:{S_EP+1}]")
        A("s_waitcnt lgkmcnt(0)")
        A(f"s_cmp_eq_u32 s{S_WAVE}, 0")
        A("s_cbranch_scc0 L_end")
        A("s_mov_b64 exec, 1")
        A(f"s_mul_i32 s{TMP0}, s2, {8*(ns+1)}")
        A(f"s_add_u32 s{TMP0}, s{TMP0}, {STAMP_OFF}")
        A(f"v_mov_b32 v3, s{TMP0}")
        for j in range(ns):
            A(f"v_mov_b32 v4, s{S_STB+2*j}"); A(f"v_mov_b32 v5, s{S_STB+1+2*j}")
            A(f"buffer_store_dwordx2 v[4:5], v3, s[36:39], 0 offen offset:{8*j}")
            A("s_nop 1")
        A(f"v_mov_b32 v4, s{S_EP}"); A(f"v_mov_b32 v5, s{S_EP+1}")
        A(f"buffer_store_dwordx2 v[4:5], v3, s[36:39], 0 offen offset:{8*ns}")
    if DIAG:
        a, b, wg = [int(v) for v in DIAG.split(",")]
        A("s_waitcnt vmcnt(0)")
        stamp(A, 10)
        A("s_waitcnt lgkmcnt(0)")
        A(f"s_sub_u32 s{TMP0}, s{S_STB+2*b}, s{S_STB+2*a}")
        if wg >= 0:
            A(f"s_cmp_eq_u32 s2, {wg}")
            A(f"s_cselect_b32 s{TMP0}, s{TMP0}, 0")
        A(f"s_lshr_b32 s{TMP0}, s{TMP0}, 1")
        A(f"s_add_u32 s{TMP0}, s{TMP0}, 3000")
        A.label("L_diag")
        A("s_sleep 4")
        A(f"s_memrealtime s[{S_EP}:{S_EP+1}]")
        A("s_waitcnt lgkmcnt(0)")
        A(f"s_sub_u32 s{TMP1}, s{S_EP}, s98")
        A(f"s_cmp_lt_u32 s{TMP1}, s{TMP0}")
        A("s_cbranch_scc1 L_diag")
    A.label("L_end")
    A("s_endpgm")
    for k in spins:
        reg = S_MK + (k >> 2)
        A.label(f"L_spin{k}")
        A(f"buffer_load_dwordx2 v[20:21], v13, s[36:39], s{S_FL} offen sc1")
        A(f"s_add_u32 s{S_SPIN}, s{S_SPIN}, 1")
        A("s_waitcnt vmcnt(0)")
        A(f"v_cmp_eq_u64 s[{S_MK}:{S_MK+1}], s[{S_EP}:{S_EP+1}], v[20:21]")
        A(f"s_cmp_ge_u32 s{S_SPIN}, 0x40000")
        A(f"s_cbranch_scc1 L_back{k}")
        A(f"s_bfe_u32 s{TMP0}, s{reg}, {((k & 3) * 8) | (8 << 16)}")
        A(f"s_cmp_eq_u32 s{TMP0}, 0xff")
        A(f"s_cbranch_scc0 L_spin{k}")
        A(f"s_branch L_back{k}")

A = Asm()
A.raw(f"; @launch grid=(256,1,1) block=(512,1,1) lds={LDS_TOTAL}")
A.raw('.amdgcn_target "amdgcn-amd-amdhsa--gfx950"')
A.raw(".text")
A.raw(f".globl {KN}")
A.raw(".p2align 8")
A.raw(f".type {KN},@function")
A.label(KN)
Q = VQ()
prologue(A, Q)
path(A, 0, Q)
A("s_branch L_epi")
A.label("L_path1")
path(A, 1, Q)
A.label("L_epi")
epilogue1(A)
phase2(A)
slow_path(A)
A.label("L_code_end")
A.raw('.section .rodata,"a"')
A.raw(f""".p2align 6
.amdhsa_kernel {KN}
  .amdhsa_next_free_vgpr 256
  .amdhsa_next_free_sgpr 102
  .amdhsa_accum_offset 256
  .amdhsa_group_segment_fixed_size 0
  .amdhsa_kernarg_size 56
  .amdhsa_user_sgpr_count 2
  .amdhsa_user_sgpr_kernarg_segment_ptr 1
  .amdhsa_system_sgpr_workgroup_id_x 1
.end_amdhsa_kernel""")
open(OUT, "w").write("\n".join(A.L) + "\n")
```

```python
import sys

class Asm:
    def __init__(self): self.L = []
    def __call__(self, s): self.L.append("    " + s)
    def label(self, s): self.L.append(s + ":")
    def raw(self, s): self.L.append(s)

def vr(b, n=4): return f"v[{b}:{b+n-1}]"
OUT = sys.argv[1]
def opt(name, default):
    for a in sys.argv:
        if a.startswith("--" + name + "="): return a.split("=", 1)[1]
    return default
def pol(name, default):
    v = opt(name, default)
    return "" if v == "plain" else " " + v.replace("+", " ")
STAMPS = "--stamps" in sys.argv
S1ST = "--s1st" in sys.argv
DRST = "--drst" in sys.argv
XNT = pol("xnt", "plain")
SST = pol("sst", "nt")
OST = pol("ost", "nt")
PTF = pol("ptf", "plain")
ROT = opt("rot", "halfm")
FAST = opt("fast", "1") == "1"
PRE = opt("pre", "1") == "1"
CTOUCH = opt("ctouch", "1") == "1"
PFA = int(opt("pfa", "0"))
PFB = opt("pfb", "0") == "1"
SAHEAD = int(opt("sahead", "10"))
NPRE = int(opt("npre", "4"))
KN = "standalone__conformer_conv_module__speech_kernel"

NEG_LOG2E = 0xbfb8aa3b
STG = 49 * 1024
R = [0, STG, 2 * STG]
DW_OFF = 3 * STG
LDS_TOTAL = 163840
XOFF = 16384
HT_OFF = R[2]
HT_STRIDE = 560
W2POS = [R[2] + 36864, R[0], R[0] + 16384, R[0] + 32768, R[1], R[1] + 16384, R[1] + 32768, R[2]]
OSTG = R[2] + 16384
FLAG_OFF = 0x800000
STAMP_OFF = 0x900000

S_WAVE, S_MT, S_NT, S_ROT, S_NQ, S_XCC, S_T0, S_M3 = 44, 45, 46, 47, 48, 49, 50, 51
TMP0, TMP1, TMP2, TMP3 = 52, 53, 54, 55
S_M0W, S_M0X = 56, 57
S_EP = 58
S_SEL0, S_SEL1, S_SPIN, S_FAST = 60, 61, 62, 63
S_C = 64
S_STB = 66
S_CH = 92

DIAG = opt("diag", "")
def stamp(A, idx, force=False):
    if S1ST and not force and 3 <= idx <= 9: return
    if STAMPS or DIAG: A(f"s_memtime s[{S_STB+2*idx}:{S_STB+2*idx+1}]")

class VQ:
    def __init__(self): self.q = []
    def add(self, tag, n=1): self.q += [tag] * n
    def after(self, tag):
        idx = max(i for i, t in enumerate(self.q) if t == tag)
        return min(63, len(self.q) - 1 - idx)

def glu_sc(a, b, t):
    n = len(a); ops = []
    for i in range(n): ops.append(f"v_mul_f32 v{t[i]}, s{S_C}, v{b[i]}")
    for i in range(n): ops.append(f"v_exp_f32 v{t[i]}, v{t[i]}")
    for i in range(n): ops.append(f"v_add_f32 v{t[i]}, 1.0, v{t[i]}")
    for i in range(n): ops.append(f"v_rcp_f32 v{t[i]}, v{t[i]}")
    for i in range(n): ops.append(f"v_mul_f32 v{t[i]}, v{a[i]}, v{t[i]}")
    return ops
def glu_pk(a, b, t):
    n = len(a); ops = []
    for i in range(0, n, 2):
        assert b[i] % 2 == 0 and b[i+1] == b[i] + 1 and t[i] % 2 == 0 and a[i+1] == a[i] + 1 and a[i] % 2 == 0
        ops.append(f"v_pk_mul_f32 v[{t[i]}:{t[i]+1}], v[{b[i]}:{b[i]+1}], s[{S_C}:{S_C+1}]")
    for i in range(n): ops.append(f"v_exp_f32 v{t[i]}, v{t[i]}")
    for i in range(0, n, 2): ops.append(f"v_pk_add_f32 v[{t[i]}:{t[i]+1}], v[{t[i]}:{t[i]+1}], 1.0 op_sel_hi:[1,0]")
    for i in range(n): ops.append(f"v_rcp_f32 v{t[i]}, v{t[i]}")
    for i in range(0, n, 2): ops.append(f"v_pk_mul_f32 v[{t[i]}:{t[i]+1}], v[{a[i]}:{a[i]+1}], v[{t[i]}:{t[i]+1}]")
    return ops
def glu(pk, a, b, t, out):
    ops = (glu_pk if pk else glu_sc)(a, b, t)
    for i in range(len(a) // 2): ops.append(f"v_cvt_pk_bf16_f32 v{out[i]}, v{t[2*i]}, v{t[2*i+1]}")
    return ops

VX, VS, VW = 10, 14, 15
VXA, VWA = 18, 24
VW2, VDBG, VW2B = 27, 28, 29
ACC, XF, WF, TT, RRT = 32, 104, 176, 192, 224
DUM = 224

def chunk_regs(A, c):
    if ROT == "hyb" and c >= 2:
        A(f"s_lshl_b32 s{TMP1}, s{S_CH + c - 2}, 17")
        A(f"s_lshl_b32 s{TMP0}, s{S_CH + c - 2}, 7")
        return
    A(f"s_add_u32 s{TMP0}, s{S_ROT}, {c}")
    A(f"s_and_b32 s{TMP0}, s{TMP0}, 7")
    A(f"s_lshl_b32 s{TMP1}, s{TMP0}, 17")
    A(f"s_lshl_b32 s{TMP0}, s{TMP0}, 7")

def dma_stage(A, Q, c, mh):
    base = R[c % 3]
    chunk_regs(A, c)
    A(f"s_add_u32 s{TMP2}, s{TMP1}, 1024")
    if mh != 0:
        A(f"s_cmp_eq_u32 s{S_WAVE}, 7")
        A(f"s_cbranch_scc0 L_noS_{c}")
        A(f"s_mov_b32 m0, {base + XOFF + 32*1024}")
        A("s_nop 0")
        A(f"buffer_load_dwordx4 v{VS}, s[20:23], s{TMP0} offen{XNT} lds")
        A.label(f"L_noS_{c}")
    ops = []
    for part in range(2):
        ops.append((f"s_add_u32 m0, s{S_M0W}, {base + part*8192}", f"buffer_load_dwordx4 v{VW}, s[24:27], s{TMP1+part} offen lds"))
    for q in range(4):
        ops.append((f"s_add_u32 m0, s{S_M0X}, {base + q*1024}", f"buffer_load_dwordx4 v{VX+q}, s[20:23], s{TMP0} offen{XNT} lds"))
    if mh == 1: ops = ops[2:] + ops[:2]
    for m, l in ops:
        A(m); A("s_nop 0"); A(l)
    Q.add(f"st{c}", 6)

def w2_dma2(A, steps, vlo, vhi, dlo, dhi, sa=TMP0):
    for s_ in steps:
        A(f"s_add_u32 s{sa}, s{S_NT}, {s_}")
        A(f"s_and_b32 s{sa}, s{sa}, 7")
        A(f"s_lshl_b32 s{sa}, s{sa}, 16")
        A(f"s_add_u32 s{sa+1}, s{sa}, 128")
        for v, d in ((vlo, dlo), (vhi, dhi)):
            for part in range(2):
                A(f"s_add_u32 m0, s{S_M0W}, {W2POS[s_] + part*8192 + d}")
                A("s_nop 0")
                A(f"buffer_load_dwordx4 v{v}, s[40:43], s{sa+part} offen lds")

def prologue(A, Q):
    A("s_cmp_ge_u32 s2, 256")
    A("s_cbranch_scc1 L_end")
    stamp(A, 0)
    if STAMPS or DIAG: A("s_memrealtime s[98:99]")
    A("s_load_dwordx8 s[4:11], s[0:1], 0")
    A("s_load_dwordx4 s[12:15], s[0:1], 32")
    A("s_load_dwordx2 s[16:17], s[0:1], 48")
    if CTOUCH:
        A("s_getpc_b64 s[18:19]")
        A.label("L_pc")
        A("v_lshlrev_b32 v5, 6, v0")
        A("v_and_b32 v6, 1, v0")
        A("v_lshl_or_b32 v6, v6, 20, v5")
        A("v_cmp_gt_u32 vcc, L_code_end-L_pc, v6")
        A("s_and_saveexec_b64 s[90:91], vcc")
        A("s_cbranch_execz L_noct")
        A("global_load_dword v2, v5, s[18:19]")
        A.label("L_noct")
        A("s_mov_b64 exec, -1")
    A("v_lshrrev_b32 v7, 6, v0")
    A("v_and_b32 v1, 63, v0")
    A(f"v_readfirstlane_b32 s{S_WAVE}, v7")
    A(f"s_and_b32 s{S_ROT}, s2, 7")
    A(f"s_lshr_b32 s{TMP1}, s2, 3")
    A(f"s_lshr_b32 s{S_M3}, s{TMP1}, 3")
    A(f"s_lshl_b32 s{S_MT}, s{S_ROT}, 2")
    A(f"s_add_u32 s{S_MT}, s{S_MT}, s{S_M3}")
    A(f"s_and_b32 s{S_NT}, s{TMP1}, 7")
    if ROT == "mn":
        A(f"s_lshl_b32 s{S_ROT}, s{S_M3}, 1")
        A(f"s_add_u32 s{S_ROT}, s{S_ROT}, s{S_NT}")
    if ROT == "quarterm":
        A(f"s_and_b32 s{S_ROT}, s{S_NT}, 4")
        A(f"s_add_u32 s{S_ROT}, s{S_ROT}, s{S_M3}")
    if ROT == "half":
        A(f"s_and_b32 s{S_ROT}, s{S_NT}, 6")
    if ROT == "halfm2":
        A(f"s_and_b32 s{S_ROT}, s{S_NT}, 6")
        A(f"s_lshl_b32 s{TMP0}, s{S_M3}, 1")
        A(f"s_add_u32 s{S_ROT}, s{S_ROT}, s{TMP0}")
    if ROT == "halfmx":
        A(f"s_and_b32 s{TMP0}, s{S_NT}, 6")
        A(f"s_add_u32 s{S_ROT}, s{S_ROT}, s{TMP0}")
        A(f"s_add_u32 s{S_ROT}, s{S_ROT}, s{S_M3}")
    if ROT == "halfm":
        A(f"s_and_b32 s{S_ROT}, s{S_NT}, 6")
        A(f"s_add_u32 s{S_ROT}, s{S_ROT}, s{S_M3}")
    A(f"s_and_b32 s{S_T0}, s{S_MT}, 15")
    A(f"s_mul_i32 s{S_T0}, s{S_T0}, 250")
    A(f"s_sub_i32 s{S_T0}, s{S_T0}, 7")
    A(f"s_lshl_b32 s{S_M0W}, s{S_WAVE}, 10")
    A(f"s_lshl_b32 s{S_M0X}, s{S_WAVE}, 12")
    A(f"s_add_u32 s{S_M0X}, s{S_M0X}, {XOFF}")
    A("v_lshrrev_b32 v5, 3, v1")
    A("v_and_b32 v6, 7, v1")
    A("v_lshrrev_b32 v21, 1, v5")
    A("v_and_b32 v22, 1, v21")
    A("v_lshlrev_b32 v22, 2, v22")
    A(f"s_and_b32 s{TMP0}, s{S_WAVE}, 1")
    A(f"s_lshl_b32 s{TMP0}, s{TMP0}, 1")
    A(f"v_or_b32 v22, s{TMP0}, v22")
    A("v_xor_b32 v22, v22, v6")
    A("v_lshlrev_b32 v22, 4, v22")
    A(f"v_lshl_add_u32 v{VW}, v5, 11, v22")
    A(f"v_lshl_add_u32 v{VW2}, v5, 10, v22")
    A(f"s_lshl_b32 s{TMP0}, s{S_WAVE}, 14")
    A(f"s_lshl_b32 s{TMP1}, s{S_NT}, 7")
    A(f"s_add_u32 s{TMP0}, s{TMP0}, s{TMP1}")
    A(f"v_add_u32 v{VW}, s{TMP0}, v{VW}")
    A("v_lshrrev_b32 v7, 2, v5")
    A("v_and_b32 v8, 3, v5")
    A("v_lshl_add_u32 v7, v7, 3, v8")
    A(f"s_lshl_b32 s{TMP0}, s{S_WAVE}, 5")
    A(f"s_add_i32 s{TMP0}, s{TMP0}, s{S_T0}")
    A(f"v_add_u32 v7, s{TMP0}, v7")
    A("v_xor_b32 v8, v21, v6")
    A("v_lshlrev_b32 v8, 4, v8")
    A("v_xor_b32 v9, 64, v8")
    A("v_mov_b32 v20, 0x80000000")
    A(f"v_lshl_add_u32 v{VX}, v7, 10, v8")
    A(f"v_lshl_add_u32 v{VX+1}, v7, 10, v9")
    A(f"v_add_u32 v{VX+2}, 0x1000, v{VX}")
    A(f"v_add_u32 v{VX+3}, 0x5000, v{VX+1}")
    A(f"v_add_u32 v{VX+1}, 0x4000, v{VX+1}")
    A("v_cmp_gt_i32 vcc, 0, v7")
    A("v_cmp_gt_i32 s[90:91], -4, v7")
    A(f"s_add_i32 s{TMP0}, s{S_T0}, 256")
    A(f"v_add_u32 v21, s{TMP0}, v5")
    A(f"v_cndmask_b32 v{VX}, v{VX}, v20, vcc")
    A(f"v_cndmask_b32 v{VX+2}, v{VX+2}, v20, s[90:91]")
    A(f"v_lshl_add_u32 v{VS}, v21, 10, v8")
    A(f"s_lshr_b32 s{TMP0}, s{S_MT}, 4")
    A(f"s_mul_i32 s{TMP0}, s{TMP0}, 4096000")
    A("s_mov_b32 s22, 4096000"); A("s_mov_b32 s23, 0x20000")
    A("s_mov_b32 s26, 1048576"); A("s_mov_b32 s27, 0x20000")
    A("s_waitcnt lgkmcnt(0)")
    A(f"s_add_u32 s20, s4, s{TMP0}"); A("s_addc_u32 s21, s5, 0")
    A("s_mov_b32 s24, s6"); A("s_mov_b32 s25, s7")
    stamp(A, 1)
    dma_stage(A, Q, 0, None)
    A("s_mov_b32 s28, s8"); A("s_mov_b32 s29, s9"); A("s_mov_b32 s30, 15360"); A("s_mov_b32 s31, 0x20000")
    A("v_lshrrev_b32 v21, 3, v0")
    A("v_subrev_u32 v22, 7, v21")
    A("v_lshlrev_b32 v23, 10, v22")
    A("v_lshl_add_u32 v23, v6, 4, v23")
    A(f"s_lshl_b32 s{TMP3}, s{S_NT}, 7")
    A(f"v_add_u32 v23, s{TMP3}, v23")
    A("v_cmp_gt_i32 vcc, 0, v22")
    A("v_mul_u32_u24 v16, 144, v21")
    A("v_lshl_add_u32 v16, v6, 4, v16")
    A("v_cndmask_b32 v23, v23, v20, vcc")
    A(f"v_add_u32 v16, {DW_OFF}, v16")
    if PFA:
        A(f"s_mul_i32 s{TMP0}, s{S_NT}, 33")
        A(f"s_add_i32 s{TMP0}, s{TMP0}, s{S_T0}")
        A(f"v_add_u32 v21, s{TMP0}, v1")
        A(f"v_lshlrev_b32 v17, 10, v21")
        A("v_cmp_gt_i32 vcc, 0, v21")
        A("v_lshrrev_b32 v22, 1, v1")
        A("v_lshlrev_b32 v22, 11, v22")
        A(f"v_cndmask_b32 v17, v17, v20, vcc")
        A("v_and_b32 v21, 1, v1")
        A(f"v_lshl_add_u32 v22, v21, 10, v22")
        A(f"s_lshl_b32 s{TMP0}, s{S_M3}, 15")
        A(f"s_add_u32 s{TMP0}, s{TMP0}, s{TMP3}")
        A(f"v_add_u32 v22, s{TMP0}, v22")
        A(f"s_add_u32 s{TMP0}, s{S_ROT}, s{S_WAVE}")
        A(f"s_and_b32 s{TMP0}, s{TMP0}, 7")
        A(f"s_lshl_b32 s{TMP1}, s{TMP0}, 17")
        A(f"s_lshl_b32 s{TMP0}, s{TMP0}, 7")
    A("s_barrier")
    if PFA:
        A(f"s_cmp_lt_u32 s{S_WAVE}, {PFA}")
        A("s_cbranch_scc1 L_nopfa")
        A("s_mov_b64 exec, 0xffffffff")
        A(f"buffer_load_dword v2, v22, s[24:27], s{TMP1} offen")
        A("s_mov_b32 exec_hi, 1")
        A(f"buffer_load_dword v2, v17, s[20:23], s{TMP0} offen{XNT}")
        A("s_mov_b64 exec, -1")
        A.label("L_nopfa")
        if PFB: A("s_barrier")
    A(f"s_cmp_lt_u32 s{S_WAVE}, 4")
    A("s_cbranch_scc0 L_nodw")
    A(f"buffer_load_dwordx4 {vr(DUM)}, v23, s[28:31], 0 offen")
    A.label("L_nodw")
    dma_stage(A, Q, 1, None)
    A("s_mov_b32 s36, s16"); A("s_mov_b32 s37, s17"); A("s_mov_b32 s38, 0x1000000"); A("s_mov_b32 s39, 0x20000")
    A("s_mov_b32 s40, s10"); A("s_mov_b32 s41, s11"); A("s_mov_b32 s42, 524288"); A("s_mov_b32 s43, 0x20000")
    A(f"s_mul_i32 s{TMP0}, s{S_MT}, 256000")
    A(f"s_add_u32 s32, s12, s{TMP0}"); A("s_addc_u32 s33, s13, 0"); A("s_mov_b32 s34, 256000"); A("s_mov_b32 s35, 0x20000")
    A(f"s_and_b32 s{S_NQ}, s{S_WAVE}, 3")
    A("v_and_b32 v3, 15, v1")
    A("v_lshrrev_b32 v4, 4, v1")
    if ROT == "hyb":
        A(f"s_lshl_b32 s{TMP0}, s{S_M3}, 1")
        A(f"s_add_u32 s{TMP0}, s{TMP0}, s{S_NT}")
        for _ in range(2):
            A(f"s_sub_u32 s{TMP1}, s{TMP0}, 6")
            A(f"s_cmp_ge_u32 s{TMP0}, 6")
            A(f"s_cselect_b32 s{TMP0}, s{TMP1}, s{TMP0}")
        for k in range(6):
            A(f"s_add_u32 s{TMP1}, s{TMP0}, {k}")
            A(f"s_sub_u32 s{TMP2}, s{TMP1}, 6")
            A(f"s_cmp_ge_u32 s{TMP1}, 6")
            A(f"s_cselect_b32 s{TMP1}, s{TMP2}, s{TMP1}")
            A(f"s_add_u32 s{TMP1}, s{TMP1}, s{S_ROT}")
            A(f"s_add_u32 s{TMP1}, s{TMP1}, 2")
            A(f"s_and_b32 s{S_CH + k}, s{TMP1}, 7")
    A(f"s_lshl_b32 s{TMP0}, s{S_MT}, 3")
    A(f"v_mov_b32 v{VDBG}, s{TMP0}")
    A(f"s_getreg_b32 s{S_XCC}, hwreg(HW_REG_XCC_ID, 0, 4)")
    A(f"s_and_b32 s{S_XCC}, s{S_XCC}, 7")
    A(f"s_lshl_b32 s{S_XCC}, s{S_XCC}, 2")
    A(f"s_cmp_eq_u32 s{S_WAVE}, 5")
    A("s_cbranch_scc0 L_nohello")
    A(f"s_lshl_b32 s{TMP0}, 1, s{S_XCC}")
    A(f"v_mov_b32 v21, s{TMP0}")
    A("s_mov_b64 exec, 1")
    A(f"global_atomic_add v{VDBG}, v21, s[14:15] offset:4 sc1")
    A(f"s_cmp_eq_u32 s{S_NT}, 0")
    A("s_cbranch_scc0 L_noep")
    A(f"s_memrealtime s[{S_EP}:{S_EP+1}]")
    A("s_waitcnt lgkmcnt(0)")
    A(f"s_lshr_b64 s[{S_EP}:{S_EP+1}], s[{S_EP}:{S_EP+1}], 6")
    A(f"s_or_b32 s{S_EP}, s{S_EP}, 0x80000000")
    A(f"v_mov_b32 v21, s{S_EP}")
    A(f"global_store_dword v{VDBG}, v21, s[14:15] sc1")
    A.label("L_noep")
    A("s_mov_b64 exec, -1")
    A.label("L_nohello")
    A(f"s_lshl_b32 s{TMP0}, s{S_WAVE}, 13")
    A(f"s_and_b32 s{TMP1}, s{S_NT}, 3")
    A(f"s_lshl_b32 s{TMP1}, s{TMP1}, 8")
    A(f"s_add_u32 s{TMP0}, s{TMP0}, s{TMP1}")
    A(f"v_add_u32 v{VW2}, s{TMP0}, v{VW2}")
    A(f"v_xor_b32 v{VW2B}, 0x8000, v{VW2}")
    A(f"s_mov_b32 s{S_SEL0}, 0x05040100")
    A(f"s_mov_b32 s{S_SEL1}, 0x07060302")
    A(f"s_mov_b32 s{S_C}, 0x{NEG_LOG2E:x}")
    A(f"s_mov_b32 s{S_C+1}, 0x{NEG_LOG2E:x}")
    A("v_lshrrev_b32 v5, 3, v3")
    A("v_and_b32 v6, 7, v3")
    A("v_lshlrev_b32 v5, 10, v5")
    A("v_lshl_add_u32 v5, v6, 7, v5")
    A("v_lshrrev_b32 v6, 1, v3")
    A("v_xor_b32 v6, v6, v4")
    A("v_lshl_add_u32 v7, v6, 4, v5")
    A("v_xor_b32 v8, 64, v7")
    for sl in range(3):
        A(f"v_add_u32 v{VXA+sl*2}, {R[sl] + XOFF}, v7")
        A(f"v_add_u32 v{VXA+sl*2+1}, {R[sl] + XOFF}, v8")
    A("v_lshrrev_b32 v5, 2, v3")
    A("v_and_b32 v6, 3, v3")
    A("v_lshrrev_b32 v7, 1, v6")
    A(f"s_lshl_b32 s{TMP0}, s{S_NQ}, 1")
    A(f"v_or_b32 v7, s{TMP0}, v7")
    A("v_lshrrev_b32 v8, 1, v5")
    A("v_lshlrev_b32 v8, 2, v8")
    A("v_and_b32 v9, 1, v4")
    A("v_lshl_or_b32 v8, v9, 1, v8")
    A("v_xor_b32 v7, v7, v8")
    A("v_lshlrev_b32 v7, 4, v7")
    A("v_lshl_add_u32 v7, v5, 7, v7")
    A("v_lshl_add_u32 v7, v4, 10, v7")
    A("v_and_b32 v6, 1, v6")
    A("v_lshl_add_u32 v7, v6, 3, v7")
    for sl in range(3):
        A(f"v_add_u32 v{VWA+sl}, {R[sl]}, v7")
    A("v_lshlrev_b32 v5, 3, v4")
    A("v_sub_u32 v5, v5, v3")
    A("v_add_u32 v5, 7, v5")
    A("v_cmp_lt_u32 vcc, 21, v5")
    A("v_mov_b32 v6, 22")
    A(f"s_lshl_b32 s{TMP0}, s{S_WAVE}, 4")
    A("v_cndmask_b32 v5, v5, v6, vcc")
    A("v_mul_u32_u24 v5, 144, v5")
    A(f"s_add_u32 s{TMP0}, s{TMP0}, {DW_OFF}")
    A(f"v_add_u32 v9, s{TMP0}, v5")
    A(f"s_cmp_ge_u32 s{S_WAVE}, 4")
    A("s_cbranch_scc1 L_path1")

def path(A, mh, Q0):
    NT = 9 if mh == 0 else 8
    Q = VQ(); Q.q = list(Q0.q)
    A(f"s_waitcnt vmcnt({Q.after('st0')})")
    if mh == 0:
        A(f"ds_write_b128 v16, {vr(DUM)}")
        A("s_waitcnt lgkmcnt(0)")
    A("s_barrier")
    stamp(A, 2)
    def reads(j):
        c, ks = j >> 1, j & 1
        sl, buf = c % 3, j & 1
        Rr = []
        for part in range(2):
            for h in range(2):
                d = WF + buf * 8 + part * 4 + h * 2
                Rr.append(f"ds_read_b64_tr_b16 v[{d}:{d+1}], v{VWA+sl} offset:{part*8192 + ks*4096 + h*512}")
        for tt in range(NT):
            tile = (mh * 8 + tt) if tt < 8 else 16
            d = XF + buf * 36 + tt * 4
            Rr.append(f"ds_read_b128 {vr(d)}, v{VXA+sl*2+ks} offset:{tile*2048}")
        return Rr
    def tail_loads():
        A(f"global_load_dwordx2 v[30:31], v{VDBG}, s[14:15] sc1")
        Q.add("misc", 1)
        if mh == 0:
            w2_dma2(A, [0], VW2, VW2B, 0, 4096)
            Q.add("w2", 4)
            A(f"s_cmp_lt_u32 s{S_NQ}, 2")
            A("s_cbranch_scc0 L_nopf_W2all")
            A(f"s_lshr_b32 s{TMP0}, s2, 3")
            A(f"s_lshl_b32 s{TMP0}, s{TMP0}, 1")
            A(f"s_add_u32 s{TMP0}, s{TMP0}, s{S_NQ}")
            A(f"s_lshl_b32 s{TMP0}, s{TMP0}, 13")
            A("v_lshlrev_b32 v5, 7, v1")
            A(f"buffer_load_dword v2, v5, s[40:43], s{TMP0} offen")
            A.label("L_nopf_W2all")
            if PRE:
                A(f"s_lshl_b32 s{TMP2}, s{S_NT}, 3")
                A(f"s_add_u32 s{TMP2}, s{TMP2}, s{S_WAVE}")
                A(f"s_lshl_b32 s{TMP2}, s{TMP2}, 9")
                A(f"s_lshl_b32 s{TMP3}, s{S_MT}, 18")
                A(f"s_add_u32 s{TMP2}, s{TMP2}, s{TMP3}")
                A("v_lshrrev_b32 v5, 2, v1")
                A("v_and_b32 v5, 7, v5")
                A("v_lshlrev_b32 v5, 15, v5")
                A("v_and_b32 v6, 3, v1")
                A("v_lshl_add_u32 v5, v6, 7, v5")
                A("v_lshrrev_b32 v6, 5, v1")
                A("v_lshl_add_u32 v5, v6, 11, v5")
                A(f"buffer_load_dword v2, v5, s[36:39], s{TMP2} offen{PTF}")
                A(f"s_mov_b64 exec, 15")
                A(f"s_lshl_b32 s{TMP2}, s{S_MT}, 9")
                A(f"s_add_u32 s{TMP2}, s{TMP2}, {FLAG_OFF}")
                A(f"buffer_load_dword v2, v5, s[36:39], s{TMP2} offen{PTF}")
                A(f"s_mov_b64 exec, -1")
                Q.add("misc", 2)
    for r in reads(0): A(r)
    if mh == 1: dma_stage(A, Q, 2, mh)
    extra = []
    for j in range(16):
        buf = j & 1
        cn = (j + 1) >> 1
        boundary = (j & 1) == 1 and j < 15 and not (mh == 0 and j == 13)
        if boundary:
            A(f"s_waitcnt vmcnt({Q.after(f'st{cn}')}) lgkmcnt(0)")
            A("s_barrier")
            if S1ST: stamp(A, 2 + cn, True)
            if cn == 6:
                if mh == 1:
                    A("s_setprio 3")
                    tail_loads()
                else:
                    tail_loads()
                    A(f"s_waitcnt vmcnt({Q.after('st7')})")
                    A("s_barrier")
                    if S1ST: stamp(A, 9, True)
                    A("s_setprio 1")
        stg = None
        if mh == 0 and (j & 1) == 1 and j < 15: stg = cn + 2
        if mh == 1 and (j & 1) == 0 and j >= 2 and j != 10: stg = (j >> 1) + 2
        if mh == 1 and j == 9: stg = 7
        if stg is not None and stg < 8: dma_stage(A, Q, stg, mh)
        Rn = reads(j + 1) if j < 15 else []
        if j == 2:
            Rn = [f"ds_read_b128 {vr(RRT + 4*e)}, v9 offset:{e*144}" for e in range(8)] + Rn
        if j == 3:
            extra = [f"v_perm_b32 v{TT + 4*jj + d}, v{RRT + 4*(2*d+1) + (jj>>1)}, v{RRT + 4*(2*d) + (jj>>1)}, s{S_SEL0 + (jj&1)}" for jj in range(8) for d in range(4)]
        issued = 0
        for tt in range(NT):
            for part in range(2):
                if part == 0 and not boundary:
                    A(f"s_waitcnt lgkmcnt({min(15, (NT - 1 - tt) + issued)})")
                a = ACC + (tt * 2 + part) * 4
                cin = "0" if j == 0 else vr(a)
                A(f"v_mfma_f32_16x16x32_bf16 {vr(a)}, {vr(XF + buf*36 + tt*4)}, {vr(WF + buf*8 + part*4)}, {cin}")
                k = 2 if (j == 2 and issued < 10) else 1
                for _ in range(k):
                    if issued < len(Rn):
                        A(Rn[issued]); issued += 1
                    elif extra:
                        A(extra.pop(0))
        assert issued == len(Rn)
        if j == 0 and mh == 0: dma_stage(A, Q, 2, mh)
    assert not extra
    A("s_setprio 0")
    stamp(A, 3)
    pk = (mh == 0)
    A(f"s_lshl_b32 s{TMP0}, s{S_NQ}, 4")
    A(f"v_add_u32 v5, s{TMP0}, v3")
    A(f"v_mul_u32_u24 v5, {HT_STRIDE}, v5")
    A(f"v_add_u32 v5, {HT_OFF}, v5")
    A("v_lshl_add_u32 v6, v4, 4, v5")
    A("v_lshl_add_u32 v7, v4, 3, v5")
    A("s_nop 1")
    T0 = XF
    for p in range(4):
        a = [ACC + ((2*p + o) * 2 + 0) * 4 + r for o in range(2) for r in range(4)]
        b = [ACC + ((2*p + o) * 2 + 1) * 4 + r for o in range(2) for r in range(4)]
        O = T0 + 8 + 4 * (p & 1)
        for op in glu(pk, a, b, [T0 + i for i in range(8)], [O + i for i in range(4)]): A(op)
        A(f"ds_write_b128 v6, {vr(O)} offset:{(4*mh + p) * 64}")
    if mh == 0:
        a = [ACC + 16 * 4 + r for r in range(4)]
        b = [ACC + 17 * 4 + r for r in range(4)]
        O = T0 + 16
        A("v_cmp_gt_u32 vcc, 2, v4")
        for op in glu(pk, a, b, [T0 + i for i in range(4)], [O, O + 1]): A(op)
        A(f"v_cndmask_b32 v{O}, 0, v{O}, vcc")
        A(f"v_cndmask_b32 v{O+1}, 0, v{O+1}, vcc")
        A(f"ds_write_b64 v7, v[{O}:{O+1}] offset:512")
        A(f"s_waitcnt vmcnt({Q.after('w2')})")

def epilogue1(A):
    A(f"s_mul_i32 s{TMP0}, s{S_WAVE}, {8*HT_STRIDE}")
    A(f"s_add_u32 s{TMP0}, s{TMP0}, {HT_OFF}")
    A("v_lshlrev_b32 v5, 5, v3")
    A("v_lshl_add_u32 v5, v4, 4, v5")
    A(f"v_add_u32 v5, s{TMP0}, v5")
    A(f"s_lshl_b32 s{TMP2}, s{S_NT}, 3")
    A(f"s_add_u32 s{TMP2}, s{TMP2}, s{S_WAVE}")
    A(f"s_lshl_b32 s{TMP1}, s{TMP2}, 3")
    A(f"v_mov_b32 v11, s{TMP1}")
    A(f"s_lshl_b32 s{TMP2}, s{TMP2}, 9")
    A(f"s_lshl_b32 s{TMP3}, s{S_MT}, 18")
    A(f"s_add_u32 s{TMP2}, s{TMP2}, s{TMP3}")
    A("v_lshlrev_b32 v6, 16, v4")
    A("v_lshl_add_u32 v6, v3, 4, v6")
    A("v_add_u32 v7, 0x8000, v6")
    A(f"s_lshl_b32 s{TMP3}, s{S_MT}, 9")
    A(f"s_add_u32 s{TMP3}, s{TMP3}, {FLAG_OFF}")
    A("s_waitcnt lgkmcnt(0)")
    A("s_barrier")
    stamp(A, 4)
    HA, Y, T0, O0 = 32, 64, 96, 160
    for j in range(8):
        A(f"ds_read_b128 {vr(HA + 4*j)}, v5 offset:{j*HT_STRIDE}")
    for j in range(8):
        A(f"s_waitcnt lgkmcnt({7-j})")
        A(f"v_mfma_f32_16x16x32_bf16 {vr(Y + 4*j)}, {vr(HA + 4*j)}, {vr(TT + 4*j)}, 0")
    A("s_waitcnt vmcnt(0)")
    if DRST: stamp(A, 2)
    A(f"v_readfirstlane_b32 s{S_EP}, v30")
    A(f"v_readfirstlane_b32 s{S_FAST}, v31")
    A(f"s_lshl_b32 s{TMP0}, 8, s{S_XCC}")
    A(f"s_cmp_eq_u32 s{S_FAST}, s{TMP0}")
    A(f"s_cselect_b32 s{S_FAST}, {1 if FAST else 0}, 0")
    A("s_nop 2")
    for half in range(2):
        y = [Y + 4*j + 2*half + rr for j in range(8) for rr in range(2)]
        t = [T0 + 16*half + i for i in range(16)]
        for op in glu_pk(y, y, t): A(op)
        for rr in range(2):
            for i in range(4):
                A(f"v_cvt_pk_bf16_f32 v{O0 + 4*(2*half+rr) + i}, v{t[2*(2*i) + rr]}, v{t[2*(2*i+1) + rr]}")
    A(f"s_cmp_lg_u32 s{S_EP}, 0")
    A(f"s_cselect_b32 s{S_FAST}, s{S_FAST}, 0")
    A(f"s_not_b32 s{S_EP+1}, s{S_EP}")
    A(f"v_mov_b32 v16, s{S_EP}")
    A(f"v_mov_b32 v17, s{S_EP+1}")
    A(f"s_cmp_eq_u32 s{S_FAST}, 1")
    A("s_cbranch_scc0 L_slow")
    for r in range(4):
        A(f"buffer_store_dwordx4 {vr(O0 + 4*r)}, v{6 + (r>>1)}, s[36:39], s{TMP2} offen offset:{(r&1)*256}{SST}")
    stamp(A, 5)
    A(f"s_cmp_ge_u32 s{S_WAVE}, 4")
    A("s_cbranch_scc0 L_Afast")
    A("s_mov_b64 exec, 1")
    A("s_waitcnt vmcnt(0)")
    if DRST: stamp(A, 1)
    A(f"buffer_store_dwordx2 v[16:17], v11, s[36:39], s{TMP3} offen")
    A("s_mov_b64 exec, -1")
    A.label("L_Btail")
    A("s_barrier")
    stamp(A, 6)
    w2_dma2(A, range(NPRE + 1, 8), VW2, VW2B, 0, -4096)
    A("s_waitcnt vmcnt(0)")
    A("s_barrier")
    if STAMPS:
        A("s_waitcnt lgkmcnt(0)")
        A(f"s_cmp_eq_u32 s{S_WAVE}, 4")
        A("s_cbranch_scc0 L_end")
        A("s_mov_b64 exec, 1")
        A(f"s_mul_i32 s{TMP0}, s2, {8*8}")
        A(f"s_add_u32 s{TMP0}, s{TMP0}, {STAMP_OFF + 0x40000}")
        A(f"v_mov_b32 v3, s{TMP0}")
        for j in range(7):
            A(f"v_mov_b32 v4, s{S_STB+2*j}"); A(f"v_mov_b32 v5, s{S_STB+2*j+1}")
            A(f"buffer_store_dwordx2 v[4:5], v3, s[36:39], 0 offen offset:{8*j}")
            A("s_nop 1")
    A("s_endpgm")
    A.label("L_Afast")
    w2_dma2(A, range(1, NPRE + 1), VW2, VW2B, 0, 4096)
    A("s_mov_b64 exec, 1")
    A(f"s_waitcnt vmcnt({4*NPRE})")
    if DRST: stamp(A, 1)
    A(f"buffer_store_dwordx2 v[16:17], v11, s[36:39], s{TMP3} offen")
    A("s_mov_b64 exec, -1")
    A.label("L_Ajoin")

def slow_path(A):
    O0 = 160
    A.label("L_slow")
    for r in range(4):
        A(f"buffer_store_dwordx4 {vr(O0 + 4*r)}, v{6 + (r>>1)}, s[36:39], s{TMP2} offen offset:{(r&1)*256} sc1")
    A(f"s_mov_b32 s{S_SPIN}, 0")
    A.label("L_ep_chk")
    A(f"s_cmp_lg_u32 s{S_EP}, 0")
    A("s_cbranch_scc1 L_ep_ok")
    A(f"global_load_dwordx2 v[30:31], v{VDBG}, s[14:15] sc1")
    A(f"s_add_u32 s{S_SPIN}, s{S_SPIN}, 1")
    A("s_waitcnt vmcnt(0)")
    A(f"v_readfirstlane_b32 s{S_EP}, v30")
    A(f"s_cmp_lt_u32 s{S_SPIN}, 0x40000")
    A("s_cbranch_scc1 L_ep_chk")
    A.label("L_ep_ok")
    A(f"s_not_b32 s{S_EP+1}, s{S_EP}")
    A(f"v_mov_b32 v16, s{S_EP}")
    A(f"v_mov_b32 v17, s{S_EP+1}")
    A("s_mov_b64 exec, 1")
    A("s_waitcnt vmcnt(0)")
    A(f"buffer_store_dwordx2 v[16:17], v11, s[36:39], s{TMP3} offen sc1")
    A("s_mov_b64 exec, -1")
    A(f"s_cmp_ge_u32 s{S_WAVE}, 4")
    A("s_cbranch_scc1 L_Btail")
    w2_dma2(A, range(1, NPRE + 1), VW2, VW2B, 0, 4096)
    A("s_waitcnt vmcnt(0)")
    A("s_branch L_Ajoin")

def phase2(A):
    SF, ACC2, WF2 = 128, 64, 32
    S_FL = TMP2
    A(f"s_mov_b32 s{S_FL}, s{TMP3}")
    A(f"s_lshr_b32 s{TMP0}, s{S_NT}, 2")
    A(f"s_lshl_b32 s{TMP0}, s{TMP0}, 2")
    A(f"s_add_u32 s{TMP0}, s{TMP0}, s{S_WAVE}")
    A(f"s_lshl_b32 s{TMP3}, s{TMP0}, 15")
    A(f"s_lshl_b32 s{TMP1}, s{S_MT}, 18")
    A(f"s_add_u32 s{TMP1}, s{TMP1}, s{TMP3}")
    A("v_lshlrev_b32 v12, 4, v1")
    A(f"v_add_u32 v12, s{TMP1}, v12")
    A("v_lshrrev_b32 v5, 2, v3")
    A("v_and_b32 v6, 3, v3")
    A("v_lshrrev_b32 v7, 1, v6")
    A("v_and_b32 v8, 1, v4")
    A("v_lshl_or_b32 v7, v8, 1, v7")
    A("v_lshrrev_b32 v8, 1, v5")
    A("v_lshlrev_b32 v8, 2, v8")
    A("v_lshrrev_b32 v9, 1, v4")
    A("v_lshl_or_b32 v8, v9, 1, v8")
    A("v_xor_b32 v7, v7, v8")
    A("v_lshlrev_b32 v7, 4, v7")
    A("v_lshl_add_u32 v7, v5, 7, v7")
    A("v_lshl_add_u32 v7, v9, 10, v7")
    A("v_and_b32 v6, 1, v6")
    A("v_lshl_add_u32 v22, v6, 3, v7")
    A("v_xor_b32 v23, 64, v22")
    for wdw in (1, 2):
        A(f"v_add_u32 v{22+2*wdw}, {wdw*0x10000}, v22")
        A(f"v_add_u32 v{23+2*wdw}, {wdw*0x10000}, v23")
    for s_ in range(8):
        A(f"s_add_u32 s{TMP0}, s{S_NT}, {s_}")
        A(f"s_and_b32 s{TMP0}, s{TMP0}, 7")
        A(f"s_lshl_b32 s{20+s_}, s{TMP0}, 12")
    A(f"s_lshl_b32 s{TMP0}, s{S_NT}, 3")
    A(f"v_add_u32 v13, s{TMP0}, v1")
    A("v_and_b32 v13, 63, v13")
    A("v_lshlrev_b32 v13, 3, v13")
    A(f"s_mov_b32 s{S_SPIN}, 0")
    def reads(j):
        c, kq = j >> 2, j & 3
        buf = j & 1
        Rr = []
        for ct in range(4):
            part, ctp = ct >> 1, ct & 1
            for h in range(2):
                off = W2POS[c] + part * 8192 + kq * 2048 + h * 512
                base = 22 + ctp + 2 * (off >> 16)
                d = WF2 + buf * 16 + ct * 4 + h * 2
                Rr.append(f"ds_read_b64_tr_b16 v[{d}:{d+1}], v{base} offset:{off & 0xffff}")
        return Rr
    def sload(j):
        return f"buffer_load_dwordx4 {vr(SF + j*4)}, v12, s[36:39], s{20 + (j>>2)} offen offset:{(j&3)*1024} sc1"
    for r in reads(0): A(r)
    A("s_waitcnt vmcnt(1)")
    A("s_barrier")
    stamp(A, 6)
    for j in range(4): A(sload(j))
    A(f"buffer_load_dwordx2 v[20:21], v13, s[36:39], s{S_FL} offen sc1")
    S_MK = 28
    spins = []
    def check(k):
        reg = S_MK + (k >> 2)
        A(f"s_bfe_u32 s{TMP0}, s{reg}, {((k & 3) * 8) | (8 << 16)}")
        A(f"s_cmp_eq_u32 s{TMP0}, 0xff")
        A(f"s_cbranch_scc0 L_spin{k}")
        A.label(f"L_back{k}")
        spins.append(k)
    def step(j, vm, pre=None):
        buf = j & 1
        Rn = reads(j + 1) if j < 31 else []
        for ct in range(4):
            w = f"lgkmcnt({6 if j < 31 else 6 - 2*ct})"
            if ct == 0 and vm is not None: w = f"vmcnt({vm}) " + w
            A(f"s_waitcnt {w}")
            if j == 4 * (NPRE + 1) - 1 and ct == 0:
                A("s_barrier")
            a = ACC2 + ct * 16
            cin = "0" if j == 0 else vr(a, 16)
            A(f"v_mfma_f32_32x32x16_bf16 {vr(a,16)}, {vr(WF2 + buf*16 + ct*4)}, {vr(SF + j*4)}, {cin}")
            for r in Rn[2*ct:2*ct+2]: A(r)
            if pre: pre(ct)
    step(0, 4)
    A("s_waitcnt vmcnt(0)")
    A(f"v_cmp_eq_u64 s[{S_MK}:{S_MK+1}], s[{S_EP}:{S_EP+1}], v[20:21]")
    nissued = [4]
    def issue_upto(n):
        while nissued[0] < min(32, n):
            jj = nissued[0]
            if jj % 4 == 0: check(jj // 4)
            A(sload(jj)); nissued[0] += 1
    for j in range(1, 32):
        target = min(32, j + 1 + SAHEAD)
        vm = None if j < 4 else nissued[0] - 1 - j
        step(j, vm, lambda ct: issue_upto(min(target, nissued[0] + 2)))
        if j == 1: stamp(A, 7)
        if j == 4: stamp(A, 8)
    stamp(A, 9)
    A("v_and_b32 v5, 31, v1")
    A("v_lshrrev_b32 v6, 5, v1")
    A("v_and_b32 v7, 7, v5")
    A("v_xor_b32 v7, v7, v6")
    A("v_lshlrev_b32 v7, 4, v7")
    A("v_lshl_add_u32 v7, v5, 7, v7")
    A(f"s_lshl_b32 s{TMP0}, s{S_WAVE}, 12")
    A(f"s_add_u32 s{TMP0}, s{TMP0}, {OSTG}")
    A(f"v_add_u32 v7, s{TMP0}, v7")
    for x in (1, 2, 3): A(f"v_xor_b32 v{7+x}, {32*x}, v7")
    A("v_lshrrev_b32 v5, 3, v1")
    A("v_and_b32 v6, 7, v1")
    A("v_xor_b32 v11, v5, v6")
    A("v_lshlrev_b32 v11, 4, v11")
    A("v_lshl_add_u32 v11, v5, 7, v11")
    A(f"v_add_u32 v11, s{TMP0}, v11")
    A("v_lshlrev_b32 v12, 4, v6")
    A("v_lshl_add_u32 v12, v5, 10, v12")
    A(f"s_and_b32 s{TMP1}, s{S_NT}, 3")
    A(f"s_lshl_b32 s{TMP1}, s{TMP1}, 8")
    A(f"s_add_u32 s{TMP3}, s{TMP3}, s{TMP1}")
    P = 16
    for half in range(2):
        for ctp in range(2):
            for qq in range(2):
                a = ACC2 + (half * 2 + ctp) * 16 + qq * 8
                O = P + 4 * (ctp * 2 + qq)
                for i in range(4): A(f"v_cvt_pk_bf16_f32 v{O+i}, v{a+2*i}, v{a+2*i+1}")
                A("s_nop 1")
                A(f"v_permlane32_swap_b32 v{O}, v{O+2}")
                A(f"v_permlane32_swap_b32 v{O+1}, v{O+3}")
                A(f"ds_write_b128 v{7 + 2*ctp + qq}, {vr(O)}")
        A("s_waitcnt lgkmcnt(0)")
        for i in range(4): A(f"ds_read_b128 {vr(32 + 16*half + 4*i)}, v11 offset:{i*1024}")
        for i in range(4):
            A(f"s_waitcnt lgkmcnt({3-i})")
            A(f"s_add_u32 s{TMP0}, s{TMP3}, {i*8192 + half*128}")
            A(f"buffer_store_dwordx4 {vr(32 + 16*half + 4*i)}, v12, s[32:35], s{TMP0} offen{OST}")
    if STAMPS:
        ns = 12
        A("s_waitcnt vmcnt(0)")
        stamp(A, ns - 2)
        A(f"s_mov_b64 s[{S_STB+2*(ns-1)}:{S_STB+2*(ns-1)+1}], s[98:99]")
        A(f"s_memrealtime s[{S_EP}:{S_EP+1}]")
        A("s_waitcnt lgkmcnt(0)")
        A(f"s_cmp_eq_u32 s{S_WAVE}, 0")
        A("s_cbranch_scc0 L_end")
        A("s_mov_b64 exec, 1")
        A(f"s_mul_i32 s{TMP0}, s2, {8*(ns+1)}")
        A(f"s_add_u32 s{TMP0}, s{TMP0}, {STAMP_OFF}")
        A(f"v_mov_b32 v3, s{TMP0}")
        for j in range(ns):
            A(f"v_mov_b32 v4, s{S_STB+2*j}"); A(f"v_mov_b32 v5, s{S_STB+1+2*j}")
            A(f"buffer_store_dwordx2 v[4:5], v3, s[36:39], 0 offen offset:{8*j}")
            A("s_nop 1")
        A(f"v_mov_b32 v4, s{S_EP}"); A(f"v_mov_b32 v5, s{S_EP+1}")
        A(f"buffer_store_dwordx2 v[4:5], v3, s[36:39], 0 offen offset:{8*ns}")
    if DIAG:
        a, b, wg = [int(v) for v in DIAG.split(",")]
        A("s_waitcnt vmcnt(0)")
        stamp(A, 10)
        A("s_waitcnt lgkmcnt(0)")
        A(f"s_sub_u32 s{TMP0}, s{S_STB+2*b}, s{S_STB+2*a}")
        if wg >= 0:
            A(f"s_cmp_eq_u32 s2, {wg}")
            A(f"s_cselect_b32 s{TMP0}, s{TMP0}, 0")
        A(f"s_lshr_b32 s{TMP0}, s{TMP0}, 1")
        A(f"s_add_u32 s{TMP0}, s{TMP0}, 3000")
        A.label("L_diag")
        A("s_sleep 4")
        A(f"s_memrealtime s[{S_EP}:{S_EP+1}]")
        A("s_waitcnt lgkmcnt(0)")
        A(f"s_sub_u32 s{TMP1}, s{S_EP}, s98")
        A(f"s_cmp_lt_u32 s{TMP1}, s{TMP0}")
        A("s_cbranch_scc1 L_diag")
    A.label("L_end")
    A("s_endpgm")
    for k in spins:
        reg = S_MK + (k >> 2)
        A.label(f"L_spin{k}")
        A(f"buffer_load_dwordx2 v[20:21], v13, s[36:39], s{S_FL} offen sc1")
        A(f"s_add_u32 s{S_SPIN}, s{S_SPIN}, 1")
        A("s_waitcnt vmcnt(0)")
        A(f"v_cmp_eq_u64 s[{S_MK}:{S_MK+1}], s[{S_EP}:{S_EP+1}], v[20:21]")
        A(f"s_cmp_ge_u32 s{S_SPIN}, 0x40000")
        A(f"s_cbranch_scc1 L_back{k}")
        A(f"s_bfe_u32 s{TMP0}, s{reg}, {((k & 3) * 8) | (8 << 16)}")
        A(f"s_cmp_eq_u32 s{TMP0}, 0xff")
        A(f"s_cbranch_scc0 L_spin{k}")
        A(f"s_branch L_back{k}")

A = Asm()
A.raw(f"; @launch grid=(256,1,1) block=(512,1,1) lds={LDS_TOTAL}")
A.raw('.amdgcn_target "amdgcn-amd-amdhsa--gfx950"')
A.raw(".text")
A.raw(f".globl {KN}")
A.raw(".p2align 8")
A.raw(f".type {KN},@function")
A.label(KN)
Q = VQ()
prologue(A, Q)
path(A, 0, Q)
A("s_branch L_epi")
A.label("L_path1")
path(A, 1, Q)
A.label("L_epi")
epilogue1(A)
phase2(A)
slow_path(A)
A.label("L_code_end")
A.raw('.section .rodata,"a"')
A.raw(f""".p2align 6
.amdhsa_kernel {KN}
  .amdhsa_next_free_vgpr 256
  .amdhsa_next_free_sgpr 102
  .amdhsa_accum_offset 256
  .amdhsa_group_segment_fixed_size 0
  .amdhsa_kernarg_size 56
  .amdhsa_user_sgpr_count 2
  .amdhsa_user_sgpr_kernarg_segment_ptr 1
  .amdhsa_system_sgpr_workgroup_id_x 1
.end_amdhsa_kernel""")
open(OUT, "w").write("\n".join(A.L) + "\n")
```

```python
import sys

class Asm:
    def __init__(self): self.L = []
    def __call__(self, s): self.L.append("    " + s)
    def label(self, s): self.L.append(s + ":")
    def raw(self, s): self.L.append(s)

def vr(b, n=4): return f"v[{b}:{b+n-1}]"
OUT = sys.argv[1]
def opt(name, default):
    for a in sys.argv:
        if a.startswith("--" + name + "="): return a.split("=", 1)[1]
    return default
def pol(name, default):
    v = opt(name, default)
    return "" if v == "plain" else " " + v.replace("+", " ")
STAMPS = "--stamps" in sys.argv
S1ST = "--s1st" in sys.argv
DRST = "--drst" in sys.argv
XNT = pol("xnt", "plain")
SST = pol("sst", "nt")
OST = pol("ost", "nt")
PTF = pol("ptf", "plain")
ROT = opt("rot", "xor2")
FAST = opt("fast", "1") == "1"
PRE = opt("pre", "1") == "1"
CTOUCH = opt("ctouch", "1") == "1"
PFA = int(opt("pfa", "0"))
PFB = opt("pfb", "0") == "1"
PFS = {}
for part_ in [p for p in opt("pfs", "").split(";") if p]:
    k_, v_ = part_.split(":")
    PFS[int(k_)] = [int(x) for x in v_.split(",")]
VPX, VPW = 17, 8
SAHEAD = int(opt("sahead", "10"))
NPRE = int(opt("npre", "4"))
KN = "standalone__conformer_conv_module__speech_kernel"

NEG_LOG2E = 0xbfb8aa3b
STG = 49 * 1024
R = [0, STG, 2 * STG]
DW_OFF = 3 * STG
LDS_TOTAL = 163840
XOFF = 16384
HT_OFF = R[2]
HT_STRIDE = 560
W2POS = [R[2] + 36864, R[0], R[0] + 16384, R[0] + 32768, R[1], R[1] + 16384, R[1] + 32768, R[2]]
OSTG = R[2] + 16384
FLAG_OFF = 0x800000
STAMP_OFF = 0x900000

S_WAVE, S_MT, S_NT, S_ROT, S_NQ, S_XCC, S_T0, S_M3 = 44, 45, 46, 47, 48, 49, 50, 51
TMP0, TMP1, TMP2, TMP3 = 52, 53, 54, 55
S_M0W, S_M0X = 56, 57
S_EP = 58
S_SEL0, S_SEL1, S_SPIN, S_FAST = 60, 61, 62, 63
S_C = 64
S_STB = 66
S_CH = 92

DIAG = opt("diag", "")
def stamp(A, idx, force=False):
    if S1ST and not force and 3 <= idx <= 9: return
    if STAMPS or DIAG: A(f"s_memtime s[{S_STB+2*idx}:{S_STB+2*idx+1}]")

class VQ:
    def __init__(self): self.q = []
    def add(self, tag, n=1): self.q += [tag] * n
    def after(self, tag):
        idx = max(i for i, t in enumerate(self.q) if t == tag)
        return min(63, len(self.q) - 1 - idx)

def glu_sc(a, b, t):
    n = len(a); ops = []
    for i in range(n): ops.append(f"v_mul_f32 v{t[i]}, s{S_C}, v{b[i]}")
    for i in range(n): ops.append(f"v_exp_f32 v{t[i]}, v{t[i]}")
    for i in range(n): ops.append(f"v_add_f32 v{t[i]}, 1.0, v{t[i]}")
    for i in range(n): ops.append(f"v_rcp_f32 v{t[i]}, v{t[i]}")
    for i in range(n): ops.append(f"v_mul_f32 v{t[i]}, v{a[i]}, v{t[i]}")
    return ops
def glu_pk(a, b, t):
    n = len(a); ops = []
    for i in range(0, n, 2):
        assert b[i] % 2 == 0 and b[i+1] == b[i] + 1 and t[i] % 2 == 0 and a[i+1] == a[i] + 1 and a[i] % 2 == 0
        ops.append(f"v_pk_mul_f32 v[{t[i]}:{t[i]+1}], v[{b[i]}:{b[i]+1}], s[{S_C}:{S_C+1}]")
    for i in range(n): ops.append(f"v_exp_f32 v{t[i]}, v{t[i]}")
    for i in range(0, n, 2): ops.append(f"v_pk_add_f32 v[{t[i]}:{t[i]+1}], v[{t[i]}:{t[i]+1}], 1.0 op_sel_hi:[1,0]")
    for i in range(n): ops.append(f"v_rcp_f32 v{t[i]}, v{t[i]}")
    for i in range(0, n, 2): ops.append(f"v_pk_mul_f32 v[{t[i]}:{t[i]+1}], v[{a[i]}:{a[i]+1}], v[{t[i]}:{t[i]+1}]")
    return ops
def glu(pk, a, b, t, out):
    ops = (glu_pk if pk else glu_sc)(a, b, t)
    for i in range(len(a) // 2): ops.append(f"v_cvt_pk_bf16_f32 v{out[i]}, v{t[2*i]}, v{t[2*i+1]}")
    return ops

VX, VS, VW = 10, 14, 15
VXA, VWA = 18, 24
VW2, VDBG, VW2B = 27, 28, 29
ACC, XF, WF, TT, RRT = 32, 104, 176, 192, 224
DUM = 224

def chunk_regs(A, c):
    if ROT == "hyb" and c >= 2:
        A(f"s_lshl_b32 s{TMP1}, s{S_CH + c - 2}, 17")
        A(f"s_lshl_b32 s{TMP0}, s{S_CH + c - 2}, 7")
        return
    if ROT.startswith("xor"):
        A(f"s_xor_b32 s{TMP0}, s{S_CH}, {c}")
        A(f"s_add_u32 s{TMP0}, s{S_ROT}, s{TMP0}")
    else:
        A(f"s_add_u32 s{TMP0}, s{S_ROT}, {c}")
    A(f"s_and_b32 s{TMP0}, s{TMP0}, 7")
    A(f"s_lshl_b32 s{TMP1}, s{TMP0}, 17")
    A(f"s_lshl_b32 s{TMP0}, s{TMP0}, 7")

def pf_touch(A, c, mh):
    ws = [k for k in PFS.get(c, []) if mh is None or (k >> 2) == mh]
    if not ws: return
    lo, hi = min(ws), max(ws)
    assert ws == list(range(lo, hi + 1))
    lab = f"L_nopf_{c}_{mh}"
    A(f"s_cmp_lt_u32 s{S_WAVE}, {lo}")
    A(f"s_cbranch_scc1 {lab}")
    A(f"s_cmp_gt_u32 s{S_WAVE}, {hi}")
    A(f"s_cbranch_scc1 {lab}")
    A(f"s_add_u32 s{TMP0}, s{S_ROT}, s{S_WAVE}")
    A(f"s_and_b32 s{TMP0}, s{TMP0}, 7")
    A(f"s_lshl_b32 s{TMP1}, s{TMP0}, 17")
    A(f"s_lshl_b32 s{TMP0}, s{TMP0}, 7")
    A("s_mov_b32 exec_hi, 0")
    A(f"buffer_load_dword v2, v{VPFW}, s[24:27], s{TMP1} offen")
    A("s_mov_b32 exec_hi, 1")
    A(f"buffer_load_dword v2, v{VPFX}, s[20:23], s{TMP0} offen{XNT}")
    A("s_mov_b32 exec_hi, -1")
    A.label(lab)
VPFX, VPFW = 17, 31

def dma_stage(A, Q, c, mh):
    base = R[c % 3]
    pf_touch(A, c, mh)
    chunk_regs(A, c)
    A(f"s_add_u32 s{TMP2}, s{TMP1}, 1024")
    if mh != 0:
        A(f"s_cmp_eq_u32 s{S_WAVE}, 7")
        A(f"s_cbranch_scc0 L_noS_{c}")
        A(f"s_mov_b32 m0, {base + XOFF + 32*1024}")
        A("s_nop 0")
        A(f"buffer_load_dwordx4 v{VS}, s[20:23], s{TMP0} offen{XNT} lds")
        A.label(f"L_noS_{c}")
    ops = []
    for part in range(2):
        ops.append((f"s_add_u32 m0, s{S_M0W}, {base + part*8192}", f"buffer_load_dwordx4 v{VW}, s[24:27], s{TMP1+part} offen lds"))
    for q in range(4):
        ops.append((f"s_add_u32 m0, s{S_M0X}, {base + q*1024}", f"buffer_load_dwordx4 v{VX+q}, s[20:23], s{TMP0} offen{XNT} lds"))
    if mh == 1: ops = ops[2:] + ops[:2]
    for m, l in ops:
        A(m); A("s_nop 0"); A(l)
    Q.add(f"st{c}", 6)

def w2_dma2(A, steps, vlo, vhi, dlo, dhi, sa=TMP0):
    for s_ in steps:
        A(f"s_add_u32 s{sa}, s{S_NT}, {s_}")
        A(f"s_and_b32 s{sa}, s{sa}, 7")
        A(f"s_lshl_b32 s{sa}, s{sa}, 16")
        A(f"s_add_u32 s{sa+1}, s{sa}, 128")
        for v, d in ((vlo, dlo), (vhi, dhi)):
            for part in range(2):
                A(f"s_add_u32 m0, s{S_M0W}, {W2POS[s_] + part*8192 + d}")
                A("s_nop 0")
                A(f"buffer_load_dwordx4 v{v}, s[40:43], s{sa+part} offen lds")

def prologue(A, Q):
    A("s_cmp_ge_u32 s2, 256")
    A("s_cbranch_scc1 L_end")
    stamp(A, 0)
    if STAMPS or DIAG: A("s_memrealtime s[98:99]")
    A("s_load_dwordx8 s[4:11], s[0:1], 0")
    A("s_load_dwordx4 s[12:15], s[0:1], 32")
    A("s_load_dwordx2 s[16:17], s[0:1], 48")
    if CTOUCH:
        A("s_getpc_b64 s[18:19]")
        A.label("L_pc")
        A("v_lshlrev_b32 v5, 6, v0")
        A("v_and_b32 v6, 1, v0")
        A("v_lshl_or_b32 v6, v6, 20, v5")
        A("v_cmp_gt_u32 vcc, L_code_end-L_pc, v6")
        A("s_and_saveexec_b64 s[90:91], vcc")
        A("s_cbranch_execz L_noct")
        A("global_load_dword v2, v5, s[18:19]")
        A.label("L_noct")
        A("s_mov_b64 exec, -1")
    A("v_lshrrev_b32 v7, 6, v0")
    A("v_and_b32 v1, 63, v0")
    A(f"v_readfirstlane_b32 s{S_WAVE}, v7")
    A(f"s_and_b32 s{S_ROT}, s2, 7")
    A(f"s_lshr_b32 s{TMP1}, s2, 3")
    A(f"s_lshr_b32 s{S_M3}, s{TMP1}, 3")
    A(f"s_lshl_b32 s{S_MT}, s{S_ROT}, 2")
    A(f"s_add_u32 s{S_MT}, s{S_MT}, s{S_M3}")
    A(f"s_and_b32 s{S_NT}, s{TMP1}, 7")
    if ROT.startswith("xor"):
        A(f"s_add_u32 s{S_CH}, s{S_NT}, s{S_M3}")
        A(f"s_and_b32 s{S_CH}, s{S_CH}, {ROT[3:]}")
    if ROT == "mn":
        A(f"s_lshl_b32 s{S_ROT}, s{S_M3}, 1")
        A(f"s_add_u32 s{S_ROT}, s{S_ROT}, s{S_NT}")
    if ROT == "quarterm":
        A(f"s_and_b32 s{S_ROT}, s{S_NT}, 4")
        A(f"s_add_u32 s{S_ROT}, s{S_ROT}, s{S_M3}")
    if ROT == "half":
        A(f"s_and_b32 s{S_ROT}, s{S_NT}, 6")
    if ROT == "halfm2":
        A(f"s_and_b32 s{S_ROT}, s{S_NT}, 6")
        A(f"s_lshl_b32 s{TMP0}, s{S_M3}, 1")
        A(f"s_add_u32 s{S_ROT}, s{S_ROT}, s{TMP0}")
    if ROT == "halfmx":
        A(f"s_and_b32 s{TMP0}, s{S_NT}, 6")
        A(f"s_add_u32 s{S_ROT}, s{S_ROT}, s{TMP0}")
        A(f"s_add_u32 s{S_ROT}, s{S_ROT}, s{S_M3}")
    if ROT == "halfm":
        A(f"s_and_b32 s{S_ROT}, s{S_NT}, 6")
        A(f"s_add_u32 s{S_ROT}, s{S_ROT}, s{S_M3}")
    A(f"s_and_b32 s{S_T0}, s{S_MT}, 15")
    A(f"s_mul_i32 s{S_T0}, s{S_T0}, 250")
    A(f"s_sub_i32 s{S_T0}, s{S_T0}, 7")
    A(f"s_lshl_b32 s{S_M0W}, s{S_WAVE}, 10")
    A(f"s_lshl_b32 s{S_M0X}, s{S_WAVE}, 12")
    A(f"s_add_u32 s{S_M0X}, s{S_M0X}, {XOFF}")
    A("v_lshrrev_b32 v5, 3, v1")
    A("v_and_b32 v6, 7, v1")
    A("v_lshrrev_b32 v21, 1, v5")
    A("v_and_b32 v22, 1, v21")
    A("v_lshlrev_b32 v22, 2, v22")
    A(f"s_and_b32 s{TMP0}, s{S_WAVE}, 1")
    A(f"s_lshl_b32 s{TMP0}, s{TMP0}, 1")
    A(f"v_or_b32 v22, s{TMP0}, v22")
    A("v_xor_b32 v22, v22, v6")
    A("v_lshlrev_b32 v22, 4, v22")
    A(f"v_lshl_add_u32 v{VW}, v5, 11, v22")
    A(f"v_lshl_add_u32 v{VW2}, v5, 10, v22")
    A(f"s_lshl_b32 s{TMP0}, s{S_WAVE}, 14")
    A(f"s_lshl_b32 s{TMP1}, s{S_NT}, 7")
    A(f"s_add_u32 s{TMP0}, s{TMP0}, s{TMP1}")
    A(f"v_add_u32 v{VW}, s{TMP0}, v{VW}")
    A("v_lshrrev_b32 v7, 2, v5")
    A("v_and_b32 v8, 3, v5")
    A("v_lshl_add_u32 v7, v7, 3, v8")
    A(f"s_lshl_b32 s{TMP0}, s{S_WAVE}, 5")
    A(f"s_add_i32 s{TMP0}, s{TMP0}, s{S_T0}")
    A(f"v_add_u32 v7, s{TMP0}, v7")
    A("v_xor_b32 v8, v21, v6")
    A("v_lshlrev_b32 v8, 4, v8")
    A("v_xor_b32 v9, 64, v8")
    A("v_mov_b32 v20, 0x80000000")
    A(f"v_lshl_add_u32 v{VX}, v7, 10, v8")
    A(f"v_lshl_add_u32 v{VX+1}, v7, 10, v9")
    A(f"v_add_u32 v{VX+2}, 0x1000, v{VX}")
    A(f"v_add_u32 v{VX+3}, 0x5000, v{VX+1}")
    A(f"v_add_u32 v{VX+1}, 0x4000, v{VX+1}")
    A("v_cmp_gt_i32 vcc, 0, v7")
    A("v_cmp_gt_i32 s[90:91], -4, v7")
    A(f"s_add_i32 s{TMP0}, s{S_T0}, 256")
    A(f"v_add_u32 v21, s{TMP0}, v5")
    A(f"v_cndmask_b32 v{VX}, v{VX}, v20, vcc")
    A(f"v_cndmask_b32 v{VX+2}, v{VX+2}, v20, s[90:91]")
    A(f"v_lshl_add_u32 v{VS}, v21, 10, v8")
    if PFS:
        A(f"s_mul_i32 s{TMP0}, s{S_NT}, 33")
        A(f"s_add_i32 s{TMP0}, s{TMP0}, s{S_T0}")
        A(f"v_add_u32 v21, s{TMP0}, v1")
        A(f"v_lshlrev_b32 v{VPFX}, 10, v21")
        A("v_cmp_gt_i32 vcc, 0, v21")
        A("v_lshrrev_b32 v22, 1, v1")
        A("v_lshlrev_b32 v22, 11, v22")
        A(f"v_cndmask_b32 v{VPFX}, v{VPFX}, v20, vcc")
        A("v_and_b32 v21, 1, v1")
        A(f"v_lshl_add_u32 v22, v21, 10, v22")
        A(f"s_lshl_b32 s{TMP0}, s{S_M3}, 15")
        A(f"s_add_u32 s{TMP0}, s{TMP0}, s{TMP1}")
        A(f"v_add_u32 v{VPFW}, s{TMP0}, v22")
    A(f"s_lshr_b32 s{TMP0}, s{S_MT}, 4")
    A(f"s_mul_i32 s{TMP0}, s{TMP0}, 4096000")
    A("s_mov_b32 s22, 4096000"); A("s_mov_b32 s23, 0x20000")
    A("s_mov_b32 s26, 1048576"); A("s_mov_b32 s27, 0x20000")
    A("s_waitcnt lgkmcnt(0)")
    A(f"s_add_u32 s20, s4, s{TMP0}"); A("s_addc_u32 s21, s5, 0")
    A("s_mov_b32 s24, s6"); A("s_mov_b32 s25, s7")
    stamp(A, 1)
    dma_stage(A, Q, 0, None)
    A("s_mov_b32 s28, s8"); A("s_mov_b32 s29, s9"); A("s_mov_b32 s30, 15360"); A("s_mov_b32 s31, 0x20000")
    A("v_lshrrev_b32 v21, 3, v0")
    A("v_subrev_u32 v22, 7, v21")
    A("v_lshlrev_b32 v23, 10, v22")
    A("v_lshl_add_u32 v23, v6, 4, v23")
    A(f"s_lshl_b32 s{TMP3}, s{S_NT}, 7")
    A(f"v_add_u32 v23, s{TMP3}, v23")
    A("v_cmp_gt_i32 vcc, 0, v22")
    A("v_mul_u32_u24 v16, 144, v21")
    A("v_lshl_add_u32 v16, v6, 4, v16")
    A("v_cndmask_b32 v23, v23, v20, vcc")
    A(f"v_add_u32 v16, {DW_OFF}, v16")
    A("s_barrier")
    A(f"s_cmp_lt_u32 s{S_WAVE}, 4")
    A("s_cbranch_scc0 L_nodw")
    A(f"buffer_load_dwordx4 {vr(DUM)}, v23, s[28:31], 0 offen")
    A.label("L_nodw")
    dma_stage(A, Q, 1, None)
    A("s_mov_b32 s36, s16"); A("s_mov_b32 s37, s17"); A("s_mov_b32 s38, 0x1000000"); A("s_mov_b32 s39, 0x20000")
    A("s_mov_b32 s40, s10"); A("s_mov_b32 s41, s11"); A("s_mov_b32 s42, 524288"); A("s_mov_b32 s43, 0x20000")
    A(f"s_mul_i32 s{TMP0}, s{S_MT}, 256000")
    A(f"s_add_u32 s32, s12, s{TMP0}"); A("s_addc_u32 s33, s13, 0"); A("s_mov_b32 s34, 256000"); A("s_mov_b32 s35, 0x20000")
    A(f"s_and_b32 s{S_NQ}, s{S_WAVE}, 3")
    A("v_and_b32 v3, 15, v1")
    A("v_lshrrev_b32 v4, 4, v1")
    if ROT == "hyb":
        A(f"s_lshl_b32 s{TMP0}, s{S_M3}, 1")
        A(f"s_add_u32 s{TMP0}, s{TMP0}, s{S_NT}")
        for _ in range(2):
            A(f"s_sub_u32 s{TMP1}, s{TMP0}, 6")
            A(f"s_cmp_ge_u32 s{TMP0}, 6")
            A(f"s_cselect_b32 s{TMP0}, s{TMP1}, s{TMP0}")
        for k in range(6):
            A(f"s_add_u32 s{TMP1}, s{TMP0}, {k}")
            A(f"s_sub_u32 s{TMP2}, s{TMP1}, 6")
            A(f"s_cmp_ge_u32 s{TMP1}, 6")
            A(f"s_cselect_b32 s{TMP1}, s{TMP2}, s{TMP1}")
            A(f"s_add_u32 s{TMP1}, s{TMP1}, s{S_ROT}")
            A(f"s_add_u32 s{TMP1}, s{TMP1}, 2")
            A(f"s_and_b32 s{S_CH + k}, s{TMP1}, 7")
    A(f"s_lshl_b32 s{TMP0}, s{S_MT}, 3")
    A(f"v_mov_b32 v{VDBG}, s{TMP0}")
    A(f"s_getreg_b32 s{S_XCC}, hwreg(HW_REG_XCC_ID, 0, 4)")
    A(f"s_and_b32 s{S_XCC}, s{S_XCC}, 7")
    A(f"s_lshl_b32 s{S_XCC}, s{S_XCC}, 2")
    A(f"s_cmp_eq_u32 s{S_WAVE}, 5")
    A("s_cbranch_scc0 L_nohello")
    A(f"s_lshl_b32 s{TMP0}, 1, s{S_XCC}")
    A(f"v_mov_b32 v21, s{TMP0}")
    A("s_mov_b64 exec, 1")
    A(f"global_atomic_add v{VDBG}, v21, s[14:15] offset:4 sc1")
    A(f"s_cmp_eq_u32 s{S_NT}, 0")
    A("s_cbranch_scc0 L_noep")
    A(f"s_memrealtime s[{S_EP}:{S_EP+1}]")
    A("s_waitcnt lgkmcnt(0)")
    A(f"s_lshr_b64 s[{S_EP}:{S_EP+1}], s[{S_EP}:{S_EP+1}], 6")
    A(f"s_or_b32 s{S_EP}, s{S_EP}, 0x80000000")
    A(f"v_mov_b32 v21, s{S_EP}")
    A(f"global_store_dword v{VDBG}, v21, s[14:15] sc1")
    A.label("L_noep")
    A("s_mov_b64 exec, -1")
    A.label("L_nohello")
    A(f"s_lshl_b32 s{TMP0}, s{S_WAVE}, 13")
    A(f"s_and_b32 s{TMP1}, s{S_NT}, 3")
    A(f"s_lshl_b32 s{TMP1}, s{TMP1}, 8")
    A(f"s_add_u32 s{TMP0}, s{TMP0}, s{TMP1}")
    A(f"v_add_u32 v{VW2}, s{TMP0}, v{VW2}")
    A(f"v_xor_b32 v{VW2B}, 0x8000, v{VW2}")
    A(f"s_mov_b32 s{S_SEL0}, 0x05040100")
    A(f"s_mov_b32 s{S_SEL1}, 0x07060302")
    A(f"s_mov_b32 s{S_C}, 0x{NEG_LOG2E:x}")
    A(f"s_mov_b32 s{S_C+1}, 0x{NEG_LOG2E:x}")
    A("v_lshrrev_b32 v5, 3, v3")
    A("v_and_b32 v6, 7, v3")
    A("v_lshlrev_b32 v5, 10, v5")
    A("v_lshl_add_u32 v5, v6, 7, v5")
    A("v_lshrrev_b32 v6, 1, v3")
    A("v_xor_b32 v6, v6, v4")
    A("v_lshl_add_u32 v7, v6, 4, v5")
    A("v_xor_b32 v8, 64, v7")
    for sl in range(3):
        A(f"v_add_u32 v{VXA+sl*2}, {R[sl] + XOFF}, v7")
        A(f"v_add_u32 v{VXA+sl*2+1}, {R[sl] + XOFF}, v8")
    A("v_lshrrev_b32 v5, 2, v3")
    A("v_and_b32 v6, 3, v3")
    A("v_lshrrev_b32 v7, 1, v6")
    A(f"s_lshl_b32 s{TMP0}, s{S_NQ}, 1")
    A(f"v_or_b32 v7, s{TMP0}, v7")
    A("v_lshrrev_b32 v8, 1, v5")
    A("v_lshlrev_b32 v8, 2, v8")
    A("v_and_b32 v9, 1, v4")
    A("v_lshl_or_b32 v8, v9, 1, v8")
    A("v_xor_b32 v7, v7, v8")
    A("v_lshlrev_b32 v7, 4, v7")
    A("v_lshl_add_u32 v7, v5, 7, v7")
    A("v_lshl_add_u32 v7, v4, 10, v7")
    A("v_and_b32 v6, 1, v6")
    A("v_lshl_add_u32 v7, v6, 3, v7")
    for sl in range(3):
        A(f"v_add_u32 v{VWA+sl}, {R[sl]}, v7")
    A("v_lshlrev_b32 v5, 3, v4")
    A("v_sub_u32 v5, v5, v3")
    A("v_add_u32 v5, 7, v5")
    A("v_cmp_lt_u32 vcc, 21, v5")
    A("v_mov_b32 v6, 22")
    A(f"s_lshl_b32 s{TMP0}, s{S_WAVE}, 4")
    A("v_cndmask_b32 v5, v5, v6, vcc")
    A("v_mul_u32_u24 v5, 144, v5")
    A(f"s_add_u32 s{TMP0}, s{TMP0}, {DW_OFF}")
    A(f"v_add_u32 v9, s{TMP0}, v5")
    A(f"s_cmp_ge_u32 s{S_WAVE}, 4")
    A("s_cbranch_scc1 L_path1")

def path(A, mh, Q0):
    NT = 9 if mh == 0 else 8
    Q = VQ(); Q.q = list(Q0.q)
    A(f"s_waitcnt vmcnt({Q.after('st0')})")
    if mh == 0:
        A(f"ds_write_b128 v16, {vr(DUM)}")
        A("s_waitcnt lgkmcnt(0)")
    A("s_barrier")
    stamp(A, 2)
    def reads(j):
        c, ks = j >> 1, j & 1
        sl, buf = c % 3, j & 1
        Rr = []
        for part in range(2):
            for h in range(2):
                d = WF + buf * 8 + part * 4 + h * 2
                Rr.append(f"ds_read_b64_tr_b16 v[{d}:{d+1}], v{VWA+sl} offset:{part*8192 + ks*4096 + h*512}")
        for tt in range(NT):
            tile = (mh * 8 + tt) if tt < 8 else 16
            d = XF + buf * 36 + tt * 4
            Rr.append(f"ds_read_b128 {vr(d)}, v{VXA+sl*2+ks} offset:{tile*2048}")
        return Rr
    def tail_loads():
        A(f"global_load_dwordx2 v[30:31], v{VDBG}, s[14:15] sc1")
        Q.add("misc", 1)
        if mh == 0:
            w2_dma2(A, [0], VW2, VW2B, 0, 4096)
            Q.add("w2", 4)
            A(f"s_cmp_lt_u32 s{S_NQ}, 2")
            A("s_cbranch_scc0 L_nopf_W2all")
            A(f"s_lshr_b32 s{TMP0}, s2, 3")
            A(f"s_lshl_b32 s{TMP0}, s{TMP0}, 1")
            A(f"s_add_u32 s{TMP0}, s{TMP0}, s{S_NQ}")
            A(f"s_lshl_b32 s{TMP0}, s{TMP0}, 13")
            A("v_lshlrev_b32 v5, 7, v1")
            A(f"buffer_load_dword v2, v5, s[40:43], s{TMP0} offen")
            A.label("L_nopf_W2all")
            if PRE:
                A(f"s_lshl_b32 s{TMP2}, s{S_NT}, 3")
                A(f"s_add_u32 s{TMP2}, s{TMP2}, s{S_WAVE}")
                A(f"s_lshl_b32 s{TMP2}, s{TMP2}, 9")
                A(f"s_lshl_b32 s{TMP3}, s{S_MT}, 18")
                A(f"s_add_u32 s{TMP2}, s{TMP2}, s{TMP3}")
                A("v_lshrrev_b32 v5, 2, v1")
                A("v_and_b32 v5, 7, v5")
                A("v_lshlrev_b32 v5, 15, v5")
                A("v_and_b32 v6, 3, v1")
                A("v_lshl_add_u32 v5, v6, 7, v5")
                A("v_lshrrev_b32 v6, 5, v1")
                A("v_lshl_add_u32 v5, v6, 11, v5")
                A(f"buffer_load_dword v2, v5, s[36:39], s{TMP2} offen{PTF}")
                A(f"s_mov_b64 exec, 15")
                A(f"s_lshl_b32 s{TMP2}, s{S_MT}, 9")
                A(f"s_add_u32 s{TMP2}, s{TMP2}, {FLAG_OFF}")
                A(f"buffer_load_dword v2, v5, s[36:39], s{TMP2} offen{PTF}")
                A(f"s_mov_b64 exec, -1")
                Q.add("misc", 2)
    for r in reads(0): A(r)
    if mh == 1: dma_stage(A, Q, 2, mh)
    extra = []
    for j in range(16):
        buf = j & 1
        cn = (j + 1) >> 1
        boundary = (j & 1) == 1 and j < 15 and not (mh == 0 and j == 13)
        if boundary:
            A(f"s_waitcnt vmcnt({Q.after(f'st{cn}')}) lgkmcnt(0)")
            A("s_barrier")
            if S1ST: stamp(A, 2 + cn, True)
            if cn == 6:
                if mh == 1:
                    A("s_setprio 3")
                    tail_loads()
                else:
                    tail_loads()
                    A(f"s_waitcnt vmcnt({Q.after('st7')})")
                    A("s_barrier")
                    if S1ST: stamp(A, 9, True)
                    A("s_setprio 1")
        stg = None
        if mh == 0 and (j & 1) == 1 and j < 15: stg = cn + 2
        if mh == 1 and (j & 1) == 0 and j >= 2 and j != 10: stg = (j >> 1) + 2
        if mh == 1 and j == 9: stg = 7
        if stg is not None and stg < 8: dma_stage(A, Q, stg, mh)
        Rn = reads(j + 1) if j < 15 else []
        if j == 2:
            Rn = [f"ds_read_b128 {vr(RRT + 4*e)}, v9 offset:{e*144}" for e in range(8)] + Rn
        if j == 3:
            extra = [f"v_perm_b32 v{TT + 4*jj + d}, v{RRT + 4*(2*d+1) + (jj>>1)}, v{RRT + 4*(2*d) + (jj>>1)}, s{S_SEL0 + (jj&1)}" for jj in range(8) for d in range(4)]
        issued = 0
        for tt in range(NT):
            for part in range(2):
                if part == 0 and not boundary:
                    A(f"s_waitcnt lgkmcnt({min(15, (NT - 1 - tt) + issued)})")
                a = ACC + (tt * 2 + part) * 4
                cin = "0" if j == 0 else vr(a)
                A(f"v_mfma_f32_16x16x32_bf16 {vr(a)}, {vr(XF + buf*36 + tt*4)}, {vr(WF + buf*8 + part*4)}, {cin}")
                k = 2 if (j == 2 and issued < 10) else 1
                for _ in range(k):
                    if issued < len(Rn):
                        A(Rn[issued]); issued += 1
                    elif extra:
                        A(extra.pop(0))
        assert issued == len(Rn)
        if j == 0 and mh == 0: dma_stage(A, Q, 2, mh)
    assert not extra
    A("s_setprio 0")
    stamp(A, 3)
    pk = (mh == 0)
    A(f"s_lshl_b32 s{TMP0}, s{S_NQ}, 4")
    A(f"v_add_u32 v5, s{TMP0}, v3")
    A(f"v_mul_u32_u24 v5, {HT_STRIDE}, v5")
    A(f"v_add_u32 v5, {HT_OFF}, v5")
    A("v_lshl_add_u32 v6, v4, 4, v5")
    A("v_lshl_add_u32 v7, v4, 3, v5")
    A("s_nop 1")
    T0 = XF
    for p in range(4):
        a = [ACC + ((2*p + o) * 2 + 0) * 4 + r for o in range(2) for r in range(4)]
        b = [ACC + ((2*p + o) * 2 + 1) * 4 + r for o in range(2) for r in range(4)]
        O = T0 + 8 + 4 * (p & 1)
        for op in glu(pk, a, b, [T0 + i for i in range(8)], [O + i for i in range(4)]): A(op)
        A(f"ds_write_b128 v6, {vr(O)} offset:{(4*mh + p) * 64}")
    if mh == 0:
        a = [ACC + 16 * 4 + r for r in range(4)]
        b = [ACC + 17 * 4 + r for r in range(4)]
        O = T0 + 16
        A("v_cmp_gt_u32 vcc, 2, v4")
        for op in glu(pk, a, b, [T0 + i for i in range(4)], [O, O + 1]): A(op)
        A(f"v_cndmask_b32 v{O}, 0, v{O}, vcc")
        A(f"v_cndmask_b32 v{O+1}, 0, v{O+1}, vcc")
        A(f"ds_write_b64 v7, v[{O}:{O+1}] offset:512")
        A(f"s_waitcnt vmcnt({Q.after('w2')})")

def epilogue1(A):
    A(f"s_mul_i32 s{TMP0}, s{S_WAVE}, {8*HT_STRIDE}")
    A(f"s_add_u32 s{TMP0}, s{TMP0}, {HT_OFF}")
    A("v_lshlrev_b32 v5, 5, v3")
    A("v_lshl_add_u32 v5, v4, 4, v5")
    A(f"v_add_u32 v5, s{TMP0}, v5")
    A(f"s_lshl_b32 s{TMP2}, s{S_NT}, 3")
    A(f"s_add_u32 s{TMP2}, s{TMP2}, s{S_WAVE}")
    A(f"s_lshl_b32 s{TMP1}, s{TMP2}, 3")
    A(f"v_mov_b32 v11, s{TMP1}")
    A(f"s_lshl_b32 s{TMP2}, s{TMP2}, 9")
    A(f"s_lshl_b32 s{TMP3}, s{S_MT}, 18")
    A(f"s_add_u32 s{TMP2}, s{TMP2}, s{TMP3}")
    A("v_lshlrev_b32 v6, 16, v4")
    A("v_lshl_add_u32 v6, v3, 4, v6")
    A("v_add_u32 v7, 0x8000, v6")
    A(f"s_lshl_b32 s{TMP3}, s{S_MT}, 9")
    A(f"s_add_u32 s{TMP3}, s{TMP3}, {FLAG_OFF}")
    A("s_waitcnt lgkmcnt(0)")
    A("s_barrier")
    stamp(A, 4)
    HA, Y, T0, O0 = 32, 64, 96, 160
    for j in range(8):
        A(f"ds_read_b128 {vr(HA + 4*j)}, v5 offset:{j*HT_STRIDE}")
    for j in range(8):
        A(f"s_waitcnt lgkmcnt({7-j})")
        A(f"v_mfma_f32_16x16x32_bf16 {vr(Y + 4*j)}, {vr(HA + 4*j)}, {vr(TT + 4*j)}, 0")
    A("s_waitcnt vmcnt(0)")
    if DRST: stamp(A, 2)
    A(f"v_readfirstlane_b32 s{S_EP}, v30")
    A(f"v_readfirstlane_b32 s{S_FAST}, v31")
    A(f"s_lshl_b32 s{TMP0}, 8, s{S_XCC}")
    A(f"s_cmp_eq_u32 s{S_FAST}, s{TMP0}")
    A(f"s_cselect_b32 s{S_FAST}, {1 if FAST else 0}, 0")
    A("s_nop 2")
    for half in range(2):
        y = [Y + 4*j + 2*half + rr for j in range(8) for rr in range(2)]
        t = [T0 + 16*half + i for i in range(16)]
        for op in glu_pk(y, y, t): A(op)
        for rr in range(2):
            for i in range(4):
                A(f"v_cvt_pk_bf16_f32 v{O0 + 4*(2*half+rr) + i}, v{t[2*(2*i) + rr]}, v{t[2*(2*i+1) + rr]}")
    A(f"s_cmp_lg_u32 s{S_EP}, 0")
    A(f"s_cselect_b32 s{S_FAST}, s{S_FAST}, 0")
    A(f"s_not_b32 s{S_EP+1}, s{S_EP}")
    A(f"v_mov_b32 v16, s{S_EP}")
    A(f"v_mov_b32 v17, s{S_EP+1}")
    A(f"s_cmp_eq_u32 s{S_FAST}, 1")
    A("s_cbranch_scc0 L_slow")
    for r in range(4):
        A(f"buffer_store_dwordx4 {vr(O0 + 4*r)}, v{6 + (r>>1)}, s[36:39], s{TMP2} offen offset:{(r&1)*256}{SST}")
    stamp(A, 5)
    A(f"s_cmp_ge_u32 s{S_WAVE}, 4")
    A("s_cbranch_scc0 L_Afast")
    A("s_mov_b64 exec, 1")
    A("s_waitcnt vmcnt(0)")
    if DRST: stamp(A, 1)
    A(f"buffer_store_dwordx2 v[16:17], v11, s[36:39], s{TMP3} offen")
    A("s_mov_b64 exec, -1")
    A.label("L_Btail")
    A("s_barrier")
    stamp(A, 6)
    w2_dma2(A, range(NPRE + 1, 8), VW2, VW2B, 0, -4096)
    A("s_waitcnt vmcnt(0)")
    A("s_barrier")
    if STAMPS:
        A("s_waitcnt lgkmcnt(0)")
        A(f"s_cmp_eq_u32 s{S_WAVE}, 4")
        A("s_cbranch_scc0 L_end")
        A("s_mov_b64 exec, 1")
        A(f"s_mul_i32 s{TMP0}, s2, {8*8}")
        A(f"s_add_u32 s{TMP0}, s{TMP0}, {STAMP_OFF + 0x40000}")
        A(f"v_mov_b32 v3, s{TMP0}")
        for j in range(7):
            A(f"v_mov_b32 v4, s{S_STB+2*j}"); A(f"v_mov_b32 v5, s{S_STB+2*j+1}")
            A(f"buffer_store_dwordx2 v[4:5], v3, s[36:39], 0 offen offset:{8*j}")
            A("s_nop 1")
    A("s_endpgm")
    A.label("L_Afast")
    w2_dma2(A, range(1, NPRE + 1), VW2, VW2B, 0, 4096)
    A("s_mov_b64 exec, 1")
    A(f"s_waitcnt vmcnt({4*NPRE})")
    if DRST: stamp(A, 1)
    A(f"buffer_store_dwordx2 v[16:17], v11, s[36:39], s{TMP3} offen")
    A("s_mov_b64 exec, -1")
    A.label("L_Ajoin")

def slow_path(A):
    O0 = 160
    A.label("L_slow")
    for r in range(4):
        A(f"buffer_store_dwordx4 {vr(O0 + 4*r)}, v{6 + (r>>1)}, s[36:39], s{TMP2} offen offset:{(r&1)*256} sc1")
    A(f"s_mov_b32 s{S_SPIN}, 0")
    A.label("L_ep_chk")
    A(f"s_cmp_lg_u32 s{S_EP}, 0")
    A("s_cbranch_scc1 L_ep_ok")
    A(f"global_load_dwordx2 v[30:31], v{VDBG}, s[14:15] sc1")
    A(f"s_add_u32 s{S_SPIN}, s{S_SPIN}, 1")
    A("s_waitcnt vmcnt(0)")
    A(f"v_readfirstlane_b32 s{S_EP}, v30")
    A(f"s_cmp_lt_u32 s{S_SPIN}, 0x40000")
    A("s_cbranch_scc1 L_ep_chk")
    A.label("L_ep_ok")
    A(f"s_not_b32 s{S_EP+1}, s{S_EP}")
    A(f"v_mov_b32 v16, s{S_EP}")
    A(f"v_mov_b32 v17, s{S_EP+1}")
    A("s_mov_b64 exec, 1")
    A("s_waitcnt vmcnt(0)")
    A(f"buffer_store_dwordx2 v[16:17], v11, s[36:39], s{TMP3} offen sc1")
    A("s_mov_b64 exec, -1")
    A(f"s_cmp_ge_u32 s{S_WAVE}, 4")
    A("s_cbranch_scc1 L_Btail")
    w2_dma2(A, range(1, NPRE + 1), VW2, VW2B, 0, 4096)
    A("s_waitcnt vmcnt(0)")
    A("s_branch L_Ajoin")

def phase2(A):
    SF, ACC2, WF2 = 128, 64, 32
    S_FL = TMP2
    A(f"s_mov_b32 s{S_FL}, s{TMP3}")
    A(f"s_lshr_b32 s{TMP0}, s{S_NT}, 2")
    A(f"s_lshl_b32 s{TMP0}, s{TMP0}, 2")
    A(f"s_add_u32 s{TMP0}, s{TMP0}, s{S_WAVE}")
    A(f"s_lshl_b32 s{TMP3}, s{TMP0}, 15")
    A(f"s_lshl_b32 s{TMP1}, s{S_MT}, 18")
    A(f"s_add_u32 s{TMP1}, s{TMP1}, s{TMP3}")
    A("v_lshlrev_b32 v12, 4, v1")
    A(f"v_add_u32 v12, s{TMP1}, v12")
    A("v_lshrrev_b32 v5, 2, v3")
    A("v_and_b32 v6, 3, v3")
    A("v_lshrrev_b32 v7, 1, v6")
    A("v_and_b32 v8, 1, v4")
    A("v_lshl_or_b32 v7, v8, 1, v7")
    A("v_lshrrev_b32 v8, 1, v5")
    A("v_lshlrev_b32 v8, 2, v8")
    A("v_lshrrev_b32 v9, 1, v4")
    A("v_lshl_or_b32 v8, v9, 1, v8")
    A("v_xor_b32 v7, v7, v8")
    A("v_lshlrev_b32 v7, 4, v7")
    A("v_lshl_add_u32 v7, v5, 7, v7")
    A("v_lshl_add_u32 v7, v9, 10, v7")
    A("v_and_b32 v6, 1, v6")
    A("v_lshl_add_u32 v22, v6, 3, v7")
    A("v_xor_b32 v23, 64, v22")
    for wdw in (1, 2):
        A(f"v_add_u32 v{22+2*wdw}, {wdw*0x10000}, v22")
        A(f"v_add_u32 v{23+2*wdw}, {wdw*0x10000}, v23")
    for s_ in range(8):
        A(f"s_add_u32 s{TMP0}, s{S_NT}, {s_}")
        A(f"s_and_b32 s{TMP0}, s{TMP0}, 7")
        A(f"s_lshl_b32 s{20+s_}, s{TMP0}, 12")
    A(f"s_lshl_b32 s{TMP0}, s{S_NT}, 3")
    A(f"v_add_u32 v13, s{TMP0}, v1")
    A("v_and_b32 v13, 63, v13")
    A("v_lshlrev_b32 v13, 3, v13")
    A(f"s_mov_b32 s{S_SPIN}, 0")
    def reads(j):
        c, kq = j >> 2, j & 3
        buf = j & 1
        Rr = []
        for ct in range(4):
            part, ctp = ct >> 1, ct & 1
            for h in range(2):
                off = W2POS[c] + part * 8192 + kq * 2048 + h * 512
                base = 22 + ctp + 2 * (off >> 16)
                d = WF2 + buf * 16 + ct * 4 + h * 2
                Rr.append(f"ds_read_b64_tr_b16 v[{d}:{d+1}], v{base} offset:{off & 0xffff}")
        return Rr
    def sload(j):
        return f"buffer_load_dwordx4 {vr(SF + j*4)}, v12, s[36:39], s{20 + (j>>2)} offen offset:{(j&3)*1024} sc1"
    for r in reads(0): A(r)
    A("s_waitcnt vmcnt(1)")
    A("s_barrier")
    stamp(A, 6)
    for j in range(4): A(sload(j))
    A(f"buffer_load_dwordx2 v[20:21], v13, s[36:39], s{S_FL} offen sc1")
    S_MK = 28
    spins = []
    def check(k):
        reg = S_MK + (k >> 2)
        A(f"s_bfe_u32 s{TMP0}, s{reg}, {((k & 3) * 8) | (8 << 16)}")
        A(f"s_cmp_eq_u32 s{TMP0}, 0xff")
        A(f"s_cbranch_scc0 L_spin{k}")
        A.label(f"L_back{k}")
        spins.append(k)
    def step(j, vm, pre=None):
        buf = j & 1
        Rn = reads(j + 1) if j < 31 else []
        for ct in range(4):
            w = f"lgkmcnt({6 if j < 31 else 6 - 2*ct})"
            if ct == 0 and vm is not None: w = f"vmcnt({vm}) " + w
            A(f"s_waitcnt {w}")
            if j == 4 * (NPRE + 1) - 1 and ct == 0:
                A("s_barrier")
            a = ACC2 + ct * 16
            cin = "0" if j == 0 else vr(a, 16)
            A(f"v_mfma_f32_32x32x16_bf16 {vr(a,16)}, {vr(WF2 + buf*16 + ct*4)}, {vr(SF + j*4)}, {cin}")
            for r in Rn[2*ct:2*ct+2]: A(r)
            if pre: pre(ct)
    step(0, 4)
    A("s_waitcnt vmcnt(0)")
    A(f"v_cmp_eq_u64 s[{S_MK}:{S_MK+1}], s[{S_EP}:{S_EP+1}], v[20:21]")
    nissued = [4]
    def issue_upto(n):
        while nissued[0] < min(32, n):
            jj = nissued[0]
            if jj % 4 == 0: check(jj // 4)
            A(sload(jj)); nissued[0] += 1
    for j in range(1, 32):
        target = min(32, j + 1 + SAHEAD)
        vm = None if j < 4 else nissued[0] - 1 - j
        step(j, vm, lambda ct: issue_upto(min(target, nissued[0] + 2)))
        if j == 1: stamp(A, 7)
        if j == 4: stamp(A, 8)
    stamp(A, 9)
    A("v_and_b32 v5, 31, v1")
    A("v_lshrrev_b32 v6, 5, v1")
    A("v_and_b32 v7, 7, v5")
    A("v_xor_b32 v7, v7, v6")
    A("v_lshlrev_b32 v7, 4, v7")
    A("v_lshl_add_u32 v7, v5, 7, v7")
    A(f"s_lshl_b32 s{TMP0}, s{S_WAVE}, 12")
    A(f"s_add_u32 s{TMP0}, s{TMP0}, {OSTG}")
    A(f"v_add_u32 v7, s{TMP0}, v7")
    for x in (1, 2, 3): A(f"v_xor_b32 v{7+x}, {32*x}, v7")
    A("v_lshrrev_b32 v5, 3, v1")
    A("v_and_b32 v6, 7, v1")
    A("v_xor_b32 v11, v5, v6")
    A("v_lshlrev_b32 v11, 4, v11")
    A("v_lshl_add_u32 v11, v5, 7, v11")
    A(f"v_add_u32 v11, s{TMP0}, v11")
    A("v_lshlrev_b32 v12, 4, v6")
    A("v_lshl_add_u32 v12, v5, 10, v12")
    A(f"s_and_b32 s{TMP1}, s{S_NT}, 3")
    A(f"s_lshl_b32 s{TMP1}, s{TMP1}, 8")
    A(f"s_add_u32 s{TMP3}, s{TMP3}, s{TMP1}")
    P = 16
    for half in range(2):
        for ctp in range(2):
            for qq in range(2):
                a = ACC2 + (half * 2 + ctp) * 16 + qq * 8
                O = P + 4 * (ctp * 2 + qq)
                for i in range(4): A(f"v_cvt_pk_bf16_f32 v{O+i}, v{a+2*i}, v{a+2*i+1}")
                A("s_nop 1")
                A(f"v_permlane32_swap_b32 v{O}, v{O+2}")
                A(f"v_permlane32_swap_b32 v{O+1}, v{O+3}")
                A(f"ds_write_b128 v{7 + 2*ctp + qq}, {vr(O)}")
        A("s_waitcnt lgkmcnt(0)")
        for i in range(4): A(f"ds_read_b128 {vr(32 + 16*half + 4*i)}, v11 offset:{i*1024}")
        for i in range(4):
            A(f"s_waitcnt lgkmcnt({3-i})")
            A(f"s_add_u32 s{TMP0}, s{TMP3}, {i*8192 + half*128}")
            A(f"buffer_store_dwordx4 {vr(32 + 16*half + 4*i)}, v12, s[32:35], s{TMP0} offen{OST}")
    if STAMPS:
        ns = 12
        A("s_waitcnt vmcnt(0)")
        stamp(A, ns - 2)
        A(f"s_mov_b64 s[{S_STB+2*(ns-1)}:{S_STB+2*(ns-1)+1}], s[98:99]")
        A(f"s_memrealtime s[{S_EP}:{S_EP+1}]")
        A("s_waitcnt lgkmcnt(0)")
        A(f"s_cmp_eq_u32 s{S_WAVE}, 0")
        A("s_cbranch_scc0 L_end")
        A("s_mov_b64 exec, 1")
        A(f"s_mul_i32 s{TMP0}, s2, {8*(ns+1)}")
        A(f"s_add_u32 s{TMP0}, s{TMP0}, {STAMP_OFF}")
        A(f"v_mov_b32 v3, s{TMP0}")
        for j in range(ns):
            A(f"v_mov_b32 v4, s{S_STB+2*j}"); A(f"v_mov_b32 v5, s{S_STB+1+2*j}")
            A(f"buffer_store_dwordx2 v[4:5], v3, s[36:39], 0 offen offset:{8*j}")
            A("s_nop 1")
        A(f"v_mov_b32 v4, s{S_EP}"); A(f"v_mov_b32 v5, s{S_EP+1}")
        A(f"buffer_store_dwordx2 v[4:5], v3, s[36:39], 0 offen offset:{8*ns}")
    if DIAG:
        a, b, wg = [int(v) for v in DIAG.split(",")]
        A("s_waitcnt vmcnt(0)")
        stamp(A, 10)
        A("s_waitcnt lgkmcnt(0)")
        A(f"s_sub_u32 s{TMP0}, s{S_STB+2*b}, s{S_STB+2*a}")
        if wg >= 0:
            A(f"s_cmp_eq_u32 s2, {wg}")
            A(f"s_cselect_b32 s{TMP0}, s{TMP0}, 0")
        A(f"s_lshr_b32 s{TMP0}, s{TMP0}, 1")
        A(f"s_add_u32 s{TMP0}, s{TMP0}, 3000")
        A.label("L_diag")
        A("s_sleep 4")
        A(f"s_memrealtime s[{S_EP}:{S_EP+1}]")
        A("s_waitcnt lgkmcnt(0)")
        A(f"s_sub_u32 s{TMP1}, s{S_EP}, s98")
        A(f"s_cmp_lt_u32 s{TMP1}, s{TMP0}")
        A("s_cbranch_scc1 L_diag")
    A.label("L_end")
    A("s_endpgm")
    for k in spins:
        reg = S_MK + (k >> 2)
        A.label(f"L_spin{k}")
        A(f"buffer_load_dwordx2 v[20:21], v13, s[36:39], s{S_FL} offen sc1")
        A(f"s_add_u32 s{S_SPIN}, s{S_SPIN}, 1")
        A("s_waitcnt vmcnt(0)")
        A(f"v_cmp_eq_u64 s[{S_MK}:{S_MK+1}], s[{S_EP}:{S_EP+1}], v[20:21]")
        A(f"s_cmp_ge_u32 s{S_SPIN}, 0x40000")
        A(f"s_cbranch_scc1 L_back{k}")
        A(f"s_bfe_u32 s{TMP0}, s{reg}, {((k & 3) * 8) | (8 << 16)}")
        A(f"s_cmp_eq_u32 s{TMP0}, 0xff")
        A(f"s_cbranch_scc0 L_spin{k}")
        A(f"s_branch L_back{k}")

A = Asm()
A.raw(f"; @launch grid=(256,1,1) block=(512,1,1) lds={LDS_TOTAL}")
A.raw('.amdgcn_target "amdgcn-amd-amdhsa--gfx950"')
A.raw(".text")
A.raw(f".globl {KN}")
A.raw(".p2align 8")
A.raw(f".type {KN},@function")
A.label(KN)
Q = VQ()
prologue(A, Q)
path(A, 0, Q)
A("s_branch L_epi")
A.label("L_path1")
path(A, 1, Q)
A.label("L_epi")
epilogue1(A)
phase2(A)
slow_path(A)
A.label("L_code_end")
A.raw('.section .rodata,"a"')
A.raw(f""".p2align 6
.amdhsa_kernel {KN}
  .amdhsa_next_free_vgpr 256
  .amdhsa_next_free_sgpr 102
  .amdhsa_accum_offset 256
  .amdhsa_group_segment_fixed_size 0
  .amdhsa_kernarg_size 56
  .amdhsa_user_sgpr_count 2
  .amdhsa_user_sgpr_kernarg_segment_ptr 1
  .amdhsa_system_sgpr_workgroup_id_x 1
.end_amdhsa_kernel""")
open(OUT, "w").write("\n".join(A.L) + "\n")
```

```python
import sys

class Asm:
    def __init__(self): self.L = []
    def __call__(self, s): self.L.append("    " + s)
    def label(self, s): self.L.append(s + ":")
    def raw(self, s): self.L.append(s)

def vr(b, n=4): return f"v[{b}:{b+n-1}]"
OUT = sys.argv[1]
def opt(name, default):
    for a in sys.argv:
        if a.startswith("--" + name + "="): return a.split("=", 1)[1]
    return default
def pol(name, default):
    v = opt(name, default)
    return "" if v == "plain" else " " + v.replace("+", " ")
STAMPS = "--stamps" in sys.argv
S1ST = "--s1st" in sys.argv
DRST = "--drst" in sys.argv
XNT = pol("xnt", "plain")
SST = pol("sst", "nt")
OST = pol("ost", "nt")
PTF = pol("ptf", "plain")
ROT = opt("rot", "xor2")
FAST = opt("fast", "1") == "1"
PRE = opt("pre", "1") == "1"
CTOUCH = opt("ctouch", "1") == "1"
PFA = int(opt("pfa", "0"))
PFB = opt("pfb", "0") == "1"
PFS = {}
for part_ in [p for p in opt("pfs", "").split(";") if p]:
    k_, v_ = part_.split(":")
    PFS[int(k_)] = [int(x) for x in v_.split(",")]
VPX, VPW = 17, 8
SFIRST = int(opt("sfirst", "4"))
BFJ = int(opt("bfj", "15"))
POLL0 = opt("poll0", "0x0f0f")
PLD = pol("pld", "sc1")
SLD = pol("sld", "sc1")
FST = pol("fst", "plain")
H1E = int(opt("h1e", "0"))
H1F = int(opt("h1f", "3"))
CPOS = int(opt("cpos", "1"))
P2T = [int(v) for v in opt("p2t", "").split(",") if v]
SAHEAD = int(opt("sahead", "4"))
NPRE = int(opt("npre", "4"))
KN = "standalone__conformer_conv_module__speech_kernel"

NEG_LOG2E = 0xbfb8aa3b
STG = 49 * 1024
R = [0, STG, 2 * STG]
DW_OFF = 3 * STG
LDS_TOTAL = 163840
XOFF = 16384
HT_OFF = R[2]
HT_STRIDE = 560
def UPOS(h, k):
    if h == 0: return R[2] + 36864 + k * 8192 if k < 2 else R[0] + (k - 2) * 8192
    return R[1] + k * 8192 if k < 6 else R[2] + (k - 6) * 8192
CNT_OFF = DW_OFF + 4608
OSTG = R[2] + 16384
FLAG_OFF = 0x800000
STAMP_OFF = 0x900000

S_WAVE, S_MT, S_NT, S_ROT, S_NQ, S_XCC, S_T0, S_M3 = 44, 45, 46, 47, 48, 49, 50, 51
TMP0, TMP1, TMP2, TMP3 = 52, 53, 54, 55
S_M0W, S_M0X = 56, 57
S_EP = 58
S_SEL0, S_SEL1, S_SPIN, S_FAST = 60, 61, 62, 63
S_C = 64
S_STB = 66
S_CH = 92

DIAG = opt("diag", "")
def stamp(A, idx, force=False):
    if S1ST and not force and 3 <= idx <= 9: return
    if STAMPS or DIAG: A(f"s_memtime s[{S_STB+2*idx}:{S_STB+2*idx+1}]")

class VQ:
    def __init__(self): self.q = []
    def add(self, tag, n=1): self.q += [tag] * n
    def after(self, tag):
        idx = max(i for i, t in enumerate(self.q) if t == tag)
        return min(63, len(self.q) - 1 - idx)

def glu_sc(a, b, t):
    n = len(a); ops = []
    for i in range(n): ops.append(f"v_mul_f32 v{t[i]}, s{S_C}, v{b[i]}")
    for i in range(n): ops.append(f"v_exp_f32 v{t[i]}, v{t[i]}")
    for i in range(n): ops.append(f"v_add_f32 v{t[i]}, 1.0, v{t[i]}")
    for i in range(n): ops.append(f"v_rcp_f32 v{t[i]}, v{t[i]}")
    for i in range(n): ops.append(f"v_mul_f32 v{t[i]}, v{a[i]}, v{t[i]}")
    return ops
def glu_pk(a, b, t):
    n = len(a); ops = []
    for i in range(0, n, 2):
        assert b[i] % 2 == 0 and b[i+1] == b[i] + 1 and t[i] % 2 == 0 and a[i+1] == a[i] + 1 and a[i] % 2 == 0
        ops.append(f"v_pk_mul_f32 v[{t[i]}:{t[i]+1}], v[{b[i]}:{b[i]+1}], s[{S_C}:{S_C+1}]")
    for i in range(n): ops.append(f"v_exp_f32 v{t[i]}, v{t[i]}")
    for i in range(0, n, 2): ops.append(f"v_pk_add_f32 v[{t[i]}:{t[i]+1}], v[{t[i]}:{t[i]+1}], 1.0 op_sel_hi:[1,0]")
    for i in range(n): ops.append(f"v_rcp_f32 v{t[i]}, v{t[i]}")
    for i in range(0, n, 2): ops.append(f"v_pk_mul_f32 v[{t[i]}:{t[i]+1}], v[{a[i]}:{a[i]+1}], v[{t[i]}:{t[i]+1}]")
    return ops
def glu(pk, a, b, t, out):
    ops = (glu_pk if pk else glu_sc)(a, b, t)
    for i in range(len(a) // 2): ops.append(f"v_cvt_pk_bf16_f32 v{out[i]}, v{t[2*i]}, v{t[2*i+1]}")
    return ops

VX, VS, VW = 10, 14, 15
VXA, VWA = 18, 24
VW2, VDBG, VW2B = 27, 28, 29
ACC, XF, WF, TT, RRT = 32, 104, 176, 192, 224
DUM = 224

def chunk_regs(A, c):
    if ROT == "hyb" and c >= 2:
        A(f"s_lshl_b32 s{TMP1}, s{S_CH + c - 2}, 17")
        A(f"s_lshl_b32 s{TMP0}, s{S_CH + c - 2}, 7")
        return
    if ROT.startswith("xor"):
        A(f"s_xor_b32 s{TMP0}, s{S_CH}, {c}")
        A(f"s_add_u32 s{TMP0}, s{S_ROT}, s{TMP0}")
    else:
        A(f"s_add_u32 s{TMP0}, s{S_ROT}, {c}")
    A(f"s_and_b32 s{TMP0}, s{TMP0}, 7")
    A(f"s_lshl_b32 s{TMP1}, s{TMP0}, 17")
    A(f"s_lshl_b32 s{TMP0}, s{TMP0}, 7")

def pf_touch(A, c, mh):
    ws = [k for k in PFS.get(c, []) if mh is None or (k >> 2) == mh]
    if not ws: return
    lo, hi = min(ws), max(ws)
    assert ws == list(range(lo, hi + 1))
    lab = f"L_nopf_{c}_{mh}"
    A(f"s_cmp_lt_u32 s{S_WAVE}, {lo}")
    A(f"s_cbranch_scc1 {lab}")
    A(f"s_cmp_gt_u32 s{S_WAVE}, {hi}")
    A(f"s_cbranch_scc1 {lab}")
    A(f"s_add_u32 s{TMP0}, s{S_ROT}, s{S_WAVE}")
    A(f"s_and_b32 s{TMP0}, s{TMP0}, 7")
    A(f"s_lshl_b32 s{TMP1}, s{TMP0}, 17")
    A(f"s_lshl_b32 s{TMP0}, s{TMP0}, 7")
    A("s_mov_b32 exec_hi, 0")
    A(f"buffer_load_dword v2, v{VPFW}, s[24:27], s{TMP1} offen")
    A("s_mov_b32 exec_hi, 1")
    A(f"buffer_load_dword v2, v{VPFX}, s[20:23], s{TMP0} offen{XNT}")
    A("s_mov_b32 exec_hi, -1")
    A.label(lab)
VPFX, VPFW = 17, 31

def dma_stage(A, Q, c, mh):
    base = R[c % 3]
    pf_touch(A, c, mh)
    chunk_regs(A, c)
    A(f"s_add_u32 s{TMP2}, s{TMP1}, 1024")
    if mh != 0:
        A(f"s_cmp_eq_u32 s{S_WAVE}, 7")
        A(f"s_cbranch_scc0 L_noS_{c}")
        A(f"s_mov_b32 m0, {base + XOFF + 32*1024}")
        A("s_nop 0")
        A(f"buffer_load_dwordx4 v{VS}, s[20:23], s{TMP0} offen{XNT} lds")
        A.label(f"L_noS_{c}")
    ops = []
    for part in range(2):
        ops.append((f"s_add_u32 m0, s{S_M0W}, {base + part*8192}", f"buffer_load_dwordx4 v{VW}, s[24:27], s{TMP1+part} offen lds"))
    for q in range(4):
        ops.append((f"s_add_u32 m0, s{S_M0X}, {base + q*1024}", f"buffer_load_dwordx4 v{VX+q}, s[20:23], s{TMP0} offen{XNT} lds"))
    if mh == 1: ops = ops[2:] + ops[:2]
    for m, l in ops:
        A(m); A("s_nop 0"); A(l)
    Q.add(f"st{c}", 6)

def w2_unit(h, k, sa=90):
    g0 = [f"s_add_u32 s{sa}, s{S_NT}, {k}", f"s_and_b32 s{sa}, s{sa}, 7", f"s_lshl_b32 s{sa}, s{sa}, 16", f"s_add_u32 s{sa+1}, s{sa}, 128"]
    out = []
    for part in range(2):
        g = (g0 if part == 0 else []) + [f"s_add_u32 m0, s{S_M0X}, {UPOS(h, k) + part*4096}", "s_nop 0",
             f"buffer_load_dwordx4 v{VW2 + (VW2B - VW2) * h}, s[40:43], s{sa+part} offen lds"]
        out.append("\n    ".join(g))
    return out

def prologue(A, Q):
    A("s_cmp_ge_u32 s2, 256")
    A("s_cbranch_scc1 L_end")
    stamp(A, 0)
    if STAMPS or DIAG: A("s_memrealtime s[98:99]")
    A("s_load_dwordx8 s[4:11], s[0:1], 0")
    A("s_load_dwordx4 s[12:15], s[0:1], 32")
    A("s_load_dwordx2 s[16:17], s[0:1], 48")
    if CTOUCH:
        A("s_getpc_b64 s[18:19]")
        A.label("L_pc")
        A("v_lshlrev_b32 v5, 6, v0")
        A("v_and_b32 v6, 1, v0")
        A("v_lshl_or_b32 v6, v6, 20, v5")
        A("v_cmp_gt_u32 vcc, L_code_end-L_pc, v6")
        A("s_and_saveexec_b64 s[90:91], vcc")
        A("s_cbranch_execz L_noct")
        A("global_load_dword v2, v5, s[18:19]")
        A.label("L_noct")
        A("s_mov_b64 exec, -1")
    A("v_lshrrev_b32 v7, 6, v0")
    A("v_and_b32 v1, 63, v0")
    A(f"v_readfirstlane_b32 s{S_WAVE}, v7")
    A(f"s_and_b32 s{S_ROT}, s2, 7")
    A(f"s_lshr_b32 s{TMP1}, s2, 3")
    A(f"s_lshr_b32 s{S_M3}, s{TMP1}, 3")
    A(f"s_lshl_b32 s{S_MT}, s{S_ROT}, 2")
    A(f"s_add_u32 s{S_MT}, s{S_MT}, s{S_M3}")
    A(f"s_and_b32 s{S_NT}, s{TMP1}, 7")
    if ROT.startswith("xor"):
        A(f"s_add_u32 s{S_CH}, s{S_NT}, s{S_M3}")
        A(f"s_and_b32 s{S_CH}, s{S_CH}, {ROT[3:]}")
    if ROT == "mn":
        A(f"s_lshl_b32 s{S_ROT}, s{S_M3}, 1")
        A(f"s_add_u32 s{S_ROT}, s{S_ROT}, s{S_NT}")
    if ROT == "quarterm":
        A(f"s_and_b32 s{S_ROT}, s{S_NT}, 4")
        A(f"s_add_u32 s{S_ROT}, s{S_ROT}, s{S_M3}")
    if ROT == "half":
        A(f"s_and_b32 s{S_ROT}, s{S_NT}, 6")
    if ROT == "halfm2":
        A(f"s_and_b32 s{S_ROT}, s{S_NT}, 6")
        A(f"s_lshl_b32 s{TMP0}, s{S_M3}, 1")
        A(f"s_add_u32 s{S_ROT}, s{S_ROT}, s{TMP0}")
    if ROT == "halfmx":
        A(f"s_and_b32 s{TMP0}, s{S_NT}, 6")
        A(f"s_add_u32 s{S_ROT}, s{S_ROT}, s{TMP0}")
        A(f"s_add_u32 s{S_ROT}, s{S_ROT}, s{S_M3}")
    if ROT == "halfm":
        A(f"s_and_b32 s{S_ROT}, s{S_NT}, 6")
        A(f"s_add_u32 s{S_ROT}, s{S_ROT}, s{S_M3}")
    A(f"s_and_b32 s{S_T0}, s{S_MT}, 15")
    A(f"s_mul_i32 s{S_T0}, s{S_T0}, 250")
    A(f"s_sub_i32 s{S_T0}, s{S_T0}, 7")
    A(f"s_lshl_b32 s{S_M0W}, s{S_WAVE}, 10")
    A(f"s_lshl_b32 s{S_M0X}, s{S_WAVE}, 12")
    A(f"s_add_u32 s{S_M0X}, s{S_M0X}, {XOFF}")
    A("v_lshrrev_b32 v5, 3, v1")
    A("v_and_b32 v6, 7, v1")
    A("v_lshrrev_b32 v21, 1, v5")
    A("v_and_b32 v22, 1, v21")
    A("v_lshlrev_b32 v22, 2, v22")
    A(f"s_and_b32 s{TMP0}, s{S_WAVE}, 1")
    A(f"s_lshl_b32 s{TMP0}, s{TMP0}, 1")
    A(f"v_or_b32 v22, s{TMP0}, v22")
    A("v_xor_b32 v22, v22, v6")
    A("v_lshlrev_b32 v22, 4, v22")
    A(f"v_lshl_add_u32 v{VW}, v5, 11, v22")
    A(f"v_lshl_add_u32 v{VW2}, v5, 10, v22")
    A(f"s_lshl_b32 s{TMP0}, s{S_WAVE}, 14")
    A(f"s_lshl_b32 s{TMP1}, s{S_NT}, 7")
    A(f"s_add_u32 s{TMP0}, s{TMP0}, s{TMP1}")
    A(f"v_add_u32 v{VW}, s{TMP0}, v{VW}")
    A("v_lshrrev_b32 v7, 2, v5")
    A("v_and_b32 v8, 3, v5")
    A("v_lshl_add_u32 v7, v7, 3, v8")
    A(f"s_lshl_b32 s{TMP0}, s{S_WAVE}, 5")
    A(f"s_add_i32 s{TMP0}, s{TMP0}, s{S_T0}")
    A(f"v_add_u32 v7, s{TMP0}, v7")
    A("v_xor_b32 v8, v21, v6")
    A("v_lshlrev_b32 v8, 4, v8")
    A("v_xor_b32 v9, 64, v8")
    A("v_mov_b32 v20, 0x80000000")
    A(f"v_lshl_add_u32 v{VX}, v7, 10, v8")
    A(f"v_lshl_add_u32 v{VX+1}, v7, 10, v9")
    A(f"v_add_u32 v{VX+2}, 0x1000, v{VX}")
    A(f"v_add_u32 v{VX+3}, 0x5000, v{VX+1}")
    A(f"v_add_u32 v{VX+1}, 0x4000, v{VX+1}")
    A("v_cmp_gt_i32 vcc, 0, v7")
    A("v_cmp_gt_i32 s[90:91], -4, v7")
    A(f"s_add_i32 s{TMP0}, s{S_T0}, 256")
    A(f"v_add_u32 v21, s{TMP0}, v5")
    A(f"v_cndmask_b32 v{VX}, v{VX}, v20, vcc")
    A(f"v_cndmask_b32 v{VX+2}, v{VX+2}, v20, s[90:91]")
    A(f"v_lshl_add_u32 v{VS}, v21, 10, v8")
    if PFS:
        A(f"s_mul_i32 s{TMP0}, s{S_NT}, 33")
        A(f"s_add_i32 s{TMP0}, s{TMP0}, s{S_T0}")
        A(f"v_add_u32 v21, s{TMP0}, v1")
        A(f"v_lshlrev_b32 v{VPFX}, 10, v21")
        A("v_cmp_gt_i32 vcc, 0, v21")
        A("v_lshrrev_b32 v22, 1, v1")
        A("v_lshlrev_b32 v22, 11, v22")
        A(f"v_cndmask_b32 v{VPFX}, v{VPFX}, v20, vcc")
        A("v_and_b32 v21, 1, v1")
        A(f"v_lshl_add_u32 v22, v21, 10, v22")
        A(f"s_lshl_b32 s{TMP0}, s{S_M3}, 15")
        A(f"s_add_u32 s{TMP0}, s{TMP0}, s{TMP1}")
        A(f"v_add_u32 v{VPFW}, s{TMP0}, v22")
    A(f"s_lshr_b32 s{TMP0}, s{S_MT}, 4")
    A(f"s_mul_i32 s{TMP0}, s{TMP0}, 4096000")
    A("s_mov_b32 s22, 4096000"); A("s_mov_b32 s23, 0x20000")
    A("s_mov_b32 s26, 1048576"); A("s_mov_b32 s27, 0x20000")
    A("s_waitcnt lgkmcnt(0)")
    A(f"s_add_u32 s20, s4, s{TMP0}"); A("s_addc_u32 s21, s5, 0")
    A("s_mov_b32 s24, s6"); A("s_mov_b32 s25, s7")
    stamp(A, 1)
    dma_stage(A, Q, 0, None)
    A("s_mov_b32 s28, s8"); A("s_mov_b32 s29, s9"); A("s_mov_b32 s30, 15360"); A("s_mov_b32 s31, 0x20000")
    A("v_lshrrev_b32 v21, 3, v0")
    A("v_subrev_u32 v22, 7, v21")
    A("v_lshlrev_b32 v23, 10, v22")
    A("v_lshl_add_u32 v23, v6, 4, v23")
    A(f"s_lshl_b32 s{TMP3}, s{S_NT}, 7")
    A(f"v_add_u32 v23, s{TMP3}, v23")
    A("v_cmp_gt_i32 vcc, 0, v22")
    A("v_mul_u32_u24 v16, 144, v21")
    A("v_lshl_add_u32 v16, v6, 4, v16")
    A("v_cndmask_b32 v23, v23, v20, vcc")
    A(f"v_add_u32 v16, {DW_OFF}, v16")
    A("s_barrier")
    A(f"s_cmp_lt_u32 s{S_WAVE}, 4")
    A("s_cbranch_scc0 L_nodw")
    A(f"buffer_load_dwordx4 {vr(DUM)}, v23, s[28:31], 0 offen")
    A.label("L_nodw")
    dma_stage(A, Q, 1, None)
    A("s_mov_b32 s36, s16"); A("s_mov_b32 s37, s17"); A("s_mov_b32 s38, 0x1000000"); A("s_mov_b32 s39, 0x20000")
    A("s_mov_b32 s40, s10"); A("s_mov_b32 s41, s11"); A("s_mov_b32 s42, 524288"); A("s_mov_b32 s43, 0x20000")
    A(f"s_mul_i32 s{TMP0}, s{S_MT}, 256000")
    A(f"s_add_u32 s32, s12, s{TMP0}"); A("s_addc_u32 s33, s13, 0"); A("s_mov_b32 s34, 256000"); A("s_mov_b32 s35, 0x20000")
    A(f"s_and_b32 s{S_NQ}, s{S_WAVE}, 3")
    A("v_and_b32 v3, 15, v1")
    A("v_lshrrev_b32 v4, 4, v1")
    if ROT == "hyb":
        A(f"s_lshl_b32 s{TMP0}, s{S_M3}, 1")
        A(f"s_add_u32 s{TMP0}, s{TMP0}, s{S_NT}")
        for _ in range(2):
            A(f"s_sub_u32 s{TMP1}, s{TMP0}, 6")
            A(f"s_cmp_ge_u32 s{TMP0}, 6")
            A(f"s_cselect_b32 s{TMP0}, s{TMP1}, s{TMP0}")
        for k in range(6):
            A(f"s_add_u32 s{TMP1}, s{TMP0}, {k}")
            A(f"s_sub_u32 s{TMP2}, s{TMP1}, 6")
            A(f"s_cmp_ge_u32 s{TMP1}, 6")
            A(f"s_cselect_b32 s{TMP1}, s{TMP2}, s{TMP1}")
            A(f"s_add_u32 s{TMP1}, s{TMP1}, s{S_ROT}")
            A(f"s_add_u32 s{TMP1}, s{TMP1}, 2")
            A(f"s_and_b32 s{S_CH + k}, s{TMP1}, 7")
    A(f"s_lshl_b32 s{TMP0}, s{S_MT}, 3")
    A(f"v_mov_b32 v{VDBG}, s{TMP0}")
    A(f"s_getreg_b32 s{S_XCC}, hwreg(HW_REG_XCC_ID, 0, 4)")
    A(f"s_and_b32 s{S_XCC}, s{S_XCC}, 7")
    A(f"s_lshl_b32 s{S_XCC}, s{S_XCC}, 2")
    A(f"s_cmp_eq_u32 s{S_WAVE}, 5")
    A("s_cbranch_scc0 L_nohello")
    A(f"s_lshl_b32 s{TMP0}, 1, s{S_XCC}")
    A(f"v_mov_b32 v21, s{TMP0}")
    A("s_mov_b64 exec, 1")
    A(f"global_atomic_add v{VDBG}, v21, s[14:15] offset:4 sc1")
    A(f"s_cmp_eq_u32 s{S_NT}, 0")
    A("s_cbranch_scc0 L_noep")
    A(f"s_memrealtime s[{S_EP}:{S_EP+1}]")
    A("s_waitcnt lgkmcnt(0)")
    A(f"s_lshr_b64 s[{S_EP}:{S_EP+1}], s[{S_EP}:{S_EP+1}], 6")
    A(f"s_or_b32 s{S_EP}, s{S_EP}, 0x80000000")
    A(f"v_mov_b32 v21, s{S_EP}")
    A(f"global_store_dword v{VDBG}, v21, s[14:15] sc1")
    A.label("L_noep")
    A("s_mov_b64 exec, -1")
    A.label("L_nohello")
    A(f"s_lshl_b32 s{TMP0}, s{S_NQ}, 13")
    A(f"s_and_b32 s{TMP1}, s{S_NT}, 3")
    A(f"s_lshl_b32 s{TMP1}, s{TMP1}, 8")
    A(f"s_add_u32 s{TMP0}, s{TMP0}, s{TMP1}")
    A(f"v_add_u32 v{VW2}, s{TMP0}, v{VW2}")
    A(f"v_add_u32 v{VW2B}, 0x8000, v{VW2}")
    A(f"s_mov_b32 s{S_SEL0}, 0x05040100")
    A(f"s_mov_b32 s{S_SEL1}, 0x07060302")
    A(f"s_mov_b32 s{S_C}, 0x{NEG_LOG2E:x}")
    A(f"s_mov_b32 s{S_C+1}, 0x{NEG_LOG2E:x}")
    A("v_lshrrev_b32 v5, 3, v3")
    A("v_and_b32 v6, 7, v3")
    A("v_lshlrev_b32 v5, 10, v5")
    A("v_lshl_add_u32 v5, v6, 7, v5")
    A("v_lshrrev_b32 v6, 1, v3")
    A("v_xor_b32 v6, v6, v4")
    A("v_lshl_add_u32 v7, v6, 4, v5")
    A("v_xor_b32 v8, 64, v7")
    for sl in range(3):
        A(f"v_add_u32 v{VXA+sl*2}, {R[sl] + XOFF}, v7")
        A(f"v_add_u32 v{VXA+sl*2+1}, {R[sl] + XOFF}, v8")
    A("v_lshrrev_b32 v5, 2, v3")
    A("v_and_b32 v6, 3, v3")
    A("v_lshrrev_b32 v7, 1, v6")
    A(f"s_lshl_b32 s{TMP0}, s{S_NQ}, 1")
    A(f"v_or_b32 v7, s{TMP0}, v7")
    A("v_lshrrev_b32 v8, 1, v5")
    A("v_lshlrev_b32 v8, 2, v8")
    A("v_and_b32 v9, 1, v4")
    A("v_lshl_or_b32 v8, v9, 1, v8")
    A("v_xor_b32 v7, v7, v8")
    A("v_lshlrev_b32 v7, 4, v7")
    A("v_lshl_add_u32 v7, v5, 7, v7")
    A("v_lshl_add_u32 v7, v4, 10, v7")
    A("v_and_b32 v6, 1, v6")
    A("v_lshl_add_u32 v7, v6, 3, v7")
    for sl in range(3):
        A(f"v_add_u32 v{VWA+sl}, {R[sl]}, v7")
    A("v_lshlrev_b32 v5, 3, v4")
    A("v_sub_u32 v5, v5, v3")
    A("v_add_u32 v5, 7, v5")
    A("v_cmp_lt_u32 vcc, 21, v5")
    A("v_mov_b32 v6, 22")
    A(f"s_lshl_b32 s{TMP0}, s{S_WAVE}, 4")
    A("v_cndmask_b32 v5, v5, v6, vcc")
    A("v_mul_u32_u24 v5, 144, v5")
    A(f"s_add_u32 s{TMP0}, s{TMP0}, {DW_OFF}")
    A(f"v_add_u32 v9, s{TMP0}, v5")
    A(f"s_cmp_ge_u32 s{S_WAVE}, 4")
    A("s_cbranch_scc1 L_path1")

def path(A, mh, Q0):
    NT = 9 if mh == 0 else 8
    Q = VQ(); Q.q = list(Q0.q)
    A(f"s_waitcnt vmcnt({Q.after('st0')})")
    if mh == 0:
        A(f"ds_write_b128 v16, {vr(DUM)}")
        A(f"v_mov_b32 v5, {CNT_OFF}")
        A("v_mov_b32 v6, 0")
        A("v_mov_b32 v7, 0")
        A("ds_write_b64 v5, v[6:7]")
        A("s_waitcnt lgkmcnt(0)")
    A("s_barrier")
    stamp(A, 2)
    def reads(j):
        c, ks = j >> 1, j & 1
        sl, buf = c % 3, j & 1
        Rr = []
        for part in range(2):
            for h in range(2):
                d = WF + buf * 8 + part * 4 + h * 2
                Rr.append(f"ds_read_b64_tr_b16 v[{d}:{d+1}], v{VWA+sl} offset:{part*8192 + ks*4096 + h*512}")
        for tt in range(NT):
            tile = (mh * 8 + tt) if tt < 8 else 16
            d = XF + buf * 36 + tt * 4
            Rr.append(f"ds_read_b128 {vr(d)}, v{VXA+sl*2+ks} offset:{tile*2048}")
        return Rr
    def tail_loads():
        A(f"global_load_dwordx2 v[30:31], v{VDBG}, s[14:15] sc1")
        Q.add("misc", 1)
        if mh == 0:
            A(f"s_lshl_b32 s{S_M0X}, s{S_NQ}, 10")
            for k in range(2):
                for g in w2_unit(0, k): A(g)
            Q.add("w2", 4)
            A(f"s_cmp_lt_u32 s{S_NQ}, 2")
            A("s_cbranch_scc0 L_nopf_W2all")
            A(f"s_lshr_b32 s{TMP0}, s2, 3")
            A(f"s_lshl_b32 s{TMP0}, s{TMP0}, 1")
            A(f"s_add_u32 s{TMP0}, s{TMP0}, s{S_NQ}")
            A(f"s_lshl_b32 s{TMP0}, s{TMP0}, 13")
            A("v_lshlrev_b32 v5, 7, v1")
            A(f"buffer_load_dword v2, v5, s[40:43], s{TMP0} offen")
            A.label("L_nopf_W2all")
            if PRE:
                A(f"s_lshl_b32 s{TMP2}, s{S_NT}, 3")
                A(f"s_add_u32 s{TMP2}, s{TMP2}, s{S_WAVE}")
                A(f"s_lshl_b32 s{TMP2}, s{TMP2}, 9")
                A(f"s_lshl_b32 s{TMP3}, s{S_MT}, 18")
                A(f"s_add_u32 s{TMP2}, s{TMP2}, s{TMP3}")
                A("v_lshrrev_b32 v5, 2, v1")
                A("v_and_b32 v5, 7, v5")
                A("v_lshlrev_b32 v5, 15, v5")
                A("v_and_b32 v6, 3, v1")
                A("v_lshl_add_u32 v5, v6, 7, v5")
                A("v_lshrrev_b32 v6, 5, v1")
                A("v_lshl_add_u32 v5, v6, 11, v5")
                A(f"buffer_load_dword v2, v5, s[36:39], s{TMP2} offen{PTF}")
                A(f"s_mov_b64 exec, 15")
                A(f"s_lshl_b32 s{TMP2}, s{S_MT}, 9")
                A(f"s_add_u32 s{TMP2}, s{TMP2}, {FLAG_OFF}")
                A(f"buffer_load_dword v2, v5, s[36:39], s{TMP2} offen{PTF}")
                A(f"s_mov_b64 exec, -1")
                Q.add("misc", 2)
    for r in reads(0): A(r)
    if mh == 1: dma_stage(A, Q, 2, mh)
    extra = []
    for j in range(16):
        buf = j & 1
        cn = (j + 1) >> 1
        boundary = (j & 1) == 1 and j < 15 and not (mh == 0 and j == 13)
        if boundary:
            A(f"s_waitcnt vmcnt({Q.after(f'st{cn}')}) lgkmcnt(0)")
            A("s_barrier")
            if S1ST: stamp(A, 2 + cn, True)
            if cn == 6:
                if mh == 1:
                    A("s_setprio 3")
                    tail_loads()
                else:
                    tail_loads()
                    A(f"s_waitcnt vmcnt({Q.after('st7')})")
                    A("s_barrier")
                    if S1ST: stamp(A, 9, True)
                    A("s_setprio 1")
        stg = None
        if mh == 0 and (j & 1) == 1 and j < 15: stg = cn + 2
        if mh == 1 and (j & 1) == 0 and j >= 2 and j != 10: stg = (j >> 1) + 2
        if mh == 1 and j == 9: stg = 7
        if stg is not None and stg < 8: dma_stage(A, Q, stg, mh)
        Rn = reads(j + 1) if j < 15 else []
        if j == 2:
            Rn = [f"ds_read_b128 {vr(RRT + 4*e)}, v9 offset:{e*144}" for e in range(8)] + Rn
        if j == 3:
            extra = [f"v_perm_b32 v{TT + 4*jj + d}, v{RRT + 4*(2*d+1) + (jj>>1)}, v{RRT + 4*(2*d) + (jj>>1)}, s{S_SEL0 + (jj&1)}" for jj in range(8) for d in range(4)]
        issued = 0
        for tt in range(NT):
            for part in range(2):
                if part == 0 and not boundary:
                    A(f"s_waitcnt lgkmcnt({min(15, (NT - 1 - tt) + issued)})")
                a = ACC + (tt * 2 + part) * 4
                cin = "0" if j == 0 else vr(a)
                A(f"v_mfma_f32_16x16x32_bf16 {vr(a)}, {vr(XF + buf*36 + tt*4)}, {vr(WF + buf*8 + part*4)}, {cin}")
                k = 2 if (j == 2 and issued < 10) else 1
                for _ in range(k):
                    if issued < len(Rn):
                        A(Rn[issued]); issued += 1
                    elif extra:
                        A(extra.pop(0))
        assert issued == len(Rn)
        if j == 0 and mh == 0: dma_stage(A, Q, 2, mh)
    assert not extra
    A("s_setprio 0")
    stamp(A, 3)
    pk = (mh == 0)
    A(f"s_lshl_b32 s{TMP0}, s{S_NQ}, 4")
    A(f"v_add_u32 v5, s{TMP0}, v3")
    A(f"v_mul_u32_u24 v5, {HT_STRIDE}, v5")
    A(f"v_add_u32 v5, {HT_OFF}, v5")
    A("v_lshl_add_u32 v6, v4, 4, v5")
    A("v_lshl_add_u32 v7, v4, 3, v5")
    A("s_nop 1")
    T0 = XF
    for p in range(4):
        a = [ACC + ((2*p + o) * 2 + 0) * 4 + r for o in range(2) for r in range(4)]
        b = [ACC + ((2*p + o) * 2 + 1) * 4 + r for o in range(2) for r in range(4)]
        O = T0 + 8 + 4 * (p & 1)
        for op in glu(pk, a, b, [T0 + i for i in range(8)], [O + i for i in range(4)]): A(op)
        A(f"ds_write_b128 v6, {vr(O)} offset:{(4*mh + p) * 64}")
    if mh == 0:
        a = [ACC + 16 * 4 + r for r in range(4)]
        b = [ACC + 17 * 4 + r for r in range(4)]
        O = T0 + 16
        A("v_cmp_gt_u32 vcc, 2, v4")
        for op in glu(pk, a, b, [T0 + i for i in range(4)], [O, O + 1]): A(op)
        A(f"v_cndmask_b32 v{O}, 0, v{O}, vcc")
        A(f"v_cndmask_b32 v{O+1}, 0, v{O+1}, vcc")
        A(f"ds_write_b64 v7, v[{O}:{O+1}] offset:512")
        A(f"s_waitcnt vmcnt({Q.after('w2')})")

def epilogue1(A, mh):
    A(f"s_mul_i32 s{TMP0}, s{S_WAVE}, {8*HT_STRIDE}")
    A(f"s_add_u32 s{TMP0}, s{TMP0}, {HT_OFF}")
    A("v_lshlrev_b32 v5, 5, v3")
    A("v_lshl_add_u32 v5, v4, 4, v5")
    A(f"v_add_u32 v5, s{TMP0}, v5")
    A(f"s_lshl_b32 s{TMP2}, s{S_NT}, 3")
    A(f"s_add_u32 s{TMP2}, s{TMP2}, s{S_WAVE}")
    A(f"s_lshl_b32 s{TMP1}, s{TMP2}, 3")
    A(f"v_mov_b32 v11, s{TMP1}")
    A(f"s_lshl_b32 s{TMP2}, s{TMP2}, 9")
    A(f"s_lshl_b32 s{TMP3}, s{S_MT}, 18")
    A(f"s_add_u32 s{TMP2}, s{TMP2}, s{TMP3}")
    A("v_lshlrev_b32 v6, 16, v4")
    A("v_lshl_add_u32 v6, v3, 4, v6")
    A("v_add_u32 v7, 0x8000, v6")
    A(f"s_lshl_b32 s{TMP3}, s{S_MT}, 9")
    A(f"s_add_u32 s{TMP3}, s{TMP3}, {FLAG_OFF}")
    A(f"s_lshl_b32 s{S_M0X}, s{S_NQ}, 10")
    A(f"v_mov_b32 v14, {CNT_OFF}")
    A("v_mov_b32 v15, 1")
    if mh == 1:
        A("s_waitcnt vmcnt(0)")
    A("s_waitcnt lgkmcnt(0)")
    A("s_barrier")
    stamp(A, 4)
    HA, Y, T0, O0 = 32, 64, 96, 160
    for j in range(8):
        A(f"ds_read_b128 {vr(HA + 4*j)}, v5 offset:{j*HT_STRIDE}")
    if mh == 1:
        for k in range(2, 8):
            for g in w2_unit(0, k): A(g)
        for k in range(H1F):
            for g in w2_unit(1, k): A(g)
    else:
        A("s_setprio 2")
    for j in range(8):
        A(f"s_waitcnt lgkmcnt({7-j})")
        A(f"v_mfma_f32_16x16x32_bf16 {vr(Y + 4*j)}, {vr(HA + 4*j)}, {vr(TT + 4*j)}, 0")
    if mh == 0:
        A(f"s_waitcnt vmcnt({3 if PRE else 1})")
    A(f"v_readfirstlane_b32 s{S_EP}, v30")
    A(f"v_readfirstlane_b32 s{S_FAST}, v31")
    A(f"s_lshl_b32 s{TMP0}, 8, s{S_XCC}")
    A(f"s_cmp_eq_u32 s{S_FAST}, s{TMP0}")
    A(f"s_cselect_b32 s{S_FAST}, {1 if FAST else 0}, 0")
    A("s_nop 2")
    for half in range(2):
        y = [Y + 4*j + 2*half + rr for j in range(8) for rr in range(2)]
        t = [T0 + 16*half + i for i in range(16)]
        wr = []
        if mh == 1 and half == CPOS:
            A("s_waitcnt vmcnt(0)")
            A("s_mov_b64 exec, 1")
            A("ds_add_u32 v14, v15")
            A("s_mov_b64 exec, -1")
            wr = [g for k in range(H1F, H1E) for g in w2_unit(1, k)]
        for n_, op in enumerate(glu_pk(y, y, t)):
            A(op)
            if wr and n_ % 4 == 1: A(wr.pop(0))
        for g in wr: A(g)
        for rr in range(2):
            for i in range(4):
                A(f"v_cvt_pk_bf16_f32 v{O0 + 4*(2*half+rr) + i}, v{t[2*(2*i) + rr]}, v{t[2*(2*i+1) + rr]}")
    A(f"s_cmp_lg_u32 s{S_EP}, 0")
    A(f"s_cselect_b32 s{S_FAST}, s{S_FAST}, 0")
    A(f"s_not_b32 s{S_EP+1}, s{S_EP}")
    A(f"v_mov_b32 v16, s{S_EP}")
    A(f"v_mov_b32 v17, s{S_EP+1}")
    A(f"s_cmp_eq_u32 s{S_FAST}, 1")
    A(f"s_cbranch_scc0 L_slow{mh}")
    for r in range(4):
        A(f"buffer_store_dwordx4 {vr(O0 + 4*r)}, v{6 + (r>>1)}, s[36:39], s{TMP2} offen offset:{(r&1)*256}{SST}")
    stamp(A, 5)
    if mh == 0:
        phase2_setup(A)
    A("s_mov_b64 exec, 1")
    A("s_waitcnt vmcnt(0)")
    if DRST: stamp(A, 1)
    A(f"buffer_store_dwordx2 v[16:17], v11, s[36:39], s{S_FL} offen{FST}" if mh == 0 else f"buffer_store_dwordx2 v[16:17], v11, s[36:39], s{TMP3} offen{FST}")
    A("s_mov_b64 exec, -1")
    A.label(f"L_join{mh}")
    if mh == 1:
        for k in range(max(H1E, H1F), 6):
            for g in w2_unit(1, k): A(g)
        A("s_waitcnt vmcnt(0)")
        A("s_barrier")
        stamp(A, 6)
        for k in (6, 7):
            for g in w2_unit(1, k): A(g)
        A("s_waitcnt vmcnt(0)")
        A("s_barrier")
        if STAMPS:
            A("s_waitcnt lgkmcnt(0)")
            A("s_mov_b64 exec, 1")
            A(f"s_lshl_b32 s{TMP0}, s2, 3")
            A(f"s_add_u32 s{TMP0}, s{TMP0}, s{S_WAVE}")
            A(f"s_lshl_b32 s{TMP0}, s{TMP0}, 6")
            A(f"s_add_u32 s{TMP0}, s{TMP0}, {STAMP_OFF + 0x40000}")
            A(f"v_mov_b32 v3, s{TMP0}")
            for j in range(7):
                A(f"v_mov_b32 v4, s{S_STB+2*j}"); A(f"v_mov_b32 v5, s{S_STB+2*j+1}")
                A(f"buffer_store_dwordx2 v[4:5], v3, s[36:39], 0 offen offset:{8*j}")
                A("s_nop 1")
            A(f"s_getreg_b32 s{TMP1}, hwreg(HW_REG_HW_ID)")
            A(f"v_mov_b32 v4, s{TMP1}"); A("v_mov_b32 v5, 0")
            A(f"buffer_store_dwordx2 v[4:5], v3, s[36:39], 0 offen offset:56")
        A("s_endpgm")

def slow_path(A, mh):
    O0 = 160
    A.label(f"L_slow{mh}")
    for r in range(4):
        A(f"buffer_store_dwordx4 {vr(O0 + 4*r)}, v{6 + (r>>1)}, s[36:39], s{TMP2} offen offset:{(r&1)*256} sc1")
    A(f"s_mov_b32 s{S_SPIN}, 0")
    A.label(f"L_ep_chk{mh}")
    A(f"s_cmp_lg_u32 s{S_EP}, 0")
    A(f"s_cbranch_scc1 L_ep_ok{mh}")
    A(f"global_load_dwordx2 v[30:31], v{VDBG}, s[14:15] sc1")
    A(f"s_add_u32 s{S_SPIN}, s{S_SPIN}, 1")
    A("s_waitcnt vmcnt(0)")
    A(f"v_readfirstlane_b32 s{S_EP}, v30")
    A(f"s_cmp_lt_u32 s{S_SPIN}, 0x40000")
    A(f"s_cbranch_scc1 L_ep_chk{mh}")
    A.label(f"L_ep_ok{mh}")
    A(f"s_not_b32 s{S_EP+1}, s{S_EP}")
    A(f"v_mov_b32 v16, s{S_EP}")
    A(f"v_mov_b32 v17, s{S_EP+1}")
    A("s_mov_b64 exec, 1")
    A("s_waitcnt vmcnt(0)")
    A(f"buffer_store_dwordx2 v[16:17], v11, s[36:39], s{TMP3} offen sc1")
    A("s_mov_b64 exec, -1")
    if mh == 0:
        phase2_setup(A)
    A(f"s_branch L_join{mh}")

S_FL = 91
def phase2_setup(A):
    A(f"s_mov_b32 s{S_FL}, s{TMP3}")
    A(f"s_lshr_b32 s{TMP0}, s{S_NT}, 2")
    A(f"s_lshl_b32 s{TMP0}, s{TMP0}, 2")
    A(f"s_add_u32 s{TMP0}, s{TMP0}, s{S_WAVE}")
    A(f"s_lshl_b32 s90, s{TMP0}, 15")
    A(f"s_lshl_b32 s{TMP1}, s{S_MT}, 18")
    A(f"s_add_u32 s{TMP1}, s{TMP1}, s90")
    A("v_lshlrev_b32 v12, 4, v1")
    A(f"v_add_u32 v12, s{TMP1}, v12")
    A("v_lshrrev_b32 v5, 2, v3")
    A("v_and_b32 v8, 3, v3")
    A("v_lshrrev_b32 v9, 1, v8")
    A("v_and_b32 v10, 1, v4")
    A("v_lshl_or_b32 v9, v10, 1, v9")
    A("v_lshrrev_b32 v10, 1, v5")
    A("v_lshlrev_b32 v10, 2, v10")
    A("v_lshrrev_b32 v13, 1, v4")
    A("v_lshl_or_b32 v10, v13, 1, v10")
    A("v_xor_b32 v9, v9, v10")
    A("v_lshlrev_b32 v9, 4, v9")
    A("v_lshl_add_u32 v9, v5, 7, v9")
    A("v_lshl_add_u32 v9, v13, 10, v9")
    A("v_and_b32 v8, 1, v8")
    A("v_lshl_add_u32 v22, v8, 3, v9")
    A("v_xor_b32 v23, 64, v22")
    for wdw in (1, 2):
        A(f"v_add_u32 v{22+2*wdw}, {wdw*0x10000}, v22")
        A(f"v_add_u32 v{23+2*wdw}, {wdw*0x10000}, v23")
    for s_ in range(8):
        A(f"s_add_u32 s{TMP0}, s{S_NT}, {s_}")
        A(f"s_and_b32 s{TMP0}, s{TMP0}, 7")
        A(f"s_lshl_b32 s{20+s_}, s{TMP0}, 12")
    A(f"s_lshl_b32 s{TMP0}, s{S_NT}, 3")
    A(f"v_add_u32 v13, s{TMP0}, v1")
    A("v_and_b32 v13, 63, v13")
    A("v_lshlrev_b32 v13, 3, v13")
    A(f"s_mov_b32 s{S_SPIN}, 0")

def phase2(A):
    SF, ACC2, WF2 = 128, 64, 32
    def dec(i): return i >> 4, (i >> 1) & 7, i & 1
    TAILN = int(opt("tailn", "4"))
    seq = [(j, ct) for j in range(32 - TAILN) for ct in range(4)]
    seq += [(j, ct) for j in range(32 - TAILN, 32) for ct in (0, 1)] + [(j, ct) for j in range(32 - TAILN, 32) for ct in (2, 3)]
    def wreads(n):
        i, ct = seq[n]
        h, k, e = dec(i)
        part, ctp = ct >> 1, ct & 1
        Rr = []
        for hh in range(2):
            off = UPOS(h, k) + part * 4096 + e * 2048 + hh * 512
            base = 22 + ctp + 2 * (off >> 16)
            d = WF2 + (n % 8) * 4 + hh * 2
            Rr.append(f"ds_read_b64_tr_b16 v[{d}:{d+1}], v{base} offset:{off & 0xffff}")
        return Rr
    def reads(i): return [r for n in range(4*i, 4*i+4) for r in wreads(n)]
    def sload(i):
        h, k, e = dec(i)
        return f"buffer_load_dwordx4 {vr(SF + i*4)}, v12, s[36:39], s{20 + k} offen offset:{(2*h+e)*1024}{SLD}"
    S_MK = 28
    A("s_mov_b64 exec, 1")
    A("ds_add_u32 v14, v15 offset:4")
    A("s_mov_b64 exec, -1")
    for r in reads(0): A(r)
    A.label("L_cntA")
    A("ds_read_b32 v5, v14 offset:4")
    A("s_waitcnt lgkmcnt(0)")
    A(f"v_readfirstlane_b32 s{TMP0}, v5")
    A(f"s_cmp_lt_u32 s{TMP0}, 4")
    A("s_cbranch_scc1 L_cntA")
    A(sload(0)); A(sload(1))
    A(f"buffer_load_dwordx2 v[18:19], v13, s[36:39], s{S_FL} offen{PLD}")
    stamp(A, 6)
    spins = []
    def check(u):
        h, k = u >> 3, u & 7
        reg = S_MK + (k >> 2)
        A(f"s_bfe_u32 s{TMP0}, s{reg}, {((k & 3) * 8 + 4 * h) | (4 << 16)}")
        A(f"s_cmp_eq_u32 s{TMP0}, 15")
        A(f"s_cbranch_scc0 L_spin{u}")
        A.label(f"L_back{u}")
        spins.append(u)
    nissued = [2]
    def issue_upto(n):
        while nissued[0] < min(32, n):
            jj = nissued[0]
            if jj % 2 == 0: check(jj // 2)
            A(sload(jj)); nissued[0] += 1
    stamp(A, 7)
    def epi_setup():
        return ["v_and_b32 v5, 31, v1", "v_lshrrev_b32 v6, 5, v1", "v_and_b32 v7, 7, v5", "v_xor_b32 v7, v7, v6", "v_lshlrev_b32 v7, 4, v7",
                "v_lshl_add_u32 v7, v5, 7, v7", f"s_lshl_b32 s{TMP1}, s{S_WAVE}, 13", f"v_add_u32 v7, s{TMP1}, v7",
                "v_xor_b32 v8, 32, v7", "v_xor_b32 v9, 64, v7", "v_xor_b32 v10, 96, v7",
                "v_lshrrev_b32 v5, 3, v1", "v_and_b32 v6, 7, v1", "v_xor_b32 v11, v5, v6", "v_lshlrev_b32 v11, 4, v11",
                "v_lshl_add_u32 v11, v5, 7, v11", f"v_add_u32 v11, s{TMP1}, v11", "v_lshlrev_b32 v6, 4, v6", "v_lshl_add_u32 v6, v5, 10, v6",
                f"s_and_b32 s{TMP1}, s{S_NT}, 3", f"s_lshl_b32 s{TMP1}, s{TMP1}, 8", f"s_add_u32 s90, s90, s{TMP1}"]
    def pack(half):
        ops = []
        for ctp in range(2):
            for qq in range(2):
                a = ACC2 + (half * 2 + ctp) * 16 + qq * 8
                O = SF + 16 * half + 4 * (ctp * 2 + qq)
                for i in range(4): ops.append(f"v_cvt_pk_bf16_f32 v{O+i}, v{a+2*i}, v{a+2*i+1}")
        for ctp in range(2):
            for qq in range(2):
                O = SF + 16 * half + 4 * (ctp * 2 + qq)
                ops.append(f"v_permlane32_swap_b32 v{O}, v{O+2}")
                ops.append(f"v_permlane32_swap_b32 v{O+1}, v{O+3}")
        for ctp in range(2):
            for qq in range(2):
                O = SF + 16 * half + 4 * (ctp * 2 + qq)
                ops.append(f"ds_write_b128 v{7 + 2*ctp + qq}, {vr(O)} offset:{R[0] + half*4096}")
        return ops
    extra = []
    N = len(seq)
    n_h0 = max(n for n in range(N) if seq[n][1] < 2)
    for n, (j, ct) in enumerate(seq):
        first_of_j = all(seq[m][0] != j for m in range(n))
        w = f"lgkmcnt({min(6, 2 * (N - 1 - n))})"
        if first_of_j: w = f"vmcnt({nissued[0] - 1 - j + (1 if j == 0 else 0)}) " + w
        A(f"s_waitcnt {w}")
        if n == 12:
            A.label("L_cnt")
            A("ds_read_b32 v5, v14")
            A("s_waitcnt lgkmcnt(0)")
            A(f"v_readfirstlane_b32 s{TMP0}, v5")
            A(f"s_cmp_lt_u32 s{TMP0}, 4")
            A("s_cbranch_scc1 L_cnt")
        if n in (4 * BFJ, 4 * 27):
            A("s_barrier")
        a = ACC2 + ct * 16
        cin = "0" if j == 0 else vr(a, 16)
        A(f"v_mfma_f32_32x32x16_bf16 {vr(a,16)}, {vr(WF2 + (n % 8)*4)}, {vr(SF + j*4)}, {cin}")
        if n + 4 < N:
            for r in wreads(n + 4): A(r)
        if n == 0:
            A("s_waitcnt vmcnt(0)")
            A(f"v_cmp_eq_u64 s[{S_MK}:{S_MK+1}], s[{S_EP}:{S_EP+1}], v[18:19]")
        issue_upto(min(32, j + 1 + SAHEAD, nissued[0] + 2))
        if n == 4 * 20: extra = epi_setup()
        if n == n_h0 + 2: extra = pack(0)
        for _ in range(2 if n <= n_h0 else 5):
            if extra: A(extra.pop(0))
        if n == 19: stamp(A, 8)
    for op in extra: A(op)
    stamp(A, 9)
    RB = 32
    A("s_waitcnt lgkmcnt(0)")
    for i in range(4): A(f"ds_read_b128 {vr(RB + 4*i)}, v11 offset:{R[0] + i*1024}")
    A("s_nop 5")
    p1 = pack(1)
    for op in p1[:16]: A(op)
    for i in range(4):
        A(f"s_waitcnt lgkmcnt({3-i})")
        A(f"s_add_u32 s{TMP0}, s90, {i*8192}")
        A(f"buffer_store_dwordx4 {vr(RB + 4*i)}, v6, s[32:35], s{TMP0} offen{OST}")
    for op in p1[16:]: A(op)
    A("s_waitcnt lgkmcnt(0)")
    for i in range(4): A(f"ds_read_b128 {vr(RB + 16 + 4*i)}, v11 offset:{R[0] + 4096 + i*1024}")
    for i in range(4):
        A(f"s_waitcnt lgkmcnt({3-i})")
        A(f"s_add_u32 s{TMP0}, s90, {i*8192 + 128}")
        A(f"buffer_store_dwordx4 {vr(RB + 16 + 4*i)}, v6, s[32:35], s{TMP0} offen{OST}")
    if STAMPS:
        ns = 12
        A("s_waitcnt vmcnt(0)")
        stamp(A, ns - 2)
        A(f"s_mov_b64 s[{S_STB+2*(ns-1)}:{S_STB+2*(ns-1)+1}], s[98:99]")
        if P2T:
            A(f"s_add_u32 s{S_STB+2*(ns-1)}, s{S_STB}, s{S_SPIN}")
            A(f"s_addc_u32 s{S_STB+2*(ns-1)+1}, s{S_STB+1}, 0")
        A(f"s_memrealtime s[{S_EP}:{S_EP+1}]")
        A("s_waitcnt lgkmcnt(0)")
        A("s_mov_b64 exec, 1")
        A(f"s_lshl_b32 s{TMP0}, s2, 3")
        A(f"s_add_u32 s{TMP0}, s{TMP0}, s{S_WAVE}")
        A(f"s_lshl_b32 s{TMP0}, s{TMP0}, 6")
        A(f"s_add_u32 s{TMP0}, s{TMP0}, {STAMP_OFF + 0x40000}")
        A(f"v_mov_b32 v3, s{TMP0}")
        for j in range(7):
            A(f"v_mov_b32 v4, s{S_STB+2*j}"); A(f"v_mov_b32 v5, s{S_STB+2*j+1}")
            A(f"buffer_store_dwordx2 v[4:5], v3, s[36:39], 0 offen offset:{8*j}")
            A("s_nop 1")
        A(f"s_getreg_b32 s{TMP1}, hwreg(HW_REG_HW_ID)")
        A(f"v_mov_b32 v4, s{TMP1}"); A("v_mov_b32 v5, 0")
        A(f"buffer_store_dwordx2 v[4:5], v3, s[36:39], 0 offen offset:56")
        A(f"s_cmp_eq_u32 s{S_WAVE}, 0")
        A("s_cbranch_scc0 L_end")
        A(f"s_mul_i32 s{TMP0}, s2, {8*(ns+1)}")
        A(f"s_add_u32 s{TMP0}, s{TMP0}, {STAMP_OFF}")
        A(f"v_mov_b32 v3, s{TMP0}")
        for j in range(ns):
            A(f"v_mov_b32 v4, s{S_STB+2*j}"); A(f"v_mov_b32 v5, s{S_STB+1+2*j}")
            A(f"buffer_store_dwordx2 v[4:5], v3, s[36:39], 0 offen offset:{8*j}")
            A("s_nop 1")
        A(f"v_mov_b32 v4, s{S_EP}"); A(f"v_mov_b32 v5, s{S_EP+1}")
        A(f"buffer_store_dwordx2 v[4:5], v3, s[36:39], 0 offen offset:{8*ns}")
    if DIAG:
        a, b, wg = [int(v) for v in DIAG.split(",")]
        A("s_waitcnt vmcnt(0)")
        stamp(A, 10)
        A("s_waitcnt lgkmcnt(0)")
        A(f"s_sub_u32 s{TMP0}, s{S_STB+2*b}, s{S_STB+2*a}")
        if wg >= 0:
            A(f"s_cmp_eq_u32 s2, {wg}")
            A(f"s_cselect_b32 s{TMP0}, s{TMP0}, 0")
        A(f"s_lshr_b32 s{TMP0}, s{TMP0}, 1")
        A(f"s_add_u32 s{TMP0}, s{TMP0}, 3000")
        A.label("L_diag")
        A("s_sleep 4")
        A(f"s_memrealtime s[{S_EP}:{S_EP+1}]")
        A("s_waitcnt lgkmcnt(0)")
        A(f"s_sub_u32 s{TMP1}, s{S_EP}, s98")
        A(f"s_cmp_lt_u32 s{TMP1}, s{TMP0}")
        A("s_cbranch_scc1 L_diag")
    A.label("L_end")
    A("s_endpgm")
    for u in spins:
        h, kk = u >> 3, u & 7
        k = u
        reg = S_MK + (kk >> 2)
        A.label(f"L_spin{k}")
        A(f"buffer_load_dwordx2 v[20:21], v13, s[36:39], s{S_FL} offen{PLD}")
        A(f"s_add_u32 s{S_SPIN}, s{S_SPIN}, 1")
        A("s_waitcnt vmcnt(0)")
        A(f"v_cmp_eq_u64 s[{S_MK}:{S_MK+1}], s[{S_EP}:{S_EP+1}], v[20:21]")
        A(f"s_cmp_ge_u32 s{S_SPIN}, 0x40000")
        A(f"s_cbranch_scc1 L_back{k}")
        A(f"s_bfe_u32 s{TMP0}, s{reg}, {((kk & 3) * 8 + 4 * h) | (4 << 16)}")
        A(f"s_cmp_eq_u32 s{TMP0}, 15")
        A(f"s_cbranch_scc0 L_spin{k}")
        A(f"s_branch L_back{k}")

A = Asm()
A.raw(f"; @launch grid=(256,1,1) block=(512,1,1) lds={LDS_TOTAL}")
A.raw('.amdgcn_target "amdgcn-amd-amdhsa--gfx950"')
A.raw(".text")
A.raw(f".globl {KN}")
A.raw(".p2align 8")
A.raw(f".type {KN},@function")
A.label(KN)
Q = VQ()
prologue(A, Q)
path(A, 0, Q)
epilogue1(A, 0)
phase2(A)
A.label("L_path1")
path(A, 1, Q)
epilogue1(A, 1)
slow_path(A, 0)
slow_path(A, 1)
A.label("L_code_end")
A.raw('.section .rodata,"a"')
A.raw(f""".p2align 6
.amdhsa_kernel {KN}
  .amdhsa_next_free_vgpr 256
  .amdhsa_next_free_sgpr 102
  .amdhsa_accum_offset 256
  .amdhsa_group_segment_fixed_size 0
  .amdhsa_kernarg_size 56
  .amdhsa_user_sgpr_count 2
  .amdhsa_user_sgpr_kernarg_segment_ptr 1
  .amdhsa_system_sgpr_workgroup_id_x 1
.end_amdhsa_kernel""")
open(OUT, "w").write("\n".join(A.L) + "\n")
```

```python
import sys

class Asm:
    def __init__(self): self.L = []
    def __call__(self, s): self.L.append("    " + s)
    def label(self, s): self.L.append(s + ":")
    def raw(self, s): self.L.append(s)

def vr(b, n=4): return f"v[{b}:{b+n-1}]"
OUT = sys.argv[1]
def opt(name, default):
    for a in sys.argv:
        if a.startswith("--" + name + "="): return a.split("=", 1)[1]
    return default
def pol(name, default):
    v = opt(name, default)
    return "" if v == "plain" else " " + v.replace("+", " ")
STAMPS = "--stamps" in sys.argv
S1ST = "--s1st" in sys.argv
PST = "--pst" in sys.argv
DRST = "--drst" in sys.argv
XNT = pol("xnt", "plain")
SST = pol("sst", "nt")
OST = pol("ost", "nt")
PTF = pol("ptf", "plain")
ROT = opt("rot", "xor2")
FAST = opt("fast", "1") == "1"
PRE = opt("pre", "1") == "1"
CTOUCH = opt("ctouch", "1") == "1"
PFA = int(opt("pfa", "0"))
PFB = opt("pfb", "0") == "1"
PFS = {}
for part_ in [p for p in opt("pfs", "").split(";") if p]:
    k_, v_ = part_.split(":")
    PFS[int(k_)] = [int(x) for x in v_.split(",")]
VPX, VPW = 17, 8
SFIRST = int(opt("sfirst", "4"))
BFJ = int(opt("bfj", "15"))
POLL0 = opt("poll0", "0x0f0f")
PLD = pol("pld", "sc1")
SLD = pol("sld", "sc1")
FST = pol("fst", "plain")
H1E = int(opt("h1e", "0"))
H1F = int(opt("h1f", "3"))
CPOS = int(opt("cpos", "1"))
P2T = [int(v) for v in opt("p2t", "").split(",") if v]
SAHEAD = int(opt("sahead", "4"))
NPRE = int(opt("npre", "4"))
KN = "standalone__conformer_conv_module__speech_kernel"

NEG_LOG2E = 0xbfb8aa3b
STG = 49 * 1024
R = [0, STG, 2 * STG]
DW_OFF = 3 * STG
LDS_TOTAL = 163840
XOFF = 16384
HT_OFF = R[2]
HT_STRIDE = 560
def UPOS(h, k):
    if h == 0: return R[2] + 36864 + k * 8192 if k < 2 else R[0] + (k - 2) * 8192
    return R[1] + k * 8192 if k < 6 else R[2] + (k - 6) * 8192
CNT_OFF = DW_OFF + 4608
OSTG = R[2] + 16384
FLAG_OFF = 0x800000
STAMP_OFF = 0x900000

S_WAVE, S_MT, S_NT, S_ROT, S_NQ, S_XCC, S_T0, S_M3 = 44, 45, 46, 47, 48, 49, 50, 51
TMP0, TMP1, TMP2, TMP3 = 52, 53, 54, 55
S_M0W, S_M0X = 56, 57
S_EP = 58
S_SEL0, S_SEL1, S_SPIN, S_FAST = 60, 61, 62, 63
S_C = 64
S_STB = 66
S_CH = 92

DIAG = opt("diag", "")
def stamp(A, idx, force=False):
    if (S1ST or PST) and not force and 3 <= idx <= 9: return
    if STAMPS or DIAG: A(f"s_memtime s[{S_STB+2*idx}:{S_STB+2*idx+1}]")

class VQ:
    def __init__(self): self.q = []
    def add(self, tag, n=1): self.q += [tag] * n
    def after(self, tag):
        idx = max(i for i, t in enumerate(self.q) if t == tag)
        return min(63, len(self.q) - 1 - idx)

def glu_sc(a, b, t):
    n = len(a); ops = []
    for i in range(n): ops.append(f"v_mul_f32 v{t[i]}, s{S_C}, v{b[i]}")
    for i in range(n): ops.append(f"v_exp_f32 v{t[i]}, v{t[i]}")
    for i in range(n): ops.append(f"v_add_f32 v{t[i]}, 1.0, v{t[i]}")
    for i in range(n): ops.append(f"v_rcp_f32 v{t[i]}, v{t[i]}")
    for i in range(n): ops.append(f"v_mul_f32 v{t[i]}, v{a[i]}, v{t[i]}")
    return ops
def glu_pk(a, b, t):
    n = len(a); ops = []
    for i in range(0, n, 2):
        assert b[i] % 2 == 0 and b[i+1] == b[i] + 1 and t[i] % 2 == 0 and a[i+1] == a[i] + 1 and a[i] % 2 == 0
        ops.append(f"v_pk_mul_f32 v[{t[i]}:{t[i]+1}], v[{b[i]}:{b[i]+1}], s[{S_C}:{S_C+1}]")
    for i in range(n): ops.append(f"v_exp_f32 v{t[i]}, v{t[i]}")
    for i in range(0, n, 2): ops.append(f"v_pk_add_f32 v[{t[i]}:{t[i]+1}], v[{t[i]}:{t[i]+1}], 1.0 op_sel_hi:[1,0]")
    for i in range(n): ops.append(f"v_rcp_f32 v{t[i]}, v{t[i]}")
    for i in range(0, n, 2): ops.append(f"v_pk_mul_f32 v[{t[i]}:{t[i]+1}], v[{a[i]}:{a[i]+1}], v[{t[i]}:{t[i]+1}]")
    return ops
def glu(pk, a, b, t, out):
    ops = (glu_pk if pk else glu_sc)(a, b, t)
    for i in range(len(a) // 2): ops.append(f"v_cvt_pk_bf16_f32 v{out[i]}, v{t[2*i]}, v{t[2*i+1]}")
    return ops

VX, VS, VW = 10, 14, 15
VXA, VWA = 18, 24
VW2, VDBG, VW2B = 27, 28, 29
ACC, XF, WF, TT, RRT = 32, 104, 176, 192, 224
DUM = 224

def chunk_regs(A, c):
    if ROT == "hyb" and c >= 2:
        A(f"s_lshl_b32 s{TMP1}, s{S_CH + c - 2}, 17")
        A(f"s_lshl_b32 s{TMP0}, s{S_CH + c - 2}, 7")
        return
    if ROT.startswith("xor"):
        A(f"s_xor_b32 s{TMP0}, s{S_CH}, {c}")
        A(f"s_add_u32 s{TMP0}, s{S_ROT}, s{TMP0}")
    else:
        A(f"s_add_u32 s{TMP0}, s{S_ROT}, {c}")
    A(f"s_and_b32 s{TMP0}, s{TMP0}, 7")
    A(f"s_lshl_b32 s{TMP1}, s{TMP0}, 17")
    A(f"s_lshl_b32 s{TMP0}, s{TMP0}, 7")

def pf_touch(A, c, mh):
    ws = [k for k in PFS.get(c, []) if mh is None or (k >> 2) == mh]
    if not ws: return
    lo, hi = min(ws), max(ws)
    assert ws == list(range(lo, hi + 1))
    lab = f"L_nopf_{c}_{mh}"
    A(f"s_cmp_lt_u32 s{S_WAVE}, {lo}")
    A(f"s_cbranch_scc1 {lab}")
    A(f"s_cmp_gt_u32 s{S_WAVE}, {hi}")
    A(f"s_cbranch_scc1 {lab}")
    A(f"s_add_u32 s{TMP0}, s{S_ROT}, s{S_WAVE}")
    A(f"s_and_b32 s{TMP0}, s{TMP0}, 7")
    A(f"s_lshl_b32 s{TMP1}, s{TMP0}, 17")
    A(f"s_lshl_b32 s{TMP0}, s{TMP0}, 7")
    A("s_mov_b32 exec_hi, 0")
    A(f"buffer_load_dword v2, v{VPFW}, s[24:27], s{TMP1} offen")
    A("s_mov_b32 exec_hi, 1")
    A(f"buffer_load_dword v2, v{VPFX}, s[20:23], s{TMP0} offen{XNT}")
    A("s_mov_b32 exec_hi, -1")
    A.label(lab)
VPFX, VPFW = 17, 31

def dma_stage(A, Q, c, mh):
    base = R[c % 3]
    pf_touch(A, c, mh)
    chunk_regs(A, c)
    A(f"s_add_u32 s{TMP2}, s{TMP1}, 1024")
    if mh != 0:
        A(f"s_cmp_eq_u32 s{S_WAVE}, 7")
        A(f"s_cbranch_scc0 L_noS_{c}")
        A(f"s_mov_b32 m0, {base + XOFF + 32*1024}")
        A("s_nop 0")
        A(f"buffer_load_dwordx4 v{VS}, s[20:23], s{TMP0} offen{XNT} lds")
        A.label(f"L_noS_{c}")
    ops = []
    for part in range(2):
        ops.append((f"s_add_u32 m0, s{S_M0W}, {base + part*8192}", f"buffer_load_dwordx4 v{VW}, s[24:27], s{TMP1+part} offen lds"))
    for q in range(4):
        ops.append((f"s_add_u32 m0, s{S_M0X}, {base + q*1024}", f"buffer_load_dwordx4 v{VX+q}, s[20:23], s{TMP0} offen{XNT} lds"))
    if mh == 1: ops = ops[2:] + ops[:2]
    for m, l in ops:
        A(m); A("s_nop 0"); A(l)
    Q.add(f"st{c}", 6)

def w2_unit(h, k, sa=90):
    g0 = [f"s_add_u32 s{sa}, s{S_NT}, {k}", f"s_and_b32 s{sa}, s{sa}, 7", f"s_lshl_b32 s{sa}, s{sa}, 16", f"s_add_u32 s{sa+1}, s{sa}, 128"]
    out = []
    for part in range(2):
        g = (g0 if part == 0 else []) + [f"s_add_u32 m0, s{S_M0X}, {UPOS(h, k) + part*4096}", "s_nop 0",
             f"buffer_load_dwordx4 v{VW2 + (VW2B - VW2) * h}, s[40:43], s{sa+part} offen lds"]
        out.append("\n    ".join(g))
    return out

def prologue(A, Q):
    A("s_cmp_ge_u32 s2, 256")
    A("s_cbranch_scc1 L_end")
    stamp(A, 0)
    if STAMPS or DIAG: A("s_memrealtime s[98:99]")
    A("s_load_dwordx8 s[4:11], s[0:1], 0")
    A("s_load_dwordx4 s[12:15], s[0:1], 32")
    A("s_load_dwordx2 s[16:17], s[0:1], 48")
    if CTOUCH:
        A("s_getpc_b64 s[18:19]")
        A.label("L_pc")
        A("v_lshlrev_b32 v5, 6, v0")
        A("v_and_b32 v6, 1, v0")
        A("v_lshl_or_b32 v6, v6, 20, v5")
        A("v_cmp_gt_u32 vcc, L_code_end-L_pc, v6")
        A("s_and_saveexec_b64 s[90:91], vcc")
        A("s_cbranch_execz L_noct")
        A("global_load_dword v2, v5, s[18:19]")
        A.label("L_noct")
        A("s_mov_b64 exec, -1")
    A("v_lshrrev_b32 v7, 6, v0")
    A("v_and_b32 v1, 63, v0")
    A(f"v_readfirstlane_b32 s{S_WAVE}, v7")
    A(f"s_and_b32 s{S_ROT}, s2, 7")
    A(f"s_lshr_b32 s{TMP1}, s2, 3")
    A(f"s_lshr_b32 s{S_M3}, s{TMP1}, 3")
    A(f"s_lshl_b32 s{S_MT}, s{S_ROT}, 2")
    A(f"s_add_u32 s{S_MT}, s{S_MT}, s{S_M3}")
    A(f"s_and_b32 s{S_NT}, s{TMP1}, 7")
    if ROT.startswith("xor"):
        A(f"s_add_u32 s{S_CH}, s{S_NT}, s{S_M3}")
        A(f"s_and_b32 s{S_CH}, s{S_CH}, {ROT[3:]}")
    if ROT == "mn":
        A(f"s_lshl_b32 s{S_ROT}, s{S_M3}, 1")
        A(f"s_add_u32 s{S_ROT}, s{S_ROT}, s{S_NT}")
    if ROT == "quarterm":
        A(f"s_and_b32 s{S_ROT}, s{S_NT}, 4")
        A(f"s_add_u32 s{S_ROT}, s{S_ROT}, s{S_M3}")
    if ROT == "half":
        A(f"s_and_b32 s{S_ROT}, s{S_NT}, 6")
    if ROT == "halfm2":
        A(f"s_and_b32 s{S_ROT}, s{S_NT}, 6")
        A(f"s_lshl_b32 s{TMP0}, s{S_M3}, 1")
        A(f"s_add_u32 s{S_ROT}, s{S_ROT}, s{TMP0}")
    if ROT == "halfmx":
        A(f"s_and_b32 s{TMP0}, s{S_NT}, 6")
        A(f"s_add_u32 s{S_ROT}, s{S_ROT}, s{TMP0}")
        A(f"s_add_u32 s{S_ROT}, s{S_ROT}, s{S_M3}")
    if ROT == "halfm":
        A(f"s_and_b32 s{S_ROT}, s{S_NT}, 6")
        A(f"s_add_u32 s{S_ROT}, s{S_ROT}, s{S_M3}")
    A(f"s_and_b32 s{S_T0}, s{S_MT}, 15")
    A(f"s_mul_i32 s{S_T0}, s{S_T0}, 250")
    A(f"s_sub_i32 s{S_T0}, s{S_T0}, 7")
    A(f"s_lshl_b32 s{S_M0W}, s{S_WAVE}, 10")
    A(f"s_lshl_b32 s{S_M0X}, s{S_WAVE}, 12")
    A(f"s_add_u32 s{S_M0X}, s{S_M0X}, {XOFF}")
    A("v_lshrrev_b32 v5, 3, v1")
    A("v_and_b32 v6, 7, v1")
    A("v_lshrrev_b32 v21, 1, v5")
    A("v_and_b32 v22, 1, v21")
    A("v_lshlrev_b32 v22, 2, v22")
    A(f"s_and_b32 s{TMP0}, s{S_WAVE}, 1")
    A(f"s_lshl_b32 s{TMP0}, s{TMP0}, 1")
    A(f"v_or_b32 v22, s{TMP0}, v22")
    A("v_xor_b32 v22, v22, v6")
    A("v_lshlrev_b32 v22, 4, v22")
    A(f"v_lshl_add_u32 v{VW}, v5, 11, v22")
    A(f"v_lshl_add_u32 v{VW2}, v5, 10, v22")
    A(f"s_lshl_b32 s{TMP0}, s{S_WAVE}, 14")
    A(f"s_lshl_b32 s{TMP1}, s{S_NT}, 7")
    A(f"s_add_u32 s{TMP0}, s{TMP0}, s{TMP1}")
    A(f"v_add_u32 v{VW}, s{TMP0}, v{VW}")
    A("v_lshrrev_b32 v7, 2, v5")
    A("v_and_b32 v8, 3, v5")
    A("v_lshl_add_u32 v7, v7, 3, v8")
    A(f"s_lshl_b32 s{TMP0}, s{S_WAVE}, 5")
    A(f"s_add_i32 s{TMP0}, s{TMP0}, s{S_T0}")
    A(f"v_add_u32 v7, s{TMP0}, v7")
    A("v_xor_b32 v8, v21, v6")
    A("v_lshlrev_b32 v8, 4, v8")
    A("v_xor_b32 v9, 64, v8")
    A("v_mov_b32 v20, 0x80000000")
    A(f"v_lshl_add_u32 v{VX}, v7, 10, v8")
    A(f"v_lshl_add_u32 v{VX+1}, v7, 10, v9")
    A(f"v_add_u32 v{VX+2}, 0x1000, v{VX}")
    A(f"v_add_u32 v{VX+3}, 0x5000, v{VX+1}")
    A(f"v_add_u32 v{VX+1}, 0x4000, v{VX+1}")
    A("v_cmp_gt_i32 vcc, 0, v7")
    A("v_cmp_gt_i32 s[90:91], -4, v7")
    A(f"s_add_i32 s{TMP0}, s{S_T0}, 256")
    A(f"v_add_u32 v21, s{TMP0}, v5")
    A(f"v_cndmask_b32 v{VX}, v{VX}, v20, vcc")
    A(f"v_cndmask_b32 v{VX+2}, v{VX+2}, v20, s[90:91]")
    A(f"v_lshl_add_u32 v{VS}, v21, 10, v8")
    if PFS:
        A(f"s_mul_i32 s{TMP0}, s{S_NT}, 33")
        A(f"s_add_i32 s{TMP0}, s{TMP0}, s{S_T0}")
        A(f"v_add_u32 v21, s{TMP0}, v1")
        A(f"v_lshlrev_b32 v{VPFX}, 10, v21")
        A("v_cmp_gt_i32 vcc, 0, v21")
        A("v_lshrrev_b32 v22, 1, v1")
        A("v_lshlrev_b32 v22, 11, v22")
        A(f"v_cndmask_b32 v{VPFX}, v{VPFX}, v20, vcc")
        A("v_and_b32 v21, 1, v1")
        A(f"v_lshl_add_u32 v22, v21, 10, v22")
        A(f"s_lshl_b32 s{TMP0}, s{S_M3}, 15")
        A(f"s_add_u32 s{TMP0}, s{TMP0}, s{TMP1}")
        A(f"v_add_u32 v{VPFW}, s{TMP0}, v22")
    A(f"s_lshr_b32 s{TMP0}, s{S_MT}, 4")
    A(f"s_mul_i32 s{TMP0}, s{TMP0}, 4096000")
    A("s_mov_b32 s22, 4096000"); A("s_mov_b32 s23, 0x20000")
    A("s_mov_b32 s26, 1048576"); A("s_mov_b32 s27, 0x20000")
    A("s_waitcnt lgkmcnt(0)")
    A(f"s_add_u32 s20, s4, s{TMP0}"); A("s_addc_u32 s21, s5, 0")
    A("s_mov_b32 s24, s6"); A("s_mov_b32 s25, s7")
    stamp(A, 1)
    dma_stage(A, Q, 0, None)
    if PST: stamp(A, 3, True)
    A("s_mov_b32 s28, s8"); A("s_mov_b32 s29, s9"); A("s_mov_b32 s30, 15360"); A("s_mov_b32 s31, 0x20000")
    A("v_lshrrev_b32 v21, 3, v0")
    A("v_subrev_u32 v22, 7, v21")
    A("v_lshlrev_b32 v23, 10, v22")
    A("v_lshl_add_u32 v23, v6, 4, v23")
    A(f"s_lshl_b32 s{TMP3}, s{S_NT}, 7")
    A(f"v_add_u32 v23, s{TMP3}, v23")
    A("v_cmp_gt_i32 vcc, 0, v22")
    A("v_mul_u32_u24 v16, 144, v21")
    A("v_lshl_add_u32 v16, v6, 4, v16")
    A("v_cndmask_b32 v23, v23, v20, vcc")
    A(f"v_add_u32 v16, {DW_OFF}, v16")
    A("s_barrier")
    A(f"s_cmp_lt_u32 s{S_WAVE}, 4")
    A("s_cbranch_scc0 L_nodw")
    A(f"buffer_load_dwordx4 {vr(DUM)}, v23, s[28:31], 0 offen")
    A.label("L_nodw")
    dma_stage(A, Q, 1, None)
    if PST: stamp(A, 4, True)
    A("s_mov_b32 s36, s16"); A("s_mov_b32 s37, s17"); A("s_mov_b32 s38, 0x1000000"); A("s_mov_b32 s39, 0x20000")
    A("s_mov_b32 s40, s10"); A("s_mov_b32 s41, s11"); A("s_mov_b32 s42, 524288"); A("s_mov_b32 s43, 0x20000")
    A(f"s_mul_i32 s{TMP0}, s{S_MT}, 256000")
    A(f"s_add_u32 s32, s12, s{TMP0}"); A("s_addc_u32 s33, s13, 0"); A("s_mov_b32 s34, 256000"); A("s_mov_b32 s35, 0x20000")
    A(f"s_and_b32 s{S_NQ}, s{S_WAVE}, 3")
    A("v_and_b32 v3, 15, v1")
    A("v_lshrrev_b32 v4, 4, v1")
    if ROT == "hyb":
        A(f"s_lshl_b32 s{TMP0}, s{S_M3}, 1")
        A(f"s_add_u32 s{TMP0}, s{TMP0}, s{S_NT}")
        for _ in range(2):
            A(f"s_sub_u32 s{TMP1}, s{TMP0}, 6")
            A(f"s_cmp_ge_u32 s{TMP0}, 6")
            A(f"s_cselect_b32 s{TMP0}, s{TMP1}, s{TMP0}")
        for k in range(6):
            A(f"s_add_u32 s{TMP1}, s{TMP0}, {k}")
            A(f"s_sub_u32 s{TMP2}, s{TMP1}, 6")
            A(f"s_cmp_ge_u32 s{TMP1}, 6")
            A(f"s_cselect_b32 s{TMP1}, s{TMP2}, s{TMP1}")
            A(f"s_add_u32 s{TMP1}, s{TMP1}, s{S_ROT}")
            A(f"s_add_u32 s{TMP1}, s{TMP1}, 2")
            A(f"s_and_b32 s{S_CH + k}, s{TMP1}, 7")
    A(f"s_lshl_b32 s{TMP0}, s{S_MT}, 3")
    A(f"v_mov_b32 v{VDBG}, s{TMP0}")
    A(f"s_getreg_b32 s{S_XCC}, hwreg(HW_REG_XCC_ID, 0, 4)")
    A(f"s_and_b32 s{S_XCC}, s{S_XCC}, 7")
    A(f"s_lshl_b32 s{S_XCC}, s{S_XCC}, 2")
    A(f"s_cmp_eq_u32 s{S_WAVE}, 5")
    A("s_cbranch_scc0 L_nohello")
    A(f"s_lshl_b32 s{TMP0}, 1, s{S_XCC}")
    A(f"v_mov_b32 v21, s{TMP0}")
    A("s_mov_b64 exec, 1")
    A(f"global_atomic_add v{VDBG}, v21, s[14:15] offset:4 sc1")
    A(f"s_cmp_eq_u32 s{S_NT}, 0")
    A("s_cbranch_scc0 L_noep")
    A(f"s_memrealtime s[{S_EP}:{S_EP+1}]")
    A("s_waitcnt lgkmcnt(0)")
    A(f"s_lshr_b64 s[{S_EP}:{S_EP+1}], s[{S_EP}:{S_EP+1}], 6")
    A(f"s_or_b32 s{S_EP}, s{S_EP}, 0x80000000")
    A(f"v_mov_b32 v21, s{S_EP}")
    A(f"global_store_dword v{VDBG}, v21, s[14:15] sc1")
    A.label("L_noep")
    A("s_mov_b64 exec, -1")
    A.label("L_nohello")
    A(f"s_lshl_b32 s{TMP0}, s{S_NQ}, 13")
    A(f"s_and_b32 s{TMP1}, s{S_NT}, 3")
    A(f"s_lshl_b32 s{TMP1}, s{TMP1}, 8")
    A(f"s_add_u32 s{TMP0}, s{TMP0}, s{TMP1}")
    A(f"v_add_u32 v{VW2}, s{TMP0}, v{VW2}")
    A(f"v_add_u32 v{VW2B}, 0x8000, v{VW2}")
    A(f"s_mov_b32 s{S_SEL0}, 0x05040100")
    A(f"s_mov_b32 s{S_SEL1}, 0x07060302")
    A(f"s_mov_b32 s{S_C}, 0x{NEG_LOG2E:x}")
    A(f"s_mov_b32 s{S_C+1}, 0x{NEG_LOG2E:x}")
    A("v_lshrrev_b32 v5, 3, v3")
    A("v_and_b32 v6, 7, v3")
    A("v_lshlrev_b32 v5, 10, v5")
    A("v_lshl_add_u32 v5, v6, 7, v5")
    A("v_lshrrev_b32 v6, 1, v3")
    A("v_xor_b32 v6, v6, v4")
    A("v_lshl_add_u32 v7, v6, 4, v5")
    A("v_xor_b32 v8, 64, v7")
    for sl in range(3):
        A(f"v_add_u32 v{VXA+sl*2}, {R[sl] + XOFF}, v7")
        A(f"v_add_u32 v{VXA+sl*2+1}, {R[sl] + XOFF}, v8")
    A("v_lshrrev_b32 v5, 2, v3")
    A("v_and_b32 v6, 3, v3")
    A("v_lshrrev_b32 v7, 1, v6")
    A(f"s_lshl_b32 s{TMP0}, s{S_NQ}, 1")
    A(f"v_or_b32 v7, s{TMP0}, v7")
    A("v_lshrrev_b32 v8, 1, v5")
    A("v_lshlrev_b32 v8, 2, v8")
    A("v_and_b32 v9, 1, v4")
    A("v_lshl_or_b32 v8, v9, 1, v8")
    A("v_xor_b32 v7, v7, v8")
    A("v_lshlrev_b32 v7, 4, v7")
    A("v_lshl_add_u32 v7, v5, 7, v7")
    A("v_lshl_add_u32 v7, v4, 10, v7")
    A("v_and_b32 v6, 1, v6")
    A("v_lshl_add_u32 v7, v6, 3, v7")
    for sl in range(3):
        A(f"v_add_u32 v{VWA+sl}, {R[sl]}, v7")
    A("v_lshlrev_b32 v5, 3, v4")
    A("v_sub_u32 v5, v5, v3")
    A("v_add_u32 v5, 7, v5")
    A("v_cmp_lt_u32 vcc, 21, v5")
    A("v_mov_b32 v6, 22")
    A(f"s_lshl_b32 s{TMP0}, s{S_WAVE}, 4")
    A("v_cndmask_b32 v5, v5, v6, vcc")
    A("v_mul_u32_u24 v5, 144, v5")
    A(f"s_add_u32 s{TMP0}, s{TMP0}, {DW_OFF}")
    A(f"v_add_u32 v9, s{TMP0}, v5")
    A(f"s_cmp_ge_u32 s{S_WAVE}, 4")
    A("s_cbranch_scc1 L_path1")

def path(A, mh, Q0):
    NT = 9 if mh == 0 else 8
    Q = VQ(); Q.q = list(Q0.q)
    if PST: stamp(A, 5, True)
    A(f"s_waitcnt vmcnt({Q.after('st0')})")
    if PST: stamp(A, 6, True)
    if mh == 0:
        A(f"ds_write_b128 v16, {vr(DUM)}")
        A(f"v_mov_b32 v5, {CNT_OFF}")
        A("v_mov_b32 v6, 0")
        A("v_mov_b32 v7, 0")
        A("ds_write_b64 v5, v[6:7]")
        A("s_waitcnt lgkmcnt(0)")
    A("s_barrier")
    stamp(A, 2)
    def reads(j):
        c, ks = j >> 1, j & 1
        sl, buf = c % 3, j & 1
        Rr = []
        for part in range(2):
            for h in range(2):
                d = WF + buf * 8 + part * 4 + h * 2
                Rr.append(f"ds_read_b64_tr_b16 v[{d}:{d+1}], v{VWA+sl} offset:{part*8192 + ks*4096 + h*512}")
        for tt in range(NT):
            tile = (mh * 8 + tt) if tt < 8 else 16
            d = XF + buf * 36 + tt * 4
            Rr.append(f"ds_read_b128 {vr(d)}, v{VXA+sl*2+ks} offset:{tile*2048}")
        return Rr
    def tail_loads():
        A(f"global_load_dwordx2 v[30:31], v{VDBG}, s[14:15] sc1")
        Q.add("misc", 1)
        if mh == 0:
            A(f"s_lshl_b32 s{S_M0X}, s{S_NQ}, 10")
            for k in range(2):
                for g in w2_unit(0, k): A(g)
            Q.add("w2", 4)
            A(f"s_cmp_lt_u32 s{S_NQ}, 2")
            A("s_cbranch_scc0 L_nopf_W2all")
            A(f"s_lshr_b32 s{TMP0}, s2, 3")
            A(f"s_lshl_b32 s{TMP0}, s{TMP0}, 1")
            A(f"s_add_u32 s{TMP0}, s{TMP0}, s{S_NQ}")
            A(f"s_lshl_b32 s{TMP0}, s{TMP0}, 13")
            A("v_lshlrev_b32 v5, 7, v1")
            A(f"buffer_load_dword v2, v5, s[40:43], s{TMP0} offen")
            A.label("L_nopf_W2all")
            if PRE:
                A(f"s_lshl_b32 s{TMP2}, s{S_NT}, 3")
                A(f"s_add_u32 s{TMP2}, s{TMP2}, s{S_WAVE}")
                A(f"s_lshl_b32 s{TMP2}, s{TMP2}, 9")
                A(f"s_lshl_b32 s{TMP3}, s{S_MT}, 18")
                A(f"s_add_u32 s{TMP2}, s{TMP2}, s{TMP3}")
                A("v_lshrrev_b32 v5, 2, v1")
                A("v_and_b32 v5, 7, v5")
                A("v_lshlrev_b32 v5, 15, v5")
                A("v_and_b32 v6, 3, v1")
                A("v_lshl_add_u32 v5, v6, 7, v5")
                A("v_lshrrev_b32 v6, 5, v1")
                A("v_lshl_add_u32 v5, v6, 11, v5")
                A(f"buffer_load_dword v2, v5, s[36:39], s{TMP2} offen{PTF}")
                A(f"s_mov_b64 exec, 15")
                A(f"s_lshl_b32 s{TMP2}, s{S_MT}, 9")
                A(f"s_add_u32 s{TMP2}, s{TMP2}, {FLAG_OFF}")
                A(f"buffer_load_dword v2, v5, s[36:39], s{TMP2} offen{PTF}")
                A(f"s_mov_b64 exec, -1")
                Q.add("misc", 2)
    for r in reads(0): A(r)
    if mh == 1: dma_stage(A, Q, 2, mh)
    extra = []
    for j in range(16):
        buf = j & 1
        cn = (j + 1) >> 1
        boundary = (j & 1) == 1 and j < 15 and not (mh == 0 and j == 13)
        if boundary:
            A(f"s_waitcnt vmcnt({Q.after(f'st{cn}')}) lgkmcnt(0)")
            A("s_barrier")
            if S1ST: stamp(A, 2 + cn, True)
            if cn == 6:
                if mh == 1:
                    A("s_setprio 3")
                    tail_loads()
                else:
                    tail_loads()
                    A(f"s_waitcnt vmcnt({Q.after('st7')})")
                    A("s_barrier")
                    if S1ST: stamp(A, 9, True)
                    A("s_setprio 1")
        stg = None
        if mh == 0 and (j & 1) == 1 and j < 15: stg = cn + 2
        if mh == 1 and (j & 1) == 0 and j >= 2 and j != 10: stg = (j >> 1) + 2
        if mh == 1 and j == 9: stg = 7
        if stg is not None and stg < 8: dma_stage(A, Q, stg, mh)
        Rn = reads(j + 1) if j < 15 else []
        if j == 2:
            Rn = [f"ds_read_b128 {vr(RRT + 4*e)}, v9 offset:{e*144}" for e in range(8)] + Rn
        if j == 3:
            extra = [f"v_perm_b32 v{TT + 4*jj + d}, v{RRT + 4*(2*d+1) + (jj>>1)}, v{RRT + 4*(2*d) + (jj>>1)}, s{S_SEL0 + (jj&1)}" for jj in range(8) for d in range(4)]
        issued = 0
        for tt in range(NT):
            for part in range(2):
                if part == 0 and not boundary:
                    A(f"s_waitcnt lgkmcnt({min(15, (NT - 1 - tt) + issued)})")
                a = ACC + (tt * 2 + part) * 4
                cin = "0" if j == 0 else vr(a)
                A(f"v_mfma_f32_16x16x32_bf16 {vr(a)}, {vr(XF + buf*36 + tt*4)}, {vr(WF + buf*8 + part*4)}, {cin}")
                k = 2 if (j == 2 and issued < 10) else 1
                for _ in range(k):
                    if issued < len(Rn):
                        A(Rn[issued]); issued += 1
                    elif extra:
                        A(extra.pop(0))
        assert issued == len(Rn)
        if j == 0 and mh == 0: dma_stage(A, Q, 2, mh)
    assert not extra
    A("s_setprio 0")
    stamp(A, 3)
    pk = (mh == 0)
    A(f"s_lshl_b32 s{TMP0}, s{S_NQ}, 4")
    A(f"v_add_u32 v5, s{TMP0}, v3")
    A(f"v_mul_u32_u24 v5, {HT_STRIDE}, v5")
    A(f"v_add_u32 v5, {HT_OFF}, v5")
    A("v_lshl_add_u32 v6, v4, 4, v5")
    A("v_lshl_add_u32 v7, v4, 3, v5")
    A("s_nop 1")
    T0 = XF
    for p in range(4):
        a = [ACC + ((2*p + o) * 2 + 0) * 4 + r for o in range(2) for r in range(4)]
        b = [ACC + ((2*p + o) * 2 + 1) * 4 + r for o in range(2) for r in range(4)]
        O = T0 + 8 + 4 * (p & 1)
        for op in glu(pk, a, b, [T0 + i for i in range(8)], [O + i for i in range(4)]): A(op)
        A(f"ds_write_b128 v6, {vr(O)} offset:{(4*mh + p) * 64}")
    if mh == 0:
        a = [ACC + 16 * 4 + r for r in range(4)]
        b = [ACC + 17 * 4 + r for r in range(4)]
        O = T0 + 16
        A("v_cmp_gt_u32 vcc, 2, v4")
        for op in glu(pk, a, b, [T0 + i for i in range(4)], [O, O + 1]): A(op)
        A(f"v_cndmask_b32 v{O}, 0, v{O}, vcc")
        A(f"v_cndmask_b32 v{O+1}, 0, v{O+1}, vcc")
        A(f"ds_write_b64 v7, v[{O}:{O+1}] offset:512")
        A(f"s_waitcnt vmcnt({Q.after('w2')})")

def epilogue1(A, mh):
    A(f"s_mul_i32 s{TMP0}, s{S_WAVE}, {8*HT_STRIDE}")
    A(f"s_add_u32 s{TMP0}, s{TMP0}, {HT_OFF}")
    A("v_lshlrev_b32 v5, 5, v3")
    A("v_lshl_add_u32 v5, v4, 4, v5")
    A(f"v_add_u32 v5, s{TMP0}, v5")
    A(f"s_lshl_b32 s{TMP2}, s{S_NT}, 3")
    A(f"s_add_u32 s{TMP2}, s{TMP2}, s{S_WAVE}")
    A(f"s_lshl_b32 s{TMP1}, s{TMP2}, 3")
    A(f"v_mov_b32 v11, s{TMP1}")
    A(f"s_lshl_b32 s{TMP2}, s{TMP2}, 9")
    A(f"s_lshl_b32 s{TMP3}, s{S_MT}, 18")
    A(f"s_add_u32 s{TMP2}, s{TMP2}, s{TMP3}")
    A("v_lshlrev_b32 v6, 16, v4")
    A("v_lshl_add_u32 v6, v3, 4, v6")
    A("v_add_u32 v7, 0x8000, v6")
    A(f"s_lshl_b32 s{TMP3}, s{S_MT}, 9")
    A(f"s_add_u32 s{TMP3}, s{TMP3}, {FLAG_OFF}")
    A(f"s_lshl_b32 s{S_M0X}, s{S_NQ}, 10")
    A(f"v_mov_b32 v14, {CNT_OFF}")
    A("v_mov_b32 v15, 1")
    if mh == 1:
        A("s_waitcnt vmcnt(0)")
    A("s_waitcnt lgkmcnt(0)")
    A("s_barrier")
    stamp(A, 4)
    HA, Y, T0, O0 = 32, 64, 96, 160
    for j in range(8):
        A(f"ds_read_b128 {vr(HA + 4*j)}, v5 offset:{j*HT_STRIDE}")
    if mh == 1:
        for k in range(2, 8):
            for g in w2_unit(0, k): A(g)
        for k in range(H1F):
            for g in w2_unit(1, k): A(g)
    else:
        A("s_setprio 2")
    for j in range(8):
        A(f"s_waitcnt lgkmcnt({7-j})")
        A(f"v_mfma_f32_16x16x32_bf16 {vr(Y + 4*j)}, {vr(HA + 4*j)}, {vr(TT + 4*j)}, 0")
    if mh == 0:
        A(f"s_waitcnt vmcnt({3 if PRE else 1})")
    A(f"v_readfirstlane_b32 s{S_EP}, v30")
    A(f"v_readfirstlane_b32 s{S_FAST}, v31")
    A(f"s_lshl_b32 s{TMP0}, 8, s{S_XCC}")
    A(f"s_cmp_eq_u32 s{S_FAST}, s{TMP0}")
    A(f"s_cselect_b32 s{S_FAST}, {1 if FAST else 0}, 0")
    A("s_nop 2")
    for half in range(2):
        y = [Y + 4*j + 2*half + rr for j in range(8) for rr in range(2)]
        t = [T0 + 16*half + i for i in range(16)]
        wr = []
        if mh == 1 and half == CPOS:
            A("s_waitcnt vmcnt(0)")
            A("s_mov_b64 exec, 1")
            A("ds_add_u32 v14, v15")
            A("s_mov_b64 exec, -1")
            wr = [g for k in range(H1F, H1E) for g in w2_unit(1, k)]
        for n_, op in enumerate(glu_pk(y, y, t)):
            A(op)
            if wr and n_ % 4 == 1: A(wr.pop(0))
        for g in wr: A(g)
        for rr in range(2):
            for i in range(4):
                A(f"v_cvt_pk_bf16_f32 v{O0 + 4*(2*half+rr) + i}, v{t[2*(2*i) + rr]}, v{t[2*(2*i+1) + rr]}")
    A(f"s_cmp_lg_u32 s{S_EP}, 0")
    A(f"s_cselect_b32 s{S_FAST}, s{S_FAST}, 0")
    A(f"s_not_b32 s{S_EP+1}, s{S_EP}")
    A(f"v_mov_b32 v16, s{S_EP}")
    A(f"v_mov_b32 v17, s{S_EP+1}")
    A(f"s_cmp_eq_u32 s{S_FAST}, 1")
    A(f"s_cbranch_scc0 L_slow{mh}")
    for r in range(4):
        A(f"buffer_store_dwordx4 {vr(O0 + 4*r)}, v{6 + (r>>1)}, s[36:39], s{TMP2} offen offset:{(r&1)*256}{SST}")
    stamp(A, 5)
    if mh == 0:
        phase2_setup(A)
    A("s_mov_b64 exec, 1")
    A("s_waitcnt vmcnt(0)")
    if DRST: stamp(A, 1)
    A(f"buffer_store_dwordx2 v[16:17], v11, s[36:39], s{S_FL} offen{FST}" if mh == 0 else f"buffer_store_dwordx2 v[16:17], v11, s[36:39], s{TMP3} offen{FST}")
    A("s_mov_b64 exec, -1")
    A.label(f"L_join{mh}")
    if mh == 1:
        for k in range(max(H1E, H1F), 6):
            for g in w2_unit(1, k): A(g)
        A("s_waitcnt vmcnt(0)")
        A("s_barrier")
        stamp(A, 6)
        for k in (6, 7):
            for g in w2_unit(1, k): A(g)
        A("s_waitcnt vmcnt(0)")
        A("s_barrier")
        if STAMPS:
            A("s_waitcnt lgkmcnt(0)")
            A("s_mov_b64 exec, 1")
            A(f"s_lshl_b32 s{TMP0}, s2, 3")
            A(f"s_add_u32 s{TMP0}, s{TMP0}, s{S_WAVE}")
            A(f"s_lshl_b32 s{TMP0}, s{TMP0}, 6")
            A(f"s_add_u32 s{TMP0}, s{TMP0}, {STAMP_OFF + 0x40000}")
            A(f"v_mov_b32 v3, s{TMP0}")
            for j in range(7):
                A(f"v_mov_b32 v4, s{S_STB+2*j}"); A(f"v_mov_b32 v5, s{S_STB+2*j+1}")
                A(f"buffer_store_dwordx2 v[4:5], v3, s[36:39], 0 offen offset:{8*j}")
                A("s_nop 1")
            A(f"s_getreg_b32 s{TMP1}, hwreg(HW_REG_HW_ID)")
            A(f"v_mov_b32 v4, s{TMP1}"); A("v_mov_b32 v5, 0")
            A(f"buffer_store_dwordx2 v[4:5], v3, s[36:39], 0 offen offset:56")
        A("s_endpgm")

def slow_path(A, mh):
    O0 = 160
    A.label(f"L_slow{mh}")
    for r in range(4):
        A(f"buffer_store_dwordx4 {vr(O0 + 4*r)}, v{6 + (r>>1)}, s[36:39], s{TMP2} offen offset:{(r&1)*256} sc1")
    A(f"s_mov_b32 s{S_SPIN}, 0")
    A.label(f"L_ep_chk{mh}")
    A(f"s_cmp_lg_u32 s{S_EP}, 0")
    A(f"s_cbranch_scc1 L_ep_ok{mh}")
    A(f"global_load_dwordx2 v[30:31], v{VDBG}, s[14:15] sc1")
    A(f"s_add_u32 s{S_SPIN}, s{S_SPIN}, 1")
    A("s_waitcnt vmcnt(0)")
    A(f"v_readfirstlane_b32 s{S_EP}, v30")
    A(f"s_cmp_lt_u32 s{S_SPIN}, 0x40000")
    A(f"s_cbranch_scc1 L_ep_chk{mh}")
    A.label(f"L_ep_ok{mh}")
    A(f"s_not_b32 s{S_EP+1}, s{S_EP}")
    A(f"v_mov_b32 v16, s{S_EP}")
    A(f"v_mov_b32 v17, s{S_EP+1}")
    A("s_mov_b64 exec, 1")
    A("s_waitcnt vmcnt(0)")
    A(f"buffer_store_dwordx2 v[16:17], v11, s[36:39], s{TMP3} offen sc1")
    A("s_mov_b64 exec, -1")
    if mh == 0:
        phase2_setup(A)
    A(f"s_branch L_join{mh}")

S_FL = 91
def phase2_setup(A):
    A(f"s_mov_b32 s{S_FL}, s{TMP3}")
    A(f"s_lshr_b32 s{TMP0}, s{S_NT}, 2")
    A(f"s_lshl_b32 s{TMP0}, s{TMP0}, 2")
    A(f"s_add_u32 s{TMP0}, s{TMP0}, s{S_WAVE}")
    A(f"s_lshl_b32 s90, s{TMP0}, 15")
    A(f"s_lshl_b32 s{TMP1}, s{S_MT}, 18")
    A(f"s_add_u32 s{TMP1}, s{TMP1}, s90")
    A("v_lshlrev_b32 v12, 4, v1")
    A(f"v_add_u32 v12, s{TMP1}, v12")
    A("v_lshrrev_b32 v5, 2, v3")
    A("v_and_b32 v8, 3, v3")
    A("v_lshrrev_b32 v9, 1, v8")
    A("v_and_b32 v10, 1, v4")
    A("v_lshl_or_b32 v9, v10, 1, v9")
    A("v_lshrrev_b32 v10, 1, v5")
    A("v_lshlrev_b32 v10, 2, v10")
    A("v_lshrrev_b32 v13, 1, v4")
    A("v_lshl_or_b32 v10, v13, 1, v10")
    A("v_xor_b32 v9, v9, v10")
    A("v_lshlrev_b32 v9, 4, v9")
    A("v_lshl_add_u32 v9, v5, 7, v9")
    A("v_lshl_add_u32 v9, v13, 10, v9")
    A("v_and_b32 v8, 1, v8")
    A("v_lshl_add_u32 v22, v8, 3, v9")
    A("v_xor_b32 v23, 64, v22")
    for wdw in (1, 2):
        A(f"v_add_u32 v{22+2*wdw}, {wdw*0x10000}, v22")
        A(f"v_add_u32 v{23+2*wdw}, {wdw*0x10000}, v23")
    for s_ in range(8):
        A(f"s_add_u32 s{TMP0}, s{S_NT}, {s_}")
        A(f"s_and_b32 s{TMP0}, s{TMP0}, 7")
        A(f"s_lshl_b32 s{20+s_}, s{TMP0}, 12")
    A(f"s_lshl_b32 s{TMP0}, s{S_NT}, 3")
    A(f"v_add_u32 v13, s{TMP0}, v1")
    A("v_and_b32 v13, 63, v13")
    A("v_lshlrev_b32 v13, 3, v13")
    A(f"s_mov_b32 s{S_SPIN}, 0")

def phase2(A):
    SF, ACC2, WF2 = 128, 64, 32
    def dec(i): return i >> 4, (i >> 1) & 7, i & 1
    TAILN = int(opt("tailn", "4"))
    seq = [(j, ct) for j in range(32 - TAILN) for ct in range(4)]
    seq += [(j, ct) for j in range(32 - TAILN, 32) for ct in (0, 1)] + [(j, ct) for j in range(32 - TAILN, 32) for ct in (2, 3)]
    def wreads(n):
        i, ct = seq[n]
        h, k, e = dec(i)
        part, ctp = ct >> 1, ct & 1
        Rr = []
        for hh in range(2):
            off = UPOS(h, k) + part * 4096 + e * 2048 + hh * 512
            base = 22 + ctp + 2 * (off >> 16)
            d = WF2 + (n % 8) * 4 + hh * 2
            Rr.append(f"ds_read_b64_tr_b16 v[{d}:{d+1}], v{base} offset:{off & 0xffff}")
        return Rr
    def reads(i): return [r for n in range(4*i, 4*i+4) for r in wreads(n)]
    def sload(i):
        h, k, e = dec(i)
        return f"buffer_load_dwordx4 {vr(SF + i*4)}, v12, s[36:39], s{20 + k} offen offset:{(2*h+e)*1024}{SLD}"
    S_MK = 28
    A("s_mov_b64 exec, 1")
    A("ds_add_u32 v14, v15 offset:4")
    A("s_mov_b64 exec, -1")
    for r in reads(0): A(r)
    A.label("L_cntA")
    A("ds_read_b32 v5, v14 offset:4")
    A("s_waitcnt lgkmcnt(0)")
    A(f"v_readfirstlane_b32 s{TMP0}, v5")
    A(f"s_cmp_lt_u32 s{TMP0}, 4")
    A("s_cbranch_scc1 L_cntA")
    A(sload(0)); A(sload(1))
    A(f"buffer_load_dwordx2 v[18:19], v13, s[36:39], s{S_FL} offen{PLD}")
    stamp(A, 6)
    spins = []
    def check(u):
        h, k = u >> 3, u & 7
        reg = S_MK + (k >> 2)
        A(f"s_bfe_u32 s{TMP0}, s{reg}, {((k & 3) * 8 + 4 * h) | (4 << 16)}")
        A(f"s_cmp_eq_u32 s{TMP0}, 15")
        A(f"s_cbranch_scc0 L_spin{u}")
        A.label(f"L_back{u}")
        spins.append(u)
    nissued = [2]
    def issue_upto(n):
        while nissued[0] < min(32, n):
            jj = nissued[0]
            if jj % 2 == 0: check(jj // 2)
            A(sload(jj)); nissued[0] += 1
    stamp(A, 7)
    def epi_setup():
        return ["v_and_b32 v5, 31, v1", "v_lshrrev_b32 v6, 5, v1", "v_and_b32 v7, 7, v5", "v_xor_b32 v7, v7, v6", "v_lshlrev_b32 v7, 4, v7",
                "v_lshl_add_u32 v7, v5, 7, v7", f"s_lshl_b32 s{TMP1}, s{S_WAVE}, 13", f"v_add_u32 v7, s{TMP1}, v7",
                "v_xor_b32 v8, 32, v7", "v_xor_b32 v9, 64, v7", "v_xor_b32 v10, 96, v7",
                "v_lshrrev_b32 v5, 3, v1", "v_and_b32 v6, 7, v1", "v_xor_b32 v11, v5, v6", "v_lshlrev_b32 v11, 4, v11",
                "v_lshl_add_u32 v11, v5, 7, v11", f"v_add_u32 v11, s{TMP1}, v11", "v_lshlrev_b32 v6, 4, v6", "v_lshl_add_u32 v6, v5, 10, v6",
                f"s_and_b32 s{TMP1}, s{S_NT}, 3", f"s_lshl_b32 s{TMP1}, s{TMP1}, 8", f"s_add_u32 s90, s90, s{TMP1}"]
    def pack(half):
        ops = []
        for ctp in range(2):
            for qq in range(2):
                a = ACC2 + (half * 2 + ctp) * 16 + qq * 8
                O = SF + 16 * half + 4 * (ctp * 2 + qq)
                for i in range(4): ops.append(f"v_cvt_pk_bf16_f32 v{O+i}, v{a+2*i}, v{a+2*i+1}")
        for ctp in range(2):
            for qq in range(2):
                O = SF + 16 * half + 4 * (ctp * 2 + qq)
                ops.append(f"v_permlane32_swap_b32 v{O}, v{O+2}")
                ops.append(f"v_permlane32_swap_b32 v{O+1}, v{O+3}")
        for ctp in range(2):
            for qq in range(2):
                O = SF + 16 * half + 4 * (ctp * 2 + qq)
                ops.append(f"ds_write_b128 v{7 + 2*ctp + qq}, {vr(O)} offset:{R[0] + half*4096}")
        return ops
    extra = []
    N = len(seq)
    n_h0 = max(n for n in range(N) if seq[n][1] < 2)
    for n, (j, ct) in enumerate(seq):
        first_of_j = all(seq[m][0] != j for m in range(n))
        w = f"lgkmcnt({min(6, 2 * (N - 1 - n))})"
        if first_of_j: w = f"vmcnt({nissued[0] - 1 - j + (1 if j == 0 else 0)}) " + w
        A(f"s_waitcnt {w}")
        if n == 12:
            A.label("L_cnt")
            A("ds_read_b32 v5, v14")
            A("s_waitcnt lgkmcnt(0)")
            A(f"v_readfirstlane_b32 s{TMP0}, v5")
            A(f"s_cmp_lt_u32 s{TMP0}, 4")
            A("s_cbranch_scc1 L_cnt")
        if n in (4 * BFJ, 4 * 27):
            A("s_barrier")
        a = ACC2 + ct * 16
        cin = "0" if j == 0 else vr(a, 16)
        A(f"v_mfma_f32_32x32x16_bf16 {vr(a,16)}, {vr(WF2 + (n % 8)*4)}, {vr(SF + j*4)}, {cin}")
        if n + 4 < N:
            for r in wreads(n + 4): A(r)
        if n == 0:
            A("s_waitcnt vmcnt(0)")
            A(f"v_cmp_eq_u64 s[{S_MK}:{S_MK+1}], s[{S_EP}:{S_EP+1}], v[18:19]")
        issue_upto(min(32, j + 1 + SAHEAD, nissued[0] + 2))
        if n == 4 * 20: extra = epi_setup()
        if n == n_h0 + 2: extra = pack(0)
        for _ in range(2 if n <= n_h0 else 5):
            if extra: A(extra.pop(0))
        if n == 19: stamp(A, 8)
    for op in extra: A(op)
    stamp(A, 9)
    RB = 32
    A("s_waitcnt lgkmcnt(0)")
    for i in range(4): A(f"ds_read_b128 {vr(RB + 4*i)}, v11 offset:{R[0] + i*1024}")
    A("s_nop 5")
    p1 = pack(1)
    for op in p1[:16]: A(op)
    for i in range(4):
        A(f"s_waitcnt lgkmcnt({3-i})")
        A(f"s_add_u32 s{TMP0}, s90, {i*8192}")
        A(f"buffer_store_dwordx4 {vr(RB + 4*i)}, v6, s[32:35], s{TMP0} offen{OST}")
    for op in p1[16:]: A(op)
    A("s_waitcnt lgkmcnt(0)")
    for i in range(4): A(f"ds_read_b128 {vr(RB + 16 + 4*i)}, v11 offset:{R[0] + 4096 + i*1024}")
    for i in range(4):
        A(f"s_waitcnt lgkmcnt({3-i})")
        A(f"s_add_u32 s{TMP0}, s90, {i*8192 + 128}")
        A(f"buffer_store_dwordx4 {vr(RB + 16 + 4*i)}, v6, s[32:35], s{TMP0} offen{OST}")
    if STAMPS:
        ns = 12
        A("s_waitcnt vmcnt(0)")
        stamp(A, ns - 2)
        A(f"s_mov_b64 s[{S_STB+2*(ns-1)}:{S_STB+2*(ns-1)+1}], s[98:99]")
        if P2T:
            A(f"s_add_u32 s{S_STB+2*(ns-1)}, s{S_STB}, s{S_SPIN}")
            A(f"s_addc_u32 s{S_STB+2*(ns-1)+1}, s{S_STB+1}, 0")
        A(f"s_memrealtime s[{S_EP}:{S_EP+1}]")
        A("s_waitcnt lgkmcnt(0)")
        A("s_mov_b64 exec, 1")
        A(f"s_lshl_b32 s{TMP0}, s2, 3")
        A(f"s_add_u32 s{TMP0}, s{TMP0}, s{S_WAVE}")
        A(f"s_lshl_b32 s{TMP0}, s{TMP0}, 6")
        A(f"s_add_u32 s{TMP0}, s{TMP0}, {STAMP_OFF + 0x40000}")
        A(f"v_mov_b32 v3, s{TMP0}")
        for j in range(7):
            A(f"v_mov_b32 v4, s{S_STB+2*j}"); A(f"v_mov_b32 v5, s{S_STB+2*j+1}")
            A(f"buffer_store_dwordx2 v[4:5], v3, s[36:39], 0 offen offset:{8*j}")
            A("s_nop 1")
        A(f"s_getreg_b32 s{TMP1}, hwreg(HW_REG_HW_ID)")
        A(f"v_mov_b32 v4, s{TMP1}"); A("v_mov_b32 v5, 0")
        A(f"buffer_store_dwordx2 v[4:5], v3, s[36:39], 0 offen offset:56")
        A(f"s_cmp_eq_u32 s{S_WAVE}, 0")
        A("s_cbranch_scc0 L_end")
        A(f"s_mul_i32 s{TMP0}, s2, {8*(ns+1)}")
        A(f"s_add_u32 s{TMP0}, s{TMP0}, {STAMP_OFF}")
        A(f"v_mov_b32 v3, s{TMP0}")
        for j in range(ns):
            A(f"v_mov_b32 v4, s{S_STB+2*j}"); A(f"v_mov_b32 v5, s{S_STB+1+2*j}")
            A(f"buffer_store_dwordx2 v[4:5], v3, s[36:39], 0 offen offset:{8*j}")
            A("s_nop 1")
        A(f"v_mov_b32 v4, s{S_EP}"); A(f"v_mov_b32 v5, s{S_EP+1}")
        A(f"buffer_store_dwordx2 v[4:5], v3, s[36:39], 0 offen offset:{8*ns}")
    if DIAG:
        a, b, wg = [int(v) for v in DIAG.split(",")]
        A("s_waitcnt vmcnt(0)")
        stamp(A, 10)
        A("s_waitcnt lgkmcnt(0)")
        A(f"s_sub_u32 s{TMP0}, s{S_STB+2*b}, s{S_STB+2*a}")
        if wg >= 0:
            A(f"s_cmp_eq_u32 s2, {wg}")
            A(f"s_cselect_b32 s{TMP0}, s{TMP0}, 0")
        A(f"s_lshr_b32 s{TMP0}, s{TMP0}, 1")
        A(f"s_add_u32 s{TMP0}, s{TMP0}, 3000")
        A.label("L_diag")
        A("s_sleep 4")
        A(f"s_memrealtime s[{S_EP}:{S_EP+1}]")
        A("s_waitcnt lgkmcnt(0)")
        A(f"s_sub_u32 s{TMP1}, s{S_EP}, s98")
        A(f"s_cmp_lt_u32 s{TMP1}, s{TMP0}")
        A("s_cbranch_scc1 L_diag")
    A.label("L_end")
    A("s_endpgm")
    for u in spins:
        h, kk = u >> 3, u & 7
        k = u
        reg = S_MK + (kk >> 2)
        A.label(f"L_spin{k}")
        A(f"buffer_load_dwordx2 v[20:21], v13, s[36:39], s{S_FL} offen{PLD}")
        A(f"s_add_u32 s{S_SPIN}, s{S_SPIN}, 1")
        A("s_waitcnt vmcnt(0)")
        A(f"v_cmp_eq_u64 s[{S_MK}:{S_MK+1}], s[{S_EP}:{S_EP+1}], v[20:21]")
        A(f"s_cmp_ge_u32 s{S_SPIN}, 0x40000")
        A(f"s_cbranch_scc1 L_back{k}")
        A(f"s_bfe_u32 s{TMP0}, s{reg}, {((kk & 3) * 8 + 4 * h) | (4 << 16)}")
        A(f"s_cmp_eq_u32 s{TMP0}, 15")
        A(f"s_cbranch_scc0 L_spin{k}")
        A(f"s_branch L_back{k}")

A = Asm()
A.raw(f"; @launch grid=(256,1,1) block=(512,1,1) lds={LDS_TOTAL}")
A.raw('.amdgcn_target "amdgcn-amd-amdhsa--gfx950"')
A.raw(".text")
A.raw(f".globl {KN}")
A.raw(".p2align 8")
A.raw(f".type {KN},@function")
A.label(KN)
Q = VQ()
prologue(A, Q)
path(A, 0, Q)
epilogue1(A, 0)
phase2(A)
A.label("L_path1")
path(A, 1, Q)
epilogue1(A, 1)
slow_path(A, 0)
slow_path(A, 1)
A.label("L_code_end")
A.raw('.section .rodata,"a"')
A.raw(f""".p2align 6
.amdhsa_kernel {KN}
  .amdhsa_next_free_vgpr 256
  .amdhsa_next_free_sgpr 102
  .amdhsa_accum_offset 256
  .amdhsa_group_segment_fixed_size 0
  .amdhsa_kernarg_size 56
  .amdhsa_user_sgpr_count 2
  .amdhsa_user_sgpr_kernarg_segment_ptr 1
  .amdhsa_system_sgpr_workgroup_id_x 1
.end_amdhsa_kernel""")
open(OUT, "w").write("\n".join(A.L) + "\n")
```

```python
import sys

class Asm:
    def __init__(self): self.L = []
    def __call__(self, s): self.L.append("    " + s)
    def label(self, s): self.L.append(s + ":")
    def raw(self, s): self.L.append(s)

def vr(b, n=4): return f"v[{b}:{b+n-1}]"
OUT = sys.argv[1]
def opt(name, default):
    for a in sys.argv:
        if a.startswith("--" + name + "="): return a.split("=", 1)[1]
    return default
def pol(name, default):
    v = opt(name, default)
    return "" if v == "plain" else " " + v.replace("+", " ")
STAMPS = "--stamps" in sys.argv
S1ST = "--s1st" in sys.argv
PST = "--pst" in sys.argv
DRST = "--drst" in sys.argv
XNT = pol("xnt", "plain")
SST = pol("sst", "nt")
OST = pol("ost", "nt")
PTF = pol("ptf", "plain")
ROT = opt("rot", "xor2")
FAST = opt("fast", "1") == "1"
PRE = opt("pre", "1") == "1"
CTOUCH = opt("ctouch", "1") == "1"
PFA = int(opt("pfa", "0"))
PFB = opt("pfb", "0") == "1"
PFS = {}
for part_ in [p for p in opt("pfs", "").split(";") if p]:
    k_, v_ = part_.split(":")
    PFS[int(k_)] = [int(x) for x in v_.split(",")]
VPX, VPW = 17, 8
SFIRST = int(opt("sfirst", "4"))
BFJ = int(opt("bfj", "15"))
POLL0 = opt("poll0", "0x0f0f")
PLD = pol("pld", "sc1")
SLD = pol("sld", "sc1")
FST = pol("fst", "plain")
H1E = int(opt("h1e", "0"))
H1F = int(opt("h1f", "3"))
CPOS = int(opt("cpos", "1"))
P2T = [int(v) for v in opt("p2t", "").split(",") if v]
R1PRE = int(opt("r1pre", "6"))
GLUB = int(opt("glub", "4"))
APRIO = int(opt("aprio", "2"))
DLATE = opt("dlate", "0") == "1"
DEARLY = opt("dearly", "0") == "1"
SAHEAD = int(opt("sahead", "4"))
NPRE = int(opt("npre", "4"))
KN = "standalone__conformer_conv_module__speech_kernel"

NEG_LOG2E = 0xbfb8aa3b
STG = 49 * 1024
R = [0, STG, 2 * STG]
DW_OFF = 3 * STG
LDS_TOTAL = 163840
XOFF = 16384
HT_OFF = R[2]
HT_STRIDE = 560
def UPOS(h, k):
    if h == 0: return R[2] + 36864 + k * 8192 if k < 2 else R[0] + (k - 2) * 8192
    return R[1] + k * 8192 if k < 6 else R[2] + (k - 6) * 8192
CNT_OFF = DW_OFF + 4608
OSTG = R[2] + 16384
FLAG_OFF = 0x800000
STAMP_OFF = 0x900000

S_WAVE, S_MT, S_NT, S_ROT, S_NQ, S_XCC, S_T0, S_M3 = 44, 45, 46, 47, 48, 49, 50, 51
TMP0, TMP1, TMP2, TMP3 = 52, 53, 54, 55
S_M0W, S_M0X = 56, 57
S_EP = 58
S_SEL0, S_SEL1, S_SPIN, S_FAST = 60, 61, 62, 63
S_C = 64
S_STB = 66
S_CH = 92

DIAG = opt("diag", "")
def stamp(A, idx, force=False):
    if (S1ST or PST) and not force and 3 <= idx <= 9: return
    if STAMPS or DIAG: A(f"s_memtime s[{S_STB+2*idx}:{S_STB+2*idx+1}]")

class VQ:
    def __init__(self): self.q = []
    def add(self, tag, n=1): self.q += [tag] * n
    def after(self, tag):
        idx = max(i for i, t in enumerate(self.q) if t == tag)
        return min(63, len(self.q) - 1 - idx)

def glu_sc(a, b, t):
    n = len(a); ops = []
    for i in range(n): ops.append(f"v_mul_f32 v{t[i]}, s{S_C}, v{b[i]}")
    for i in range(n): ops.append(f"v_exp_f32 v{t[i]}, v{t[i]}")
    for i in range(n): ops.append(f"v_add_f32 v{t[i]}, 1.0, v{t[i]}")
    for i in range(n): ops.append(f"v_rcp_f32 v{t[i]}, v{t[i]}")
    for i in range(n): ops.append(f"v_mul_f32 v{t[i]}, v{a[i]}, v{t[i]}")
    return ops
def glu_pk(a, b, t):
    n = len(a); ops = []
    for i in range(0, n, 2):
        assert b[i] % 2 == 0 and b[i+1] == b[i] + 1 and t[i] % 2 == 0 and a[i+1] == a[i] + 1 and a[i] % 2 == 0
        ops.append(f"v_pk_mul_f32 v[{t[i]}:{t[i]+1}], v[{b[i]}:{b[i]+1}], s[{S_C}:{S_C+1}]")
    for i in range(n): ops.append(f"v_exp_f32 v{t[i]}, v{t[i]}")
    for i in range(0, n, 2): ops.append(f"v_pk_add_f32 v[{t[i]}:{t[i]+1}], v[{t[i]}:{t[i]+1}], 1.0 op_sel_hi:[1,0]")
    for i in range(n): ops.append(f"v_rcp_f32 v{t[i]}, v{t[i]}")
    for i in range(0, n, 2): ops.append(f"v_pk_mul_f32 v[{t[i]}:{t[i]+1}], v[{a[i]}:{a[i]+1}], v[{t[i]}:{t[i]+1}]")
    return ops
def glu(pk, a, b, t, out):
    ops = (glu_pk if pk else glu_sc)(a, b, t)
    for i in range(len(a) // 2): ops.append(f"v_cvt_pk_bf16_f32 v{out[i]}, v{t[2*i]}, v{t[2*i+1]}")
    return ops

VX, VS, VW = 10, 14, 15
VXA, VWA = 18, 24
VW2, VDBG, VW2B = 27, 28, 29
ACC, XF, WF, TT, RRT = 32, 104, 176, 192, 224
DUM = 224

def chunk_regs(A, c):
    if ROT == "hyb" and c >= 2:
        A(f"s_lshl_b32 s{TMP1}, s{S_CH + c - 2}, 17")
        A(f"s_lshl_b32 s{TMP0}, s{S_CH + c - 2}, 7")
        return
    if ROT.startswith("xor"):
        A(f"s_xor_b32 s{TMP0}, s{S_CH}, {c}")
        A(f"s_add_u32 s{TMP0}, s{S_ROT}, s{TMP0}")
    else:
        A(f"s_add_u32 s{TMP0}, s{S_ROT}, {c}")
    A(f"s_and_b32 s{TMP0}, s{TMP0}, 7")
    A(f"s_lshl_b32 s{TMP1}, s{TMP0}, 17")
    A(f"s_lshl_b32 s{TMP0}, s{TMP0}, 7")

def pf_touch(A, c, mh):
    ws = [k for k in PFS.get(c, []) if mh is None or (k >> 2) == mh]
    if not ws: return
    lo, hi = min(ws), max(ws)
    assert ws == list(range(lo, hi + 1))
    lab = f"L_nopf_{c}_{mh}"
    A(f"s_cmp_lt_u32 s{S_WAVE}, {lo}")
    A(f"s_cbranch_scc1 {lab}")
    A(f"s_cmp_gt_u32 s{S_WAVE}, {hi}")
    A(f"s_cbranch_scc1 {lab}")
    A(f"s_add_u32 s{TMP0}, s{S_ROT}, s{S_WAVE}")
    A(f"s_and_b32 s{TMP0}, s{TMP0}, 7")
    A(f"s_lshl_b32 s{TMP1}, s{TMP0}, 17")
    A(f"s_lshl_b32 s{TMP0}, s{TMP0}, 7")
    A("s_mov_b32 exec_hi, 0")
    A(f"buffer_load_dword v2, v{VPFW}, s[24:27], s{TMP1} offen")
    A("s_mov_b32 exec_hi, 1")
    A(f"buffer_load_dword v2, v{VPFX}, s[20:23], s{TMP0} offen{XNT}")
    A("s_mov_b32 exec_hi, -1")
    A.label(lab)
VPFX, VPFW = 17, 31

def dma_stage(A, Q, c, mh, sel=None):
    base = R[c % 3]
    if sel is not None:
        chunk_regs(A, c)
        A(f"s_add_u32 s{TMP2}, s{TMP1}, 1024")
        if sel[0] == 0:
            A(f"s_cmp_eq_u32 s{S_WAVE}, 7")
            A(f"s_cbranch_scc0 L_noS_{c}")
            A(f"s_mov_b32 m0, {base + XOFF + 32*1024}")
            A("s_nop 0")
            A(f"buffer_load_dwordx4 v{VS}, s[20:23], s{TMP0} offen{XNT} lds")
            A.label(f"L_noS_{c}")
        ops = []
        for part in range(2):
            ops.append((f"s_add_u32 m0, s{S_M0W}, {base + part*8192}", f"buffer_load_dwordx4 v{VW}, s[24:27], s{TMP1+part} offen lds"))
        for q in range(4):
            ops.append((f"s_add_u32 m0, s{S_M0X}, {base + q*1024}", f"buffer_load_dwordx4 v{VX+q}, s[20:23], s{TMP0} offen{XNT} lds"))
        for m, l in ops[sel[0]:sel[1]]:
            A(m); A("s_nop 0"); A(l)
        Q.add(f"st{c}", sel[1] - sel[0])
        return
    pf_touch(A, c, mh)
    chunk_regs(A, c)
    A(f"s_add_u32 s{TMP2}, s{TMP1}, 1024")
    if mh != 0:
        A(f"s_cmp_eq_u32 s{S_WAVE}, 7")
        A(f"s_cbranch_scc0 L_noS_{c}")
        A(f"s_mov_b32 m0, {base + XOFF + 32*1024}")
        A("s_nop 0")
        A(f"buffer_load_dwordx4 v{VS}, s[20:23], s{TMP0} offen{XNT} lds")
        A.label(f"L_noS_{c}")
    ops = []
    for part in range(2):
        ops.append((f"s_add_u32 m0, s{S_M0W}, {base + part*8192}", f"buffer_load_dwordx4 v{VW}, s[24:27], s{TMP1+part} offen lds"))
    for q in range(4):
        ops.append((f"s_add_u32 m0, s{S_M0X}, {base + q*1024}", f"buffer_load_dwordx4 v{VX+q}, s[20:23], s{TMP0} offen{XNT} lds"))
    if mh == 1: ops = ops[2:] + ops[:2]
    for m, l in ops:
        A(m); A("s_nop 0"); A(l)
    Q.add(f"st{c}", 6)

def w2_unit(h, k, sa=90):
    g0 = [f"s_add_u32 s{sa}, s{S_NT}, {k}", f"s_and_b32 s{sa}, s{sa}, 7", f"s_lshl_b32 s{sa}, s{sa}, 16", f"s_add_u32 s{sa+1}, s{sa}, 128"]
    out = []
    for part in range(2):
        g = (g0 if part == 0 else []) + [f"s_add_u32 m0, s{S_M0X}, {UPOS(h, k) + part*4096}", "s_nop 0",
             f"buffer_load_dwordx4 v{VW2 + (VW2B - VW2) * h}, s[40:43], s{sa+part} offen lds"]
        out.append("\n    ".join(g))
    return out

def prologue(A, Q):
    A("s_cmp_ge_u32 s2, 256")
    A("s_cbranch_scc1 L_end")
    stamp(A, 0)
    if STAMPS or DIAG: A("s_memrealtime s[98:99]")
    A("s_load_dwordx8 s[4:11], s[0:1], 0")
    A("s_load_dwordx4 s[12:15], s[0:1], 32")
    A("s_load_dwordx2 s[16:17], s[0:1], 48")
    if CTOUCH:
        A("s_getpc_b64 s[18:19]")
        A.label("L_pc")
        A("v_lshlrev_b32 v5, 6, v0")
        A("v_and_b32 v6, 1, v0")
        A("v_lshl_or_b32 v6, v6, 20, v5")
        A("v_cmp_gt_u32 vcc, L_code_end-L_pc, v6")
        A("s_and_saveexec_b64 s[90:91], vcc")
        A("s_cbranch_execz L_noct")
        A("global_load_dword v2, v5, s[18:19]")
        A.label("L_noct")
        A("s_mov_b64 exec, -1")
    A("v_lshrrev_b32 v7, 6, v0")
    A("v_and_b32 v1, 63, v0")
    A(f"v_readfirstlane_b32 s{S_WAVE}, v7")
    A(f"s_and_b32 s{S_ROT}, s2, 7")
    A(f"s_lshr_b32 s{TMP1}, s2, 3")
    A(f"s_lshr_b32 s{S_M3}, s{TMP1}, 3")
    A(f"s_lshl_b32 s{S_MT}, s{S_ROT}, 2")
    A(f"s_add_u32 s{S_MT}, s{S_MT}, s{S_M3}")
    A(f"s_and_b32 s{S_NT}, s{TMP1}, 7")
    if ROT.startswith("xor"):
        A(f"s_add_u32 s{S_CH}, s{S_NT}, s{S_M3}")
        A(f"s_and_b32 s{S_CH}, s{S_CH}, {ROT[3:]}")
    if ROT == "mn":
        A(f"s_lshl_b32 s{S_ROT}, s{S_M3}, 1")
        A(f"s_add_u32 s{S_ROT}, s{S_ROT}, s{S_NT}")
    if ROT == "quarterm":
        A(f"s_and_b32 s{S_ROT}, s{S_NT}, 4")
        A(f"s_add_u32 s{S_ROT}, s{S_ROT}, s{S_M3}")
    if ROT == "half":
        A(f"s_and_b32 s{S_ROT}, s{S_NT}, 6")
    if ROT == "halfm2":
        A(f"s_and_b32 s{S_ROT}, s{S_NT}, 6")
        A(f"s_lshl_b32 s{TMP0}, s{S_M3}, 1")
        A(f"s_add_u32 s{S_ROT}, s{S_ROT}, s{TMP0}")
    if ROT == "halfmx":
        A(f"s_and_b32 s{TMP0}, s{S_NT}, 6")
        A(f"s_add_u32 s{S_ROT}, s{S_ROT}, s{TMP0}")
        A(f"s_add_u32 s{S_ROT}, s{S_ROT}, s{S_M3}")
    if ROT == "halfm":
        A(f"s_and_b32 s{S_ROT}, s{S_NT}, 6")
        A(f"s_add_u32 s{S_ROT}, s{S_ROT}, s{S_M3}")
    A(f"s_and_b32 s{S_T0}, s{S_MT}, 15")
    A(f"s_mul_i32 s{S_T0}, s{S_T0}, 250")
    A(f"s_sub_i32 s{S_T0}, s{S_T0}, 7")
    A(f"s_lshl_b32 s{S_M0W}, s{S_WAVE}, 10")
    A(f"s_lshl_b32 s{S_M0X}, s{S_WAVE}, 12")
    A(f"s_add_u32 s{S_M0X}, s{S_M0X}, {XOFF}")
    A("v_lshrrev_b32 v5, 3, v1")
    A("v_and_b32 v6, 7, v1")
    A("v_lshrrev_b32 v21, 1, v5")
    A("v_and_b32 v22, 1, v21")
    A("v_lshlrev_b32 v22, 2, v22")
    A(f"s_and_b32 s{TMP0}, s{S_WAVE}, 1")
    A(f"s_lshl_b32 s{TMP0}, s{TMP0}, 1")
    A(f"v_or_b32 v22, s{TMP0}, v22")
    A("v_xor_b32 v22, v22, v6")
    A("v_lshlrev_b32 v22, 4, v22")
    A(f"v_lshl_add_u32 v{VW}, v5, 11, v22")
    A(f"v_lshl_add_u32 v{VW2}, v5, 10, v22")
    A(f"s_lshl_b32 s{TMP0}, s{S_WAVE}, 14")
    A(f"s_lshl_b32 s{TMP1}, s{S_NT}, 7")
    A(f"s_add_u32 s{TMP0}, s{TMP0}, s{TMP1}")
    A(f"v_add_u32 v{VW}, s{TMP0}, v{VW}")
    A("v_lshrrev_b32 v7, 2, v5")
    A("v_and_b32 v8, 3, v5")
    A("v_lshl_add_u32 v7, v7, 3, v8")
    A(f"s_lshl_b32 s{TMP0}, s{S_WAVE}, 5")
    A(f"s_add_i32 s{TMP0}, s{TMP0}, s{S_T0}")
    A(f"v_add_u32 v7, s{TMP0}, v7")
    A("v_xor_b32 v8, v21, v6")
    A("v_lshlrev_b32 v8, 4, v8")
    A("v_xor_b32 v9, 64, v8")
    A("v_mov_b32 v20, 0x80000000")
    A(f"v_lshl_add_u32 v{VX}, v7, 10, v8")
    A(f"v_lshl_add_u32 v{VX+1}, v7, 10, v9")
    A(f"v_add_u32 v{VX+2}, 0x1000, v{VX}")
    A(f"v_add_u32 v{VX+3}, 0x5000, v{VX+1}")
    A(f"v_add_u32 v{VX+1}, 0x4000, v{VX+1}")
    A("v_cmp_gt_i32 vcc, 0, v7")
    A("v_cmp_gt_i32 s[90:91], -4, v7")
    A(f"s_add_i32 s{TMP0}, s{S_T0}, 256")
    A(f"v_add_u32 v21, s{TMP0}, v5")
    A(f"v_cndmask_b32 v{VX}, v{VX}, v20, vcc")
    A(f"v_cndmask_b32 v{VX+2}, v{VX+2}, v20, s[90:91]")
    A(f"v_lshl_add_u32 v{VS}, v21, 10, v8")
    if PFS:
        A(f"s_mul_i32 s{TMP0}, s{S_NT}, 33")
        A(f"s_add_i32 s{TMP0}, s{TMP0}, s{S_T0}")
        A(f"v_add_u32 v21, s{TMP0}, v1")
        A(f"v_lshlrev_b32 v{VPFX}, 10, v21")
        A("v_cmp_gt_i32 vcc, 0, v21")
        A("v_lshrrev_b32 v22, 1, v1")
        A("v_lshlrev_b32 v22, 11, v22")
        A(f"v_cndmask_b32 v{VPFX}, v{VPFX}, v20, vcc")
        A("v_and_b32 v21, 1, v1")
        A(f"v_lshl_add_u32 v22, v21, 10, v22")
        A(f"s_lshl_b32 s{TMP0}, s{S_M3}, 15")
        A(f"s_add_u32 s{TMP0}, s{TMP0}, s{TMP1}")
        A(f"v_add_u32 v{VPFW}, s{TMP0}, v22")
    A(f"s_lshr_b32 s{TMP0}, s{S_MT}, 4")
    A(f"s_mul_i32 s{TMP0}, s{TMP0}, 4096000")
    A("s_mov_b32 s22, 4096000"); A("s_mov_b32 s23, 0x20000")
    A("s_mov_b32 s26, 1048576"); A("s_mov_b32 s27, 0x20000")
    A("s_waitcnt lgkmcnt(0)")
    A(f"s_add_u32 s20, s4, s{TMP0}"); A("s_addc_u32 s21, s5, 0")
    A("s_mov_b32 s24, s6"); A("s_mov_b32 s25, s7")
    stamp(A, 1)
    dma_stage(A, Q, 0, None)
    if PST: stamp(A, 3, True)
    A("s_mov_b32 s28, s8"); A("s_mov_b32 s29, s9"); A("s_mov_b32 s30, 15360"); A("s_mov_b32 s31, 0x20000")
    A("v_lshrrev_b32 v21, 3, v0")
    A("v_subrev_u32 v22, 7, v21")
    A("v_lshlrev_b32 v23, 10, v22")
    A("v_lshl_add_u32 v23, v6, 4, v23")
    A(f"s_lshl_b32 s{TMP3}, s{S_NT}, 7")
    A(f"v_add_u32 v23, s{TMP3}, v23")
    A("v_cmp_gt_i32 vcc, 0, v22")
    A("v_mul_u32_u24 v16, 144, v21")
    A("v_lshl_add_u32 v16, v6, 4, v16")
    A("v_cndmask_b32 v23, v23, v20, vcc")
    A(f"v_add_u32 v16, {DW_OFF}, v16")
    A("s_barrier")
    A(f"s_cmp_lt_u32 s{S_WAVE}, 4")
    A("s_cbranch_scc0 L_nodw")
    A(f"buffer_load_dwordx4 {vr(DUM)}, v23, s[28:31], 0 offen")
    A.label("L_nodw")
    dma_stage(A, Q, 1, None, (0, R1PRE))
    if PST: stamp(A, 4, True)
    A("s_mov_b32 s36, s16"); A("s_mov_b32 s37, s17"); A("s_mov_b32 s38, 0x1000000"); A("s_mov_b32 s39, 0x20000")
    A("s_mov_b32 s40, s10"); A("s_mov_b32 s41, s11"); A("s_mov_b32 s42, 524288"); A("s_mov_b32 s43, 0x20000")
    A(f"s_mul_i32 s{TMP0}, s{S_MT}, 256000")
    A(f"s_add_u32 s32, s12, s{TMP0}"); A("s_addc_u32 s33, s13, 0"); A("s_mov_b32 s34, 256000"); A("s_mov_b32 s35, 0x20000")
    A(f"s_and_b32 s{S_NQ}, s{S_WAVE}, 3")
    A("v_and_b32 v3, 15, v1")
    A("v_lshrrev_b32 v4, 4, v1")
    if ROT == "hyb":
        A(f"s_lshl_b32 s{TMP0}, s{S_M3}, 1")
        A(f"s_add_u32 s{TMP0}, s{TMP0}, s{S_NT}")
        for _ in range(2):
            A(f"s_sub_u32 s{TMP1}, s{TMP0}, 6")
            A(f"s_cmp_ge_u32 s{TMP0}, 6")
            A(f"s_cselect_b32 s{TMP0}, s{TMP1}, s{TMP0}")
        for k in range(6):
            A(f"s_add_u32 s{TMP1}, s{TMP0}, {k}")
            A(f"s_sub_u32 s{TMP2}, s{TMP1}, 6")
            A(f"s_cmp_ge_u32 s{TMP1}, 6")
            A(f"s_cselect_b32 s{TMP1}, s{TMP2}, s{TMP1}")
            A(f"s_add_u32 s{TMP1}, s{TMP1}, s{S_ROT}")
            A(f"s_add_u32 s{TMP1}, s{TMP1}, 2")
            A(f"s_and_b32 s{S_CH + k}, s{TMP1}, 7")
    A(f"s_lshl_b32 s{TMP0}, s{S_MT}, 3")
    A(f"v_mov_b32 v{VDBG}, s{TMP0}")
    A(f"s_getreg_b32 s{S_XCC}, hwreg(HW_REG_XCC_ID, 0, 4)")
    A(f"s_and_b32 s{S_XCC}, s{S_XCC}, 7")
    A(f"s_lshl_b32 s{S_XCC}, s{S_XCC}, 2")
    A(f"s_cmp_eq_u32 s{S_WAVE}, 5")
    A("s_cbranch_scc0 L_nohello")
    A(f"s_lshl_b32 s{TMP0}, 1, s{S_XCC}")
    A(f"v_mov_b32 v21, s{TMP0}")
    A("s_mov_b64 exec, 1")
    A(f"global_atomic_add v{VDBG}, v21, s[14:15] offset:4 sc1")
    A(f"s_cmp_eq_u32 s{S_NT}, 0")
    A("s_cbranch_scc0 L_noep")
    A(f"s_memrealtime s[{S_EP}:{S_EP+1}]")
    A("s_waitcnt lgkmcnt(0)")
    A(f"s_lshr_b64 s[{S_EP}:{S_EP+1}], s[{S_EP}:{S_EP+1}], 6")
    A(f"s_or_b32 s{S_EP}, s{S_EP}, 0x80000000")
    A(f"v_mov_b32 v21, s{S_EP}")
    A(f"global_store_dword v{VDBG}, v21, s[14:15] sc1")
    A.label("L_noep")
    A("s_mov_b64 exec, -1")
    A.label("L_nohello")
    A(f"s_lshl_b32 s{TMP0}, s{S_NQ}, 13")
    A(f"s_and_b32 s{TMP1}, s{S_NT}, 3")
    A(f"s_lshl_b32 s{TMP1}, s{TMP1}, 8")
    A(f"s_add_u32 s{TMP0}, s{TMP0}, s{TMP1}")
    A(f"v_add_u32 v{VW2}, s{TMP0}, v{VW2}")
    A(f"v_add_u32 v{VW2B}, 0x8000, v{VW2}")
    A(f"s_mov_b32 s{S_SEL0}, 0x05040100")
    A(f"s_mov_b32 s{S_SEL1}, 0x07060302")
    A(f"s_mov_b32 s{S_C}, 0x{NEG_LOG2E:x}")
    A(f"s_mov_b32 s{S_C+1}, 0x{NEG_LOG2E:x}")
    A("v_lshrrev_b32 v5, 3, v3")
    A("v_and_b32 v6, 7, v3")
    A("v_lshlrev_b32 v5, 10, v5")
    A("v_lshl_add_u32 v5, v6, 7, v5")
    A("v_lshrrev_b32 v6, 1, v3")
    A("v_xor_b32 v6, v6, v4")
    A("v_lshl_add_u32 v7, v6, 4, v5")
    A("v_xor_b32 v8, 64, v7")
    for sl in range(3):
        A(f"v_add_u32 v{VXA+sl*2}, {R[sl] + XOFF}, v7")
        A(f"v_add_u32 v{VXA+sl*2+1}, {R[sl] + XOFF}, v8")
    A("v_lshrrev_b32 v5, 2, v3")
    A("v_and_b32 v6, 3, v3")
    A("v_lshrrev_b32 v7, 1, v6")
    A(f"s_lshl_b32 s{TMP0}, s{S_NQ}, 1")
    A(f"v_or_b32 v7, s{TMP0}, v7")
    A("v_lshrrev_b32 v8, 1, v5")
    A("v_lshlrev_b32 v8, 2, v8")
    A("v_and_b32 v9, 1, v4")
    A("v_lshl_or_b32 v8, v9, 1, v8")
    A("v_xor_b32 v7, v7, v8")
    A("v_lshlrev_b32 v7, 4, v7")
    A("v_lshl_add_u32 v7, v5, 7, v7")
    A("v_lshl_add_u32 v7, v4, 10, v7")
    A("v_and_b32 v6, 1, v6")
    A("v_lshl_add_u32 v7, v6, 3, v7")
    for sl in range(3):
        A(f"v_add_u32 v{VWA+sl}, {R[sl]}, v7")
    A("v_lshlrev_b32 v5, 3, v4")
    A("v_sub_u32 v5, v5, v3")
    A("v_add_u32 v5, 7, v5")
    A("v_cmp_lt_u32 vcc, 21, v5")
    A("v_mov_b32 v6, 22")
    A(f"s_lshl_b32 s{TMP0}, s{S_WAVE}, 4")
    A("v_cndmask_b32 v5, v5, v6, vcc")
    A("v_mul_u32_u24 v5, 144, v5")
    A(f"s_add_u32 s{TMP0}, s{TMP0}, {DW_OFF}")
    A(f"v_add_u32 v9, s{TMP0}, v5")
    A(f"s_cmp_ge_u32 s{S_WAVE}, 4")
    A("s_cbranch_scc1 L_path1")

def path(A, mh, Q0):
    NT = 9 if mh == 0 else 8
    Q = VQ(); Q.q = list(Q0.q)
    if PST: stamp(A, 5, True)
    A(f"s_waitcnt vmcnt({Q.after('st0')})")
    if PST: stamp(A, 6, True)
    if mh == 0:
        A(f"ds_write_b128 v16, {vr(DUM)}")
        A(f"v_mov_b32 v5, {CNT_OFF}")
        A("v_mov_b32 v6, 0")
        A("v_mov_b32 v7, 0")
        A("ds_write_b64 v5, v[6:7]")
        A("s_waitcnt lgkmcnt(0)")
    A("s_barrier")
    stamp(A, 2)
    def reads(j):
        c, ks = j >> 1, j & 1
        sl, buf = c % 3, j & 1
        Rr = []
        for part in range(2):
            for h in range(2):
                d = WF + buf * 8 + part * 4 + h * 2
                Rr.append(f"ds_read_b64_tr_b16 v[{d}:{d+1}], v{VWA+sl} offset:{part*8192 + ks*4096 + h*512}")
        for tt in range(NT):
            tile = (mh * 8 + tt) if tt < 8 else 16
            d = XF + buf * 36 + tt * 4
            Rr.append(f"ds_read_b128 {vr(d)}, v{VXA+sl*2+ks} offset:{tile*2048}")
        return Rr
    def tail_loads():
        A(f"global_load_dwordx2 v[30:31], v{VDBG}, s[14:15] sc1")
        Q.add("misc", 1)
        if mh == 0:
            A(f"s_lshl_b32 s{S_M0X}, s{S_NQ}, 10")
            for k in range(2):
                for g in w2_unit(0, k): A(g)
            Q.add("w2", 4)
            A(f"s_cmp_lt_u32 s{S_NQ}, 2")
            A("s_cbranch_scc0 L_nopf_W2all")
            A(f"s_lshr_b32 s{TMP0}, s2, 3")
            A(f"s_lshl_b32 s{TMP0}, s{TMP0}, 1")
            A(f"s_add_u32 s{TMP0}, s{TMP0}, s{S_NQ}")
            A(f"s_lshl_b32 s{TMP0}, s{TMP0}, 13")
            A("v_lshlrev_b32 v5, 7, v1")
            A(f"buffer_load_dword v2, v5, s[40:43], s{TMP0} offen")
            A.label("L_nopf_W2all")
            if PRE:
                A(f"s_lshl_b32 s{TMP2}, s{S_NT}, 3")
                A(f"s_add_u32 s{TMP2}, s{TMP2}, s{S_WAVE}")
                A(f"s_lshl_b32 s{TMP2}, s{TMP2}, 9")
                A(f"s_lshl_b32 s{TMP3}, s{S_MT}, 18")
                A(f"s_add_u32 s{TMP2}, s{TMP2}, s{TMP3}")
                A("v_lshrrev_b32 v5, 2, v1")
                A("v_and_b32 v5, 7, v5")
                A("v_lshlrev_b32 v5, 15, v5")
                A("v_and_b32 v6, 3, v1")
                A("v_lshl_add_u32 v5, v6, 7, v5")
                A("v_lshrrev_b32 v6, 5, v1")
                A("v_lshl_add_u32 v5, v6, 11, v5")
                A(f"buffer_load_dword v2, v5, s[36:39], s{TMP2} offen{PTF}")
                A(f"s_mov_b64 exec, 15")
                A(f"s_lshl_b32 s{TMP2}, s{S_MT}, 9")
                A(f"s_add_u32 s{TMP2}, s{TMP2}, {FLAG_OFF}")
                A(f"buffer_load_dword v2, v5, s[36:39], s{TMP2} offen{PTF}")
                A(f"s_mov_b64 exec, -1")
                Q.add("misc", 2)
    for r in reads(0): A(r)
    if R1PRE < 6: dma_stage(A, Q, 1, mh, (R1PRE, 6))
    if mh == 1 and not DLATE: dma_stage(A, Q, 2, mh)
    extra = []
    for j in range(16):
        buf = j & 1
        cn = (j + 1) >> 1
        boundary = (j & 1) == 1 and j < 15 and not (mh == 0 and j == 13)
        if boundary:
            A(f"s_waitcnt vmcnt({Q.after(f'st{cn}')}) lgkmcnt(0)")
            A("s_barrier")
            if S1ST: stamp(A, 2 + cn, True)
            if cn == 6:
                if mh == 1:
                    A("s_setprio 3")
                    tail_loads()
                else:
                    tail_loads()
                    A(f"s_waitcnt vmcnt({Q.after('st7')})")
                    A("s_barrier")
                    if S1ST: stamp(A, 9, True)
                    A("s_setprio 1")
        stg = None
        if mh == 0 and (j & 1) == 1 and j < 15: stg = cn + 2
        if mh == 1 and (j & 1) == 0 and j >= 2 and j != 10: stg = (j >> 1) + 2
        if mh == 1 and j == 9: stg = 7
        if DLATE: stg = None
        if DEARLY and mh == 1:
            stg = cn + 2 if ((j & 1) == 1 and j < 15) else None
        if stg is not None and stg < 8: dma_stage(A, Q, stg, mh)
        Rn = reads(j + 1) if j < 15 else []
        if j == 2:
            Rn = [f"ds_read_b128 {vr(RRT + 4*e)}, v9 offset:{e*144}" for e in range(8)] + Rn
        if j == 3:
            extra = [f"v_perm_b32 v{TT + 4*jj + d}, v{RRT + 4*(2*d+1) + (jj>>1)}, v{RRT + 4*(2*d) + (jj>>1)}, s{S_SEL0 + (jj&1)}" for jj in range(8) for d in range(4)]
        issued = 0
        for tt in range(NT):
            for part in range(2):
                if part == 0 and not boundary:
                    A(f"s_waitcnt lgkmcnt({min(15, (NT - 1 - tt) + issued)})")
                a = ACC + (tt * 2 + part) * 4
                cin = "0" if j == 0 else vr(a)
                A(f"v_mfma_f32_16x16x32_bf16 {vr(a)}, {vr(XF + buf*36 + tt*4)}, {vr(WF + buf*8 + part*4)}, {cin}")
                k = 2 if (j == 2 and issued < 10) else 1
                for _ in range(k):
                    if issued < len(Rn):
                        A(Rn[issued]); issued += 1
                    elif extra:
                        A(extra.pop(0))
        assert issued == len(Rn)
        if j == 0 and mh == 0 and not DLATE: dma_stage(A, Q, 2, mh)
        if DLATE and (j & 1) == 0 and (j >> 1) + 2 < 8: dma_stage(A, Q, (j >> 1) + 2, mh)
    assert not extra
    A("s_setprio 0")
    stamp(A, 3)
    pk = (mh == 0)
    A(f"s_lshl_b32 s{TMP0}, s{S_NQ}, 4")
    A(f"v_add_u32 v5, s{TMP0}, v3")
    A(f"v_mul_u32_u24 v5, {HT_STRIDE}, v5")
    A(f"v_add_u32 v5, {HT_OFF}, v5")
    A("v_lshl_add_u32 v6, v4, 4, v5")
    A("v_lshl_add_u32 v7, v4, 3, v5")
    A("s_nop 1")
    T0 = XF
    for p in range(4):
        a = [ACC + ((2*p + o) * 2 + 0) * 4 + r for o in range(2) for r in range(4)]
        b = [ACC + ((2*p + o) * 2 + 1) * 4 + r for o in range(2) for r in range(4)]
        O = T0 + 8 + 4 * (p & 1)
        for op in glu(pk or p >= GLUB, a, b, [T0 + i for i in range(8)], [O + i for i in range(4)]): A(op)
        A(f"ds_write_b128 v6, {vr(O)} offset:{(4*mh + p) * 64}")
    if mh == 0:
        a = [ACC + 16 * 4 + r for r in range(4)]
        b = [ACC + 17 * 4 + r for r in range(4)]
        O = T0 + 16
        A("v_cmp_gt_u32 vcc, 2, v4")
        for op in glu(pk, a, b, [T0 + i for i in range(4)], [O, O + 1]): A(op)
        A(f"v_cndmask_b32 v{O}, 0, v{O}, vcc")
        A(f"v_cndmask_b32 v{O+1}, 0, v{O+1}, vcc")
        A(f"ds_write_b64 v7, v[{O}:{O+1}] offset:512")
        A(f"s_waitcnt vmcnt({Q.after('w2')})")

def epilogue1(A, mh):
    A(f"s_mul_i32 s{TMP0}, s{S_WAVE}, {8*HT_STRIDE}")
    A(f"s_add_u32 s{TMP0}, s{TMP0}, {HT_OFF}")
    A("v_lshlrev_b32 v5, 5, v3")
    A("v_lshl_add_u32 v5, v4, 4, v5")
    A(f"v_add_u32 v5, s{TMP0}, v5")
    A(f"s_lshl_b32 s{TMP2}, s{S_NT}, 3")
    A(f"s_add_u32 s{TMP2}, s{TMP2}, s{S_WAVE}")
    A(f"s_lshl_b32 s{TMP1}, s{TMP2}, 3")
    A(f"v_mov_b32 v11, s{TMP1}")
    A(f"s_lshl_b32 s{TMP2}, s{TMP2}, 9")
    A(f"s_lshl_b32 s{TMP3}, s{S_MT}, 18")
    A(f"s_add_u32 s{TMP2}, s{TMP2}, s{TMP3}")
    A("v_lshlrev_b32 v6, 16, v4")
    A("v_lshl_add_u32 v6, v3, 4, v6")
    A("v_add_u32 v7, 0x8000, v6")
    A(f"s_lshl_b32 s{TMP3}, s{S_MT}, 9")
    A(f"s_add_u32 s{TMP3}, s{TMP3}, {FLAG_OFF}")
    A(f"s_lshl_b32 s{S_M0X}, s{S_NQ}, 10")
    A(f"v_mov_b32 v14, {CNT_OFF}")
    A("v_mov_b32 v15, 1")
    if mh == 1:
        A("s_waitcnt vmcnt(0)")
    A("s_waitcnt lgkmcnt(0)")
    A("s_barrier")
    stamp(A, 4)
    HA, Y, T0, O0 = 32, 64, 96, 160
    for j in range(8):
        A(f"ds_read_b128 {vr(HA + 4*j)}, v5 offset:{j*HT_STRIDE}")
    if mh == 1:
        for k in range(2, 8):
            for g in w2_unit(0, k): A(g)
        for k in range(H1F):
            for g in w2_unit(1, k): A(g)
    else:
        A(f"s_setprio {APRIO}")
    for j in range(8):
        A(f"s_waitcnt lgkmcnt({7-j})")
        A(f"v_mfma_f32_16x16x32_bf16 {vr(Y + 4*j)}, {vr(HA + 4*j)}, {vr(TT + 4*j)}, 0")
    if mh == 0:
        A(f"s_waitcnt vmcnt({3 if PRE else 1})")
    A(f"v_readfirstlane_b32 s{S_EP}, v30")
    A(f"v_readfirstlane_b32 s{S_FAST}, v31")
    A(f"s_lshl_b32 s{TMP0}, 8, s{S_XCC}")
    A(f"s_cmp_eq_u32 s{S_FAST}, s{TMP0}")
    A(f"s_cselect_b32 s{S_FAST}, {1 if FAST else 0}, 0")
    A("s_nop 2")
    for half in range(2):
        y = [Y + 4*j + 2*half + rr for j in range(8) for rr in range(2)]
        t = [T0 + 16*half + i for i in range(16)]
        wr = []
        if mh == 1 and half == CPOS:
            A("s_waitcnt vmcnt(0)")
            A("s_mov_b64 exec, 1")
            A("ds_add_u32 v14, v15")
            A("s_mov_b64 exec, -1")
            wr = [g for k in range(H1F, H1E) for g in w2_unit(1, k)]
        for n_, op in enumerate(glu_pk(y, y, t)):
            A(op)
            if wr and n_ % 4 == 1: A(wr.pop(0))
        for g in wr: A(g)
        for rr in range(2):
            for i in range(4):
                A(f"v_cvt_pk_bf16_f32 v{O0 + 4*(2*half+rr) + i}, v{t[2*(2*i) + rr]}, v{t[2*(2*i+1) + rr]}")
    A(f"s_cmp_lg_u32 s{S_EP}, 0")
    A(f"s_cselect_b32 s{S_FAST}, s{S_FAST}, 0")
    A(f"s_not_b32 s{S_EP+1}, s{S_EP}")
    A(f"v_mov_b32 v16, s{S_EP}")
    A(f"v_mov_b32 v17, s{S_EP+1}")
    A(f"s_cmp_eq_u32 s{S_FAST}, 1")
    A(f"s_cbranch_scc0 L_slow{mh}")
    for r in range(4):
        A(f"buffer_store_dwordx4 {vr(O0 + 4*r)}, v{6 + (r>>1)}, s[36:39], s{TMP2} offen offset:{(r&1)*256}{SST}")
    stamp(A, 5)
    if mh == 0:
        phase2_setup(A)
    A("s_mov_b64 exec, 1")
    A("s_waitcnt vmcnt(0)")
    if DRST: stamp(A, 1)
    A(f"buffer_store_dwordx2 v[16:17], v11, s[36:39], s{S_FL} offen{FST}" if mh == 0 else f"buffer_store_dwordx2 v[16:17], v11, s[36:39], s{TMP3} offen{FST}")
    A("s_mov_b64 exec, -1")
    A.label(f"L_join{mh}")
    if mh == 1:
        for k in range(max(H1E, H1F), 6):
            for g in w2_unit(1, k): A(g)
        A("s_waitcnt vmcnt(0)")
        A("s_barrier")
        stamp(A, 6)
        for k in (6, 7):
            for g in w2_unit(1, k): A(g)
        A("s_waitcnt vmcnt(0)")
        A("s_barrier")
        if STAMPS:
            A("s_waitcnt lgkmcnt(0)")
            A("s_mov_b64 exec, 1")
            A(f"s_lshl_b32 s{TMP0}, s2, 3")
            A(f"s_add_u32 s{TMP0}, s{TMP0}, s{S_WAVE}")
            A(f"s_lshl_b32 s{TMP0}, s{TMP0}, 6")
            A(f"s_add_u32 s{TMP0}, s{TMP0}, {STAMP_OFF + 0x40000}")
            A(f"v_mov_b32 v3, s{TMP0}")
            for j in range(7):
                A(f"v_mov_b32 v4, s{S_STB+2*j}"); A(f"v_mov_b32 v5, s{S_STB+2*j+1}")
                A(f"buffer_store_dwordx2 v[4:5], v3, s[36:39], 0 offen offset:{8*j}")
                A("s_nop 1")
            A(f"s_getreg_b32 s{TMP1}, hwreg(HW_REG_HW_ID)")
            A(f"v_mov_b32 v4, s{TMP1}"); A("v_mov_b32 v5, 0")
            A(f"buffer_store_dwordx2 v[4:5], v3, s[36:39], 0 offen offset:56")
        A("s_endpgm")

def slow_path(A, mh):
    O0 = 160
    A.label(f"L_slow{mh}")
    for r in range(4):
        A(f"buffer_store_dwordx4 {vr(O0 + 4*r)}, v{6 + (r>>1)}, s[36:39], s{TMP2} offen offset:{(r&1)*256} sc1")
    A(f"s_mov_b32 s{S_SPIN}, 0")
    A.label(f"L_ep_chk{mh}")
    A(f"s_cmp_lg_u32 s{S_EP}, 0")
    A(f"s_cbranch_scc1 L_ep_ok{mh}")
    A(f"global_load_dwordx2 v[30:31], v{VDBG}, s[14:15] sc1")
    A(f"s_add_u32 s{S_SPIN}, s{S_SPIN}, 1")
    A("s_waitcnt vmcnt(0)")
    A(f"v_readfirstlane_b32 s{S_EP}, v30")
    A(f"s_cmp_lt_u32 s{S_SPIN}, 0x40000")
    A(f"s_cbranch_scc1 L_ep_chk{mh}")
    A.label(f"L_ep_ok{mh}")
    A(f"s_not_b32 s{S_EP+1}, s{S_EP}")
    A(f"v_mov_b32 v16, s{S_EP}")
    A(f"v_mov_b32 v17, s{S_EP+1}")
    A("s_mov_b64 exec, 1")
    A("s_waitcnt vmcnt(0)")
    A(f"buffer_store_dwordx2 v[16:17], v11, s[36:39], s{TMP3} offen sc1")
    A("s_mov_b64 exec, -1")
    if mh == 0:
        phase2_setup(A)
    A(f"s_branch L_join{mh}")

S_FL = 91
def phase2_setup(A):
    A(f"s_mov_b32 s{S_FL}, s{TMP3}")
    A(f"s_lshr_b32 s{TMP0}, s{S_NT}, 2")
    A(f"s_lshl_b32 s{TMP0}, s{TMP0}, 2")
    A(f"s_add_u32 s{TMP0}, s{TMP0}, s{S_WAVE}")
    A(f"s_lshl_b32 s90, s{TMP0}, 15")
    A(f"s_lshl_b32 s{TMP1}, s{S_MT}, 18")
    A(f"s_add_u32 s{TMP1}, s{TMP1}, s90")
    A("v_lshlrev_b32 v12, 4, v1")
    A(f"v_add_u32 v12, s{TMP1}, v12")
    A("v_lshrrev_b32 v5, 2, v3")
    A("v_and_b32 v8, 3, v3")
    A("v_lshrrev_b32 v9, 1, v8")
    A("v_and_b32 v10, 1, v4")
    A("v_lshl_or_b32 v9, v10, 1, v9")
    A("v_lshrrev_b32 v10, 1, v5")
    A("v_lshlrev_b32 v10, 2, v10")
    A("v_lshrrev_b32 v13, 1, v4")
    A("v_lshl_or_b32 v10, v13, 1, v10")
    A("v_xor_b32 v9, v9, v10")
    A("v_lshlrev_b32 v9, 4, v9")
    A("v_lshl_add_u32 v9, v5, 7, v9")
    A("v_lshl_add_u32 v9, v13, 10, v9")
    A("v_and_b32 v8, 1, v8")
    A("v_lshl_add_u32 v22, v8, 3, v9")
    A("v_xor_b32 v23, 64, v22")
    for wdw in (1, 2):
        A(f"v_add_u32 v{22+2*wdw}, {wdw*0x10000}, v22")
        A(f"v_add_u32 v{23+2*wdw}, {wdw*0x10000}, v23")
    for s_ in range(8):
        A(f"s_add_u32 s{TMP0}, s{S_NT}, {s_}")
        A(f"s_and_b32 s{TMP0}, s{TMP0}, 7")
        A(f"s_lshl_b32 s{20+s_}, s{TMP0}, 12")
    A(f"s_lshl_b32 s{TMP0}, s{S_NT}, 3")
    A(f"v_add_u32 v13, s{TMP0}, v1")
    A("v_and_b32 v13, 63, v13")
    A("v_lshlrev_b32 v13, 3, v13")
    A(f"s_mov_b32 s{S_SPIN}, 0")

def phase2(A):
    SF, ACC2, WF2 = 128, 64, 32
    def dec(i): return i >> 4, (i >> 1) & 7, i & 1
    TAILN = int(opt("tailn", "4"))
    seq = [(j, ct) for j in range(32 - TAILN) for ct in range(4)]
    seq += [(j, ct) for j in range(32 - TAILN, 32) for ct in (0, 1)] + [(j, ct) for j in range(32 - TAILN, 32) for ct in (2, 3)]
    def wreads(n):
        i, ct = seq[n]
        h, k, e = dec(i)
        part, ctp = ct >> 1, ct & 1
        Rr = []
        for hh in range(2):
            off = UPOS(h, k) + part * 4096 + e * 2048 + hh * 512
            base = 22 + ctp + 2 * (off >> 16)
            d = WF2 + (n % 8) * 4 + hh * 2
            Rr.append(f"ds_read_b64_tr_b16 v[{d}:{d+1}], v{base} offset:{off & 0xffff}")
        return Rr
    def reads(i): return [r for n in range(4*i, 4*i+4) for r in wreads(n)]
    def sload(i):
        h, k, e = dec(i)
        return f"buffer_load_dwordx4 {vr(SF + i*4)}, v12, s[36:39], s{20 + k} offen offset:{(2*h+e)*1024}{SLD}"
    S_MK = 28
    A("s_mov_b64 exec, 1")
    A("ds_add_u32 v14, v15 offset:4")
    A("s_mov_b64 exec, -1")
    for r in reads(0): A(r)
    A.label("L_cntA")
    A("ds_read_b32 v5, v14 offset:4")
    A("s_waitcnt lgkmcnt(0)")
    A(f"v_readfirstlane_b32 s{TMP0}, v5")
    A(f"s_cmp_lt_u32 s{TMP0}, 4")
    A("s_cbranch_scc1 L_cntA")
    A(sload(0)); A(sload(1))
    A(f"buffer_load_dwordx2 v[18:19], v13, s[36:39], s{S_FL} offen{PLD}")
    stamp(A, 6)
    spins = []
    def check(u):
        h, k = u >> 3, u & 7
        reg = S_MK + (k >> 2)
        A(f"s_bfe_u32 s{TMP0}, s{reg}, {((k & 3) * 8 + 4 * h) | (4 << 16)}")
        A(f"s_cmp_eq_u32 s{TMP0}, 15")
        A(f"s_cbranch_scc0 L_spin{u}")
        A.label(f"L_back{u}")
        spins.append(u)
    nissued = [2]
    def issue_upto(n):
        while nissued[0] < min(32, n):
            jj = nissued[0]
            if jj % 2 == 0: check(jj // 2)
            A(sload(jj)); nissued[0] += 1
    stamp(A, 7)
    def epi_setup():
        return ["v_and_b32 v5, 31, v1", "v_lshrrev_b32 v6, 5, v1", "v_and_b32 v7, 7, v5", "v_xor_b32 v7, v7, v6", "v_lshlrev_b32 v7, 4, v7",
                "v_lshl_add_u32 v7, v5, 7, v7", f"s_lshl_b32 s{TMP1}, s{S_WAVE}, 13", f"v_add_u32 v7, s{TMP1}, v7",
                "v_xor_b32 v8, 32, v7", "v_xor_b32 v9, 64, v7", "v_xor_b32 v10, 96, v7",
                "v_lshrrev_b32 v5, 3, v1", "v_and_b32 v6, 7, v1", "v_xor_b32 v11, v5, v6", "v_lshlrev_b32 v11, 4, v11",
                "v_lshl_add_u32 v11, v5, 7, v11", f"v_add_u32 v11, s{TMP1}, v11", "v_lshlrev_b32 v6, 4, v6", "v_lshl_add_u32 v6, v5, 10, v6",
                f"s_and_b32 s{TMP1}, s{S_NT}, 3", f"s_lshl_b32 s{TMP1}, s{TMP1}, 8", f"s_add_u32 s90, s90, s{TMP1}"]
    def pack(half):
        ops = []
        for ctp in range(2):
            for qq in range(2):
                a = ACC2 + (half * 2 + ctp) * 16 + qq * 8
                O = SF + 16 * half + 4 * (ctp * 2 + qq)
                for i in range(4): ops.append(f"v_cvt_pk_bf16_f32 v{O+i}, v{a+2*i}, v{a+2*i+1}")
        for ctp in range(2):
            for qq in range(2):
                O = SF + 16 * half + 4 * (ctp * 2 + qq)
                ops.append(f"v_permlane32_swap_b32 v{O}, v{O+2}")
                ops.append(f"v_permlane32_swap_b32 v{O+1}, v{O+3}")
        for ctp in range(2):
            for qq in range(2):
                O = SF + 16 * half + 4 * (ctp * 2 + qq)
                ops.append(f"ds_write_b128 v{7 + 2*ctp + qq}, {vr(O)} offset:{R[0] + half*4096}")
        return ops
    extra = []
    N = len(seq)
    n_h0 = max(n for n in range(N) if seq[n][1] < 2)
    for n, (j, ct) in enumerate(seq):
        first_of_j = all(seq[m][0] != j for m in range(n))
        w = f"lgkmcnt({min(6, 2 * (N - 1 - n))})"
        if first_of_j: w = f"vmcnt({nissued[0] - 1 - j + (1 if j == 0 else 0)}) " + w
        A(f"s_waitcnt {w}")
        if n == 12:
            A.label("L_cnt")
            A("ds_read_b32 v5, v14")
            A("s_waitcnt lgkmcnt(0)")
            A(f"v_readfirstlane_b32 s{TMP0}, v5")
            A(f"s_cmp_lt_u32 s{TMP0}, 4")
            A("s_cbranch_scc1 L_cnt")
        if n in (4 * BFJ, 4 * 27):
            A("s_barrier")
        a = ACC2 + ct * 16
        cin = "0" if j == 0 else vr(a, 16)
        A(f"v_mfma_f32_32x32x16_bf16 {vr(a,16)}, {vr(WF2 + (n % 8)*4)}, {vr(SF + j*4)}, {cin}")
        if n + 4 < N:
            for r in wreads(n + 4): A(r)
        if n == 0:
            A("s_waitcnt vmcnt(0)")
            A(f"v_cmp_eq_u64 s[{S_MK}:{S_MK+1}], s[{S_EP}:{S_EP+1}], v[18:19]")
        issue_upto(min(32, j + 1 + SAHEAD, nissued[0] + 2))
        if n == 4 * 20: extra = epi_setup()
        if n == n_h0 + 2: extra = pack(0)
        for _ in range(2 if n <= n_h0 else 5):
            if extra: A(extra.pop(0))
        if n == 19: stamp(A, 8)
    for op in extra: A(op)
    stamp(A, 9)
    RB = 32
    A("s_waitcnt lgkmcnt(0)")
    for i in range(4): A(f"ds_read_b128 {vr(RB + 4*i)}, v11 offset:{R[0] + i*1024}")
    A("s_nop 5")
    p1 = pack(1)
    for op in p1[:16]: A(op)
    for i in range(4):
        A(f"s_waitcnt lgkmcnt({3-i})")
        A(f"s_add_u32 s{TMP0}, s90, {i*8192}")
        A(f"buffer_store_dwordx4 {vr(RB + 4*i)}, v6, s[32:35], s{TMP0} offen{OST}")
    for op in p1[16:]: A(op)
    A("s_waitcnt lgkmcnt(0)")
    for i in range(4): A(f"ds_read_b128 {vr(RB + 16 + 4*i)}, v11 offset:{R[0] + 4096 + i*1024}")
    for i in range(4):
        A(f"s_waitcnt lgkmcnt({3-i})")
        A(f"s_add_u32 s{TMP0}, s90, {i*8192 + 128}")
        A(f"buffer_store_dwordx4 {vr(RB + 16 + 4*i)}, v6, s[32:35], s{TMP0} offen{OST}")
    if STAMPS:
        ns = 12
        A("s_waitcnt vmcnt(0)")
        stamp(A, ns - 2)
        A(f"s_mov_b64 s[{S_STB+2*(ns-1)}:{S_STB+2*(ns-1)+1}], s[98:99]")
        if P2T:
            A(f"s_add_u32 s{S_STB+2*(ns-1)}, s{S_STB}, s{S_SPIN}")
            A(f"s_addc_u32 s{S_STB+2*(ns-1)+1}, s{S_STB+1}, 0")
        A(f"s_memrealtime s[{S_EP}:{S_EP+1}]")
        A("s_waitcnt lgkmcnt(0)")
        A("s_mov_b64 exec, 1")
        A(f"s_lshl_b32 s{TMP0}, s2, 3")
        A(f"s_add_u32 s{TMP0}, s{TMP0}, s{S_WAVE}")
        A(f"s_lshl_b32 s{TMP0}, s{TMP0}, 6")
        A(f"s_add_u32 s{TMP0}, s{TMP0}, {STAMP_OFF + 0x40000}")
        A(f"v_mov_b32 v3, s{TMP0}")
        for j in range(7):
            A(f"v_mov_b32 v4, s{S_STB+2*j}"); A(f"v_mov_b32 v5, s{S_STB+2*j+1}")
            A(f"buffer_store_dwordx2 v[4:5], v3, s[36:39], 0 offen offset:{8*j}")
            A("s_nop 1")
        A(f"s_getreg_b32 s{TMP1}, hwreg(HW_REG_HW_ID)")
        A(f"v_mov_b32 v4, s{TMP1}"); A("v_mov_b32 v5, 0")
        A(f"buffer_store_dwordx2 v[4:5], v3, s[36:39], 0 offen offset:56")
        A(f"s_cmp_eq_u32 s{S_WAVE}, 0")
        A("s_cbranch_scc0 L_end")
        A(f"s_mul_i32 s{TMP0}, s2, {8*(ns+1)}")
        A(f"s_add_u32 s{TMP0}, s{TMP0}, {STAMP_OFF}")
        A(f"v_mov_b32 v3, s{TMP0}")
        for j in range(ns):
            A(f"v_mov_b32 v4, s{S_STB+2*j}"); A(f"v_mov_b32 v5, s{S_STB+1+2*j}")
            A(f"buffer_store_dwordx2 v[4:5], v3, s[36:39], 0 offen offset:{8*j}")
            A("s_nop 1")
        A(f"v_mov_b32 v4, s{S_EP}"); A(f"v_mov_b32 v5, s{S_EP+1}")
        A(f"buffer_store_dwordx2 v[4:5], v3, s[36:39], 0 offen offset:{8*ns}")
    if DIAG:
        a, b, wg = [int(v) for v in DIAG.split(",")]
        A("s_waitcnt vmcnt(0)")
        stamp(A, 10)
        A("s_waitcnt lgkmcnt(0)")
        A(f"s_sub_u32 s{TMP0}, s{S_STB+2*b}, s{S_STB+2*a}")
        if wg >= 0:
            A(f"s_cmp_eq_u32 s2, {wg}")
            A(f"s_cselect_b32 s{TMP0}, s{TMP0}, 0")
        A(f"s_lshr_b32 s{TMP0}, s{TMP0}, 1")
        A(f"s_add_u32 s{TMP0}, s{TMP0}, 3000")
        A.label("L_diag")
        A("s_sleep 4")
        A(f"s_memrealtime s[{S_EP}:{S_EP+1}]")
        A("s_waitcnt lgkmcnt(0)")
        A(f"s_sub_u32 s{TMP1}, s{S_EP}, s98")
        A(f"s_cmp_lt_u32 s{TMP1}, s{TMP0}")
        A("s_cbranch_scc1 L_diag")
    A.label("L_end")
    A("s_endpgm")
    for u in spins:
        h, kk = u >> 3, u & 7
        k = u
        reg = S_MK + (kk >> 2)
        A.label(f"L_spin{k}")
        A(f"buffer_load_dwordx2 v[20:21], v13, s[36:39], s{S_FL} offen{PLD}")
        A(f"s_add_u32 s{S_SPIN}, s{S_SPIN}, 1")
        A("s_waitcnt vmcnt(0)")
        A(f"v_cmp_eq_u64 s[{S_MK}:{S_MK+1}], s[{S_EP}:{S_EP+1}], v[20:21]")
        A(f"s_cmp_ge_u32 s{S_SPIN}, 0x40000")
        A(f"s_cbranch_scc1 L_back{k}")
        A(f"s_bfe_u32 s{TMP0}, s{reg}, {((kk & 3) * 8 + 4 * h) | (4 << 16)}")
        A(f"s_cmp_eq_u32 s{TMP0}, 15")
        A(f"s_cbranch_scc0 L_spin{k}")
        A(f"s_branch L_back{k}")

A = Asm()
A.raw(f"; @launch grid=(256,1,1) block=(512,1,1) lds={LDS_TOTAL}")
for c_ in """Fused conformer conv module (generated by a hand-written python generator).
kernarg: x@0 w_pw1@8 dw@16 w_pw2@24 out@32 debug@40 ws@48
256 workgroups x 8 waves. WG b: M-tile (250 rows) = (b&7)*4 + (b>>6), channel tile (64 ch) = (b>>3)&7.
phase 1: h = x@w_pw1 (LDS-DMA ring, 16x16x32 MFMA), GLU, depthwise conv as a per-channel Toeplitz MFMA, SiLU -> s in ws.
hand-off between the 8 WGs of an M-tile: per-wave epoch-tagged flags in ws; epoch + XCC histogram live in d_debug.
  same-XCD groups (checked at run time) use L2-local stores, otherwise sc1 write-through stores; loads are always sc1.
phase 2: out tile 128x128 = s @ w_pw2 (32x32x16 MFMA, w_pw2 in LDS via transposing reads).""".split("\n"):
    A.raw("; " + c_)
A.raw('.amdgcn_target "amdgcn-amd-amdhsa--gfx950"')
A.raw(".text")
A.raw(f".globl {KN}")
A.raw(".p2align 8")
A.raw(f".type {KN},@function")
A.label(KN)
Q = VQ()
prologue(A, Q)
path(A, 0, Q)
epilogue1(A, 0)
phase2(A)
A.label("L_path1")
path(A, 1, Q)
epilogue1(A, 1)
slow_path(A, 0)
slow_path(A, 1)
A.label("L_code_end")
A.raw('.section .rodata,"a"')
A.raw(f""".p2align 6
.amdhsa_kernel {KN}
  .amdhsa_next_free_vgpr 256
  .amdhsa_next_free_sgpr 102
  .amdhsa_accum_offset 256
  .amdhsa_group_segment_fixed_size 0
  .amdhsa_kernarg_size 56
  .amdhsa_user_sgpr_count 2
  .amdhsa_user_sgpr_kernarg_segment_ptr 1
  .amdhsa_system_sgpr_workgroup_id_x 1
.end_amdhsa_kernel""")
open(OUT, "w").write("\n".join(A.L) + "\n")
```

```python
import sys

class Asm:
    def __init__(self): self.L = []
    def __call__(self, s): self.L.append("    " + s)
    def label(self, s): self.L.append(s + ":")
    def raw(self, s): self.L.append(s)

def vr(b, n=4): return f"v[{b}:{b+n-1}]"
OUT = sys.argv[1]
def opt(name, default):
    for a in sys.argv:
        if a.startswith("--" + name + "="): return a.split("=", 1)[1]
    return default
def pol(name, default):
    v = opt(name, default)
    return "" if v == "plain" else " " + v.replace("+", " ")
STAMPS = "--stamps" in sys.argv
S1ST = "--s1st" in sys.argv
PST = "--pst" in sys.argv
DRST = "--drst" in sys.argv
XNT = pol("xnt", "plain")
SST = pol("sst", "nt")
OST = pol("ost", "nt")
PTF = pol("ptf", "plain")
ROT = opt("rot", "xor2")
FAST = opt("fast", "1") == "1"
PRE = opt("pre", "1") == "1"
CTOUCH = opt("ctouch", "1") == "1"
PFA = int(opt("pfa", "0"))
PFB = opt("pfb", "0") == "1"
PFS = {}
for part_ in [p for p in opt("pfs", "").split(";") if p]:
    k_, v_ = part_.split(":")
    PFS[int(k_)] = [int(x) for x in v_.split(",")]
VPX, VPW = 17, 8
SFIRST = int(opt("sfirst", "4"))
BFJ = int(opt("bfj", "15"))
POLL0 = opt("poll0", "0x0f0f")
PLD = pol("pld", "sc1")
SLD = pol("sld", "sc1")
FST = pol("fst", "plain")
H1E = int(opt("h1e", "0"))
H1F = int(opt("h1f", "3"))
CPOS = int(opt("cpos", "1"))
P2T = [int(v) for v in opt("p2t", "").split(",") if v]
R1PRE = int(opt("r1pre", "6"))
GLUB = int(opt("glub", "4"))
APRIO = int(opt("aprio", "2"))
DLATE = opt("dlate", "0") == "1"
DEARLY = opt("dearly", "0") == "1"
WBL = int(opt("wbl", "3"))
WBLATE = opt("wblate", "0") == "1"
SAHEAD = int(opt("sahead", "4"))
NPRE = int(opt("npre", "4"))
KN = "standalone__conformer_conv_module__speech_kernel"

NEG_LOG2E = 0xbfb8aa3b
STG = 49 * 1024
R = [0, STG, 2 * STG]
DW_OFF = 3 * STG
LDS_TOTAL = 163840
XOFF = 16384
HT_OFF = R[2]
HT_STRIDE = 560
def UPOS(h, k):
    if h == 0: return R[2] + 36864 + k * 8192 if k < 2 else R[0] + (k - 2) * 8192
    return R[1] + k * 8192 if k < 6 else R[2] + (k - 6) * 8192
CNT_OFF = DW_OFF + 4608
OSTG = R[2] + 16384
FLAG_OFF = 0x800000
STAMP_OFF = 0x900000

S_WAVE, S_MT, S_NT, S_ROT, S_NQ, S_XCC, S_T0, S_M3 = 44, 45, 46, 47, 48, 49, 50, 51
TMP0, TMP1, TMP2, TMP3 = 52, 53, 54, 55
S_M0W, S_M0X = 56, 57
S_EP = 58
S_SEL0, S_SEL1, S_SPIN, S_FAST = 60, 61, 62, 63
S_C = 64
S_STB = 66
S_CH = 92

DIAG = opt("diag", "")
def stamp(A, idx, force=False):
    if (S1ST or PST) and not force and 3 <= idx <= 9: return
    if STAMPS or DIAG: A(f"s_memtime s[{S_STB+2*idx}:{S_STB+2*idx+1}]")

class VQ:
    def __init__(self): self.q = []
    def add(self, tag, n=1): self.q += [tag] * n
    def after(self, tag):
        idx = max(i for i, t in enumerate(self.q) if t == tag)
        return min(63, len(self.q) - 1 - idx)

def glu_sc(a, b, t):
    n = len(a); ops = []
    for i in range(n): ops.append(f"v_mul_f32 v{t[i]}, s{S_C}, v{b[i]}")
    for i in range(n): ops.append(f"v_exp_f32 v{t[i]}, v{t[i]}")
    for i in range(n): ops.append(f"v_add_f32 v{t[i]}, 1.0, v{t[i]}")
    for i in range(n): ops.append(f"v_rcp_f32 v{t[i]}, v{t[i]}")
    for i in range(n): ops.append(f"v_mul_f32 v{t[i]}, v{a[i]}, v{t[i]}")
    return ops
def glu_pk(a, b, t):
    n = len(a); ops = []
    for i in range(0, n, 2):
        assert b[i] % 2 == 0 and b[i+1] == b[i] + 1 and t[i] % 2 == 0 and a[i+1] == a[i] + 1 and a[i] % 2 == 0
        ops.append(f"v_pk_mul_f32 v[{t[i]}:{t[i]+1}], v[{b[i]}:{b[i]+1}], s[{S_C}:{S_C+1}]")
    for i in range(n): ops.append(f"v_exp_f32 v{t[i]}, v{t[i]}")
    for i in range(0, n, 2): ops.append(f"v_pk_add_f32 v[{t[i]}:{t[i]+1}], v[{t[i]}:{t[i]+1}], 1.0 op_sel_hi:[1,0]")
    for i in range(n): ops.append(f"v_rcp_f32 v{t[i]}, v{t[i]}")
    for i in range(0, n, 2): ops.append(f"v_pk_mul_f32 v[{t[i]}:{t[i]+1}], v[{a[i]}:{a[i]+1}], v[{t[i]}:{t[i]+1}]")
    return ops
def glu(pk, a, b, t, out):
    ops = (glu_pk if pk else glu_sc)(a, b, t)
    for i in range(len(a) // 2): ops.append(f"v_cvt_pk_bf16_f32 v{out[i]}, v{t[2*i]}, v{t[2*i+1]}")
    return ops

VX, VS, VW = 10, 14, 15
VXA, VWA = 18, 24
VW2, VDBG, VW2B = 27, 28, 29
ACC, XF, WF, TT, RRT = 32, 104, 176, 192, 224
DUM = 224

def chunk_regs(A, c):
    if ROT == "hyb" and c >= 2:
        A(f"s_lshl_b32 s{TMP1}, s{S_CH + c - 2}, 17")
        A(f"s_lshl_b32 s{TMP0}, s{S_CH + c - 2}, 7")
        return
    if ROT.startswith("xor"):
        A(f"s_xor_b32 s{TMP0}, s{S_CH}, {c}")
        A(f"s_add_u32 s{TMP0}, s{S_ROT}, s{TMP0}")
    else:
        A(f"s_add_u32 s{TMP0}, s{S_ROT}, {c}")
    A(f"s_and_b32 s{TMP0}, s{TMP0}, 7")
    A(f"s_lshl_b32 s{TMP1}, s{TMP0}, 17")
    A(f"s_lshl_b32 s{TMP0}, s{TMP0}, 7")

def pf_touch(A, c, mh):
    ws = [k for k in PFS.get(c, []) if mh is None or (k >> 2) == mh]
    if not ws: return
    lo, hi = min(ws), max(ws)
    assert ws == list(range(lo, hi + 1))
    lab = f"L_nopf_{c}_{mh}"
    A(f"s_cmp_lt_u32 s{S_WAVE}, {lo}")
    A(f"s_cbranch_scc1 {lab}")
    A(f"s_cmp_gt_u32 s{S_WAVE}, {hi}")
    A(f"s_cbranch_scc1 {lab}")
    A(f"s_add_u32 s{TMP0}, s{S_ROT}, s{S_WAVE}")
    A(f"s_and_b32 s{TMP0}, s{TMP0}, 7")
    A(f"s_lshl_b32 s{TMP1}, s{TMP0}, 17")
    A(f"s_lshl_b32 s{TMP0}, s{TMP0}, 7")
    A("s_mov_b32 exec_hi, 0")
    A(f"buffer_load_dword v2, v{VPFW}, s[24:27], s{TMP1} offen")
    A("s_mov_b32 exec_hi, 1")
    A(f"buffer_load_dword v2, v{VPFX}, s[20:23], s{TMP0} offen{XNT}")
    A("s_mov_b32 exec_hi, -1")
    A.label(lab)
VPFX, VPFW = 17, 31

def dma_stage(A, Q, c, mh, sel=None):
    base = R[c % 3]
    if sel is not None:
        chunk_regs(A, c)
        A(f"s_add_u32 s{TMP2}, s{TMP1}, 1024")
        if sel[0] == 0:
            A(f"s_cmp_eq_u32 s{S_WAVE}, 7")
            A(f"s_cbranch_scc0 L_noS_{c}")
            A(f"s_mov_b32 m0, {base + XOFF + 32*1024}")
            A("s_nop 0")
            A(f"buffer_load_dwordx4 v{VS}, s[20:23], s{TMP0} offen{XNT} lds")
            A.label(f"L_noS_{c}")
        ops = []
        for part in range(2):
            ops.append((f"s_add_u32 m0, s{S_M0W}, {base + part*8192}", f"buffer_load_dwordx4 v{VW}, s[24:27], s{TMP1+part} offen lds"))
        for q in range(4):
            ops.append((f"s_add_u32 m0, s{S_M0X}, {base + q*1024}", f"buffer_load_dwordx4 v{VX+q}, s[20:23], s{TMP0} offen{XNT} lds"))
        for m, l in ops[sel[0]:sel[1]]:
            A(m); A("s_nop 0"); A(l)
        Q.add(f"st{c}", sel[1] - sel[0])
        return
    pf_touch(A, c, mh)
    chunk_regs(A, c)
    A(f"s_add_u32 s{TMP2}, s{TMP1}, 1024")
    if mh != 0:
        A(f"s_cmp_eq_u32 s{S_WAVE}, 7")
        A(f"s_cbranch_scc0 L_noS_{c}")
        A(f"s_mov_b32 m0, {base + XOFF + 32*1024}")
        A("s_nop 0")
        A(f"buffer_load_dwordx4 v{VS}, s[20:23], s{TMP0} offen{XNT} lds")
        A.label(f"L_noS_{c}")
    ops = []
    for part in range(2):
        ops.append((f"s_add_u32 m0, s{S_M0W}, {base + part*8192}", f"buffer_load_dwordx4 v{VW}, s[24:27], s{TMP1+part} offen lds"))
    for q in range(4):
        ops.append((f"s_add_u32 m0, s{S_M0X}, {base + q*1024}", f"buffer_load_dwordx4 v{VX+q}, s[20:23], s{TMP0} offen{XNT} lds"))
    if mh == 1: ops = ops[2:] + ops[:2]
    for m, l in ops:
        A(m); A("s_nop 0"); A(l)
    Q.add(f"st{c}", 6)

def w2_unit(h, k, sa=90):
    g0 = [f"s_add_u32 s{sa}, s{S_NT}, {k}", f"s_and_b32 s{sa}, s{sa}, 7", f"s_lshl_b32 s{sa}, s{sa}, 16", f"s_add_u32 s{sa+1}, s{sa}, 128"]
    out = []
    for part in range(2):
        g = (g0 if part == 0 else []) + [f"s_add_u32 m0, s{S_M0X}, {UPOS(h, k) + part*4096}", "s_nop 0",
             f"buffer_load_dwordx4 v{VW2 + (VW2B - VW2) * h}, s[40:43], s{sa+part} offen lds"]
        out.append("\n    ".join(g))
    return out

def prologue(A, Q):
    A("s_cmp_ge_u32 s2, 256")
    A("s_cbranch_scc1 L_end")
    stamp(A, 0)
    if STAMPS or DIAG: A("s_memrealtime s[98:99]")
    A("s_load_dwordx8 s[4:11], s[0:1], 0")
    A("s_load_dwordx4 s[12:15], s[0:1], 32")
    A("s_load_dwordx2 s[16:17], s[0:1], 48")
    if CTOUCH:
        A("s_getpc_b64 s[18:19]")
        A.label("L_pc")
        A("v_lshlrev_b32 v5, 6, v0")
        A("v_and_b32 v6, 1, v0")
        A("v_lshl_or_b32 v6, v6, 20, v5")
        A("v_cmp_gt_u32 vcc, L_code_end-L_pc, v6")
        A("s_and_saveexec_b64 s[90:91], vcc")
        A("s_cbranch_execz L_noct")
        A("global_load_dword v2, v5, s[18:19]")
        A.label("L_noct")
        A("s_mov_b64 exec, -1")
    A("v_lshrrev_b32 v7, 6, v0")
    A("v_and_b32 v1, 63, v0")
    A(f"v_readfirstlane_b32 s{S_WAVE}, v7")
    A(f"s_and_b32 s{S_ROT}, s2, 7")
    A(f"s_lshr_b32 s{TMP1}, s2, 3")
    A(f"s_lshr_b32 s{S_M3}, s{TMP1}, 3")
    A(f"s_lshl_b32 s{S_MT}, s{S_ROT}, 2")
    A(f"s_add_u32 s{S_MT}, s{S_MT}, s{S_M3}")
    A(f"s_and_b32 s{S_NT}, s{TMP1}, 7")
    if ROT.startswith("xor"):
        A(f"s_add_u32 s{S_CH}, s{S_NT}, s{S_M3}")
        A(f"s_and_b32 s{S_CH}, s{S_CH}, {ROT[3:]}")
    if ROT == "mn":
        A(f"s_lshl_b32 s{S_ROT}, s{S_M3}, 1")
        A(f"s_add_u32 s{S_ROT}, s{S_ROT}, s{S_NT}")
    if ROT == "quarterm":
        A(f"s_and_b32 s{S_ROT}, s{S_NT}, 4")
        A(f"s_add_u32 s{S_ROT}, s{S_ROT}, s{S_M3}")
    if ROT == "half":
        A(f"s_and_b32 s{S_ROT}, s{S_NT}, 6")
    if ROT == "halfm2":
        A(f"s_and_b32 s{S_ROT}, s{S_NT}, 6")
        A(f"s_lshl_b32 s{TMP0}, s{S_M3}, 1")
        A(f"s_add_u32 s{S_ROT}, s{S_ROT}, s{TMP0}")
    if ROT == "halfmx":
        A(f"s_and_b32 s{TMP0}, s{S_NT}, 6")
        A(f"s_add_u32 s{S_ROT}, s{S_ROT}, s{TMP0}")
        A(f"s_add_u32 s{S_ROT}, s{S_ROT}, s{S_M3}")
    if ROT == "halfm":
        A(f"s_and_b32 s{S_ROT}, s{S_NT}, 6")
        A(f"s_add_u32 s{S_ROT}, s{S_ROT}, s{S_M3}")
    A(f"s_and_b32 s{S_T0}, s{S_MT}, 15")
    A(f"s_mul_i32 s{S_T0}, s{S_T0}, 250")
    A(f"s_sub_i32 s{S_T0}, s{S_T0}, 7")
    A(f"s_lshl_b32 s{S_M0W}, s{S_WAVE}, 10")
    A(f"s_lshl_b32 s{S_M0X}, s{S_WAVE}, 12")
    A(f"s_add_u32 s{S_M0X}, s{S_M0X}, {XOFF}")
    A("v_lshrrev_b32 v5, 3, v1")
    A("v_and_b32 v6, 7, v1")
    A("v_lshrrev_b32 v21, 1, v5")
    A("v_and_b32 v22, 1, v21")
    A("v_lshlrev_b32 v22, 2, v22")
    A(f"s_and_b32 s{TMP0}, s{S_WAVE}, 1")
    A(f"s_lshl_b32 s{TMP0}, s{TMP0}, 1")
    A(f"v_or_b32 v22, s{TMP0}, v22")
    A("v_xor_b32 v22, v22, v6")
    A("v_lshlrev_b32 v22, 4, v22")
    A(f"v_lshl_add_u32 v{VW}, v5, 11, v22")
    A(f"v_lshl_add_u32 v{VW2}, v5, 10, v22")
    A(f"s_lshl_b32 s{TMP0}, s{S_WAVE}, 14")
    A(f"s_lshl_b32 s{TMP1}, s{S_NT}, 7")
    A(f"s_add_u32 s{TMP0}, s{TMP0}, s{TMP1}")
    A(f"v_add_u32 v{VW}, s{TMP0}, v{VW}")
    A("v_lshrrev_b32 v7, 2, v5")
    A("v_and_b32 v8, 3, v5")
    A("v_lshl_add_u32 v7, v7, 3, v8")
    A(f"s_lshl_b32 s{TMP0}, s{S_WAVE}, 5")
    A(f"s_add_i32 s{TMP0}, s{TMP0}, s{S_T0}")
    A(f"v_add_u32 v7, s{TMP0}, v7")
    A("v_xor_b32 v8, v21, v6")
    A("v_lshlrev_b32 v8, 4, v8")
    A("v_xor_b32 v9, 64, v8")
    A("v_mov_b32 v20, 0x80000000")
    A(f"v_lshl_add_u32 v{VX}, v7, 10, v8")
    A(f"v_lshl_add_u32 v{VX+1}, v7, 10, v9")
    A(f"v_add_u32 v{VX+2}, 0x1000, v{VX}")
    A(f"v_add_u32 v{VX+3}, 0x5000, v{VX+1}")
    A(f"v_add_u32 v{VX+1}, 0x4000, v{VX+1}")
    A("v_cmp_gt_i32 vcc, 0, v7")
    A("v_cmp_gt_i32 s[90:91], -4, v7")
    A(f"s_add_i32 s{TMP0}, s{S_T0}, 256")
    A(f"v_add_u32 v21, s{TMP0}, v5")
    A(f"v_cndmask_b32 v{VX}, v{VX}, v20, vcc")
    A(f"v_cndmask_b32 v{VX+2}, v{VX+2}, v20, s[90:91]")
    A(f"v_lshl_add_u32 v{VS}, v21, 10, v8")
    if PFS:
        A(f"s_mul_i32 s{TMP0}, s{S_NT}, 33")
        A(f"s_add_i32 s{TMP0}, s{TMP0}, s{S_T0}")
        A(f"v_add_u32 v21, s{TMP0}, v1")
        A(f"v_lshlrev_b32 v{VPFX}, 10, v21")
        A("v_cmp_gt_i32 vcc, 0, v21")
        A("v_lshrrev_b32 v22, 1, v1")
        A("v_lshlrev_b32 v22, 11, v22")
        A(f"v_cndmask_b32 v{VPFX}, v{VPFX}, v20, vcc")
        A("v_and_b32 v21, 1, v1")
        A(f"v_lshl_add_u32 v22, v21, 10, v22")
        A(f"s_lshl_b32 s{TMP0}, s{S_M3}, 15")
        A(f"s_add_u32 s{TMP0}, s{TMP0}, s{TMP1}")
        A(f"v_add_u32 v{VPFW}, s{TMP0}, v22")
    A(f"s_lshr_b32 s{TMP0}, s{S_MT}, 4")
    A(f"s_mul_i32 s{TMP0}, s{TMP0}, 4096000")
    A("s_mov_b32 s22, 4096000"); A("s_mov_b32 s23, 0x20000")
    A("s_mov_b32 s26, 1048576"); A("s_mov_b32 s27, 0x20000")
    A("s_waitcnt lgkmcnt(0)")
    A(f"s_add_u32 s20, s4, s{TMP0}"); A("s_addc_u32 s21, s5, 0")
    A("s_mov_b32 s24, s6"); A("s_mov_b32 s25, s7")
    stamp(A, 1)
    dma_stage(A, Q, 0, None)
    if PST: stamp(A, 3, True)
    A("s_mov_b32 s28, s8"); A("s_mov_b32 s29, s9"); A("s_mov_b32 s30, 15360"); A("s_mov_b32 s31, 0x20000")
    A("v_lshrrev_b32 v21, 3, v0")
    A("v_subrev_u32 v22, 7, v21")
    A("v_lshlrev_b32 v23, 10, v22")
    A("v_lshl_add_u32 v23, v6, 4, v23")
    A(f"s_lshl_b32 s{TMP3}, s{S_NT}, 7")
    A(f"v_add_u32 v23, s{TMP3}, v23")
    A("v_cmp_gt_i32 vcc, 0, v22")
    A("v_mul_u32_u24 v16, 144, v21")
    A("v_lshl_add_u32 v16, v6, 4, v16")
    A("v_cndmask_b32 v23, v23, v20, vcc")
    A(f"v_add_u32 v16, {DW_OFF}, v16")
    A("s_barrier")
    A(f"s_cmp_lt_u32 s{S_WAVE}, 4")
    A("s_cbranch_scc0 L_nodw")
    A(f"buffer_load_dwordx4 {vr(DUM)}, v23, s[28:31], 0 offen")
    A.label("L_nodw")
    dma_stage(A, Q, 1, None, (0, R1PRE))
    if PST: stamp(A, 4, True)
    A("s_mov_b32 s36, s16"); A("s_mov_b32 s37, s17"); A("s_mov_b32 s38, 0x1000000"); A("s_mov_b32 s39, 0x20000")
    A("s_mov_b32 s40, s10"); A("s_mov_b32 s41, s11"); A("s_mov_b32 s42, 524288"); A("s_mov_b32 s43, 0x20000")
    A(f"s_mul_i32 s{TMP0}, s{S_MT}, 256000")
    A(f"s_add_u32 s32, s12, s{TMP0}"); A("s_addc_u32 s33, s13, 0"); A("s_mov_b32 s34, 256000"); A("s_mov_b32 s35, 0x20000")
    A(f"s_and_b32 s{S_NQ}, s{S_WAVE}, 3")
    A("v_and_b32 v3, 15, v1")
    A("v_lshrrev_b32 v4, 4, v1")
    if ROT == "hyb":
        A(f"s_lshl_b32 s{TMP0}, s{S_M3}, 1")
        A(f"s_add_u32 s{TMP0}, s{TMP0}, s{S_NT}")
        for _ in range(2):
            A(f"s_sub_u32 s{TMP1}, s{TMP0}, 6")
            A(f"s_cmp_ge_u32 s{TMP0}, 6")
            A(f"s_cselect_b32 s{TMP0}, s{TMP1}, s{TMP0}")
        for k in range(6):
            A(f"s_add_u32 s{TMP1}, s{TMP0}, {k}")
            A(f"s_sub_u32 s{TMP2}, s{TMP1}, 6")
            A(f"s_cmp_ge_u32 s{TMP1}, 6")
            A(f"s_cselect_b32 s{TMP1}, s{TMP2}, s{TMP1}")
            A(f"s_add_u32 s{TMP1}, s{TMP1}, s{S_ROT}")
            A(f"s_add_u32 s{TMP1}, s{TMP1}, 2")
            A(f"s_and_b32 s{S_CH + k}, s{TMP1}, 7")
    A(f"s_lshl_b32 s{TMP0}, s{S_MT}, 3")
    A(f"v_mov_b32 v{VDBG}, s{TMP0}")
    A(f"s_getreg_b32 s{S_XCC}, hwreg(HW_REG_XCC_ID, 0, 4)")
    A(f"s_and_b32 s{S_XCC}, s{S_XCC}, 7")
    A(f"s_lshl_b32 s{S_XCC}, s{S_XCC}, 2")
    A(f"s_cmp_eq_u32 s{S_WAVE}, 5")
    A("s_cbranch_scc0 L_nohello")
    A(f"s_lshl_b32 s{TMP0}, 1, s{S_XCC}")
    A(f"v_mov_b32 v21, s{TMP0}")
    A("s_mov_b64 exec, 1")
    A(f"global_atomic_add v{VDBG}, v21, s[14:15] offset:4 sc1")
    A(f"s_cmp_eq_u32 s{S_NT}, 0")
    A("s_cbranch_scc0 L_noep")
    A(f"s_memrealtime s[{S_EP}:{S_EP+1}]")
    A("s_waitcnt lgkmcnt(0)")
    A(f"s_lshr_b64 s[{S_EP}:{S_EP+1}], s[{S_EP}:{S_EP+1}], 6")
    A(f"s_or_b32 s{S_EP}, s{S_EP}, 0x80000000")
    A(f"v_mov_b32 v21, s{S_EP}")
    A(f"global_store_dword v{VDBG}, v21, s[14:15] sc1")
    A.label("L_noep")
    A("s_mov_b64 exec, -1")
    A.label("L_nohello")
    A(f"s_lshl_b32 s{TMP0}, s{S_NQ}, 13")
    A(f"s_and_b32 s{TMP1}, s{S_NT}, 3")
    A(f"s_lshl_b32 s{TMP1}, s{TMP1}, 8")
    A(f"s_add_u32 s{TMP0}, s{TMP0}, s{TMP1}")
    A(f"v_add_u32 v{VW2}, s{TMP0}, v{VW2}")
    A(f"v_add_u32 v{VW2B}, 0x8000, v{VW2}")
    A(f"s_mov_b32 s{S_SEL0}, 0x05040100")
    A(f"s_mov_b32 s{S_SEL1}, 0x07060302")
    A(f"s_mov_b32 s{S_C}, 0x{NEG_LOG2E:x}")
    A(f"s_mov_b32 s{S_C+1}, 0x{NEG_LOG2E:x}")
    A("v_lshrrev_b32 v5, 3, v3")
    A("v_and_b32 v6, 7, v3")
    A("v_lshlrev_b32 v5, 10, v5")
    A("v_lshl_add_u32 v5, v6, 7, v5")
    A("v_lshrrev_b32 v6, 1, v3")
    A("v_xor_b32 v6, v6, v4")
    A("v_lshl_add_u32 v7, v6, 4, v5")
    A("v_xor_b32 v8, 64, v7")
    for sl in range(3):
        A(f"v_add_u32 v{VXA+sl*2}, {R[sl] + XOFF}, v7")
        A(f"v_add_u32 v{VXA+sl*2+1}, {R[sl] + XOFF}, v8")
    A("v_lshrrev_b32 v5, 2, v3")
    A("v_and_b32 v6, 3, v3")
    A("v_lshrrev_b32 v7, 1, v6")
    A(f"s_lshl_b32 s{TMP0}, s{S_NQ}, 1")
    A(f"v_or_b32 v7, s{TMP0}, v7")
    A("v_lshrrev_b32 v8, 1, v5")
    A("v_lshlrev_b32 v8, 2, v8")
    A("v_and_b32 v9, 1, v4")
    A("v_lshl_or_b32 v8, v9, 1, v8")
    A("v_xor_b32 v7, v7, v8")
    A("v_lshlrev_b32 v7, 4, v7")
    A("v_lshl_add_u32 v7, v5, 7, v7")
    A("v_lshl_add_u32 v7, v4, 10, v7")
    A("v_and_b32 v6, 1, v6")
    A("v_lshl_add_u32 v7, v6, 3, v7")
    for sl in range(3):
        A(f"v_add_u32 v{VWA+sl}, {R[sl]}, v7")
    A("v_lshlrev_b32 v5, 3, v4")
    A("v_sub_u32 v5, v5, v3")
    A("v_add_u32 v5, 7, v5")
    A("v_cmp_lt_u32 vcc, 21, v5")
    A("v_mov_b32 v6, 22")
    A(f"s_lshl_b32 s{TMP0}, s{S_WAVE}, 4")
    A("v_cndmask_b32 v5, v5, v6, vcc")
    A("v_mul_u32_u24 v5, 144, v5")
    A(f"s_add_u32 s{TMP0}, s{TMP0}, {DW_OFF}")
    A(f"v_add_u32 v9, s{TMP0}, v5")
    A(f"s_cmp_ge_u32 s{S_WAVE}, 4")
    A("s_cbranch_scc1 L_path1")

def path(A, mh, Q0):
    NT = 9 if mh == 0 else 8
    Q = VQ(); Q.q = list(Q0.q)
    if PST: stamp(A, 5, True)
    A(f"s_waitcnt vmcnt({Q.after('st0')})")
    if PST: stamp(A, 6, True)
    if mh == 0:
        A(f"ds_write_b128 v16, {vr(DUM)}")
        A(f"v_mov_b32 v5, {CNT_OFF}")
        A("v_mov_b32 v6, 0")
        A("v_mov_b32 v7, 0")
        A("ds_write_b64 v5, v[6:7]")
        A("s_waitcnt lgkmcnt(0)")
    A("s_barrier")
    stamp(A, 2)
    def reads(j):
        c, ks = j >> 1, j & 1
        sl, buf = c % 3, j & 1
        Rr = []
        for part in range(2):
            for h in range(2):
                d = WF + buf * 8 + part * 4 + h * 2
                Rr.append(f"ds_read_b64_tr_b16 v[{d}:{d+1}], v{VWA+sl} offset:{part*8192 + ks*4096 + h*512}")
        for tt in range(NT):
            tile = (mh * 8 + tt) if tt < 8 else 16
            d = XF + buf * 36 + tt * 4
            Rr.append(f"ds_read_b128 {vr(d)}, v{VXA+sl*2+ks} offset:{tile*2048}")
        return Rr
    def tail_loads():
        A(f"global_load_dwordx2 v[30:31], v{VDBG}, s[14:15] sc1")
        Q.add("misc", 1)
        if mh == 0:
            A(f"s_lshl_b32 s{S_M0X}, s{S_NQ}, 10")
            for k in range(2):
                for g in w2_unit(0, k): A(g)
            Q.add("w2", 4)
            A(f"s_cmp_lt_u32 s{S_NQ}, 2")
            A("s_cbranch_scc0 L_nopf_W2all")
            A(f"s_lshr_b32 s{TMP0}, s2, 3")
            A(f"s_lshl_b32 s{TMP0}, s{TMP0}, 1")
            A(f"s_add_u32 s{TMP0}, s{TMP0}, s{S_NQ}")
            A(f"s_lshl_b32 s{TMP0}, s{TMP0}, 13")
            A("v_lshlrev_b32 v5, 7, v1")
            A(f"buffer_load_dword v2, v5, s[40:43], s{TMP0} offen")
            A.label("L_nopf_W2all")
            if PRE:
                A(f"s_lshl_b32 s{TMP2}, s{S_NT}, 3")
                A(f"s_add_u32 s{TMP2}, s{TMP2}, s{S_WAVE}")
                A(f"s_lshl_b32 s{TMP2}, s{TMP2}, 9")
                A(f"s_lshl_b32 s{TMP3}, s{S_MT}, 18")
                A(f"s_add_u32 s{TMP2}, s{TMP2}, s{TMP3}")
                A("v_lshrrev_b32 v5, 2, v1")
                A("v_and_b32 v5, 7, v5")
                A("v_lshlrev_b32 v5, 15, v5")
                A("v_and_b32 v6, 3, v1")
                A("v_lshl_add_u32 v5, v6, 7, v5")
                A("v_lshrrev_b32 v6, 5, v1")
                A("v_lshl_add_u32 v5, v6, 11, v5")
                A(f"buffer_load_dword v2, v5, s[36:39], s{TMP2} offen{PTF}")
                A(f"s_mov_b64 exec, 15")
                A(f"s_lshl_b32 s{TMP2}, s{S_MT}, 9")
                A(f"s_add_u32 s{TMP2}, s{TMP2}, {FLAG_OFF}")
                A(f"buffer_load_dword v2, v5, s[36:39], s{TMP2} offen{PTF}")
                A(f"s_mov_b64 exec, -1")
                Q.add("misc", 2)
    for r in reads(0): A(r)
    if R1PRE < 6: dma_stage(A, Q, 1, mh, (R1PRE, 6))
    if mh == 1 and not DLATE: dma_stage(A, Q, 2, mh)
    extra = []
    for j in range(16):
        buf = j & 1
        cn = (j + 1) >> 1
        boundary = (j & 1) == 1 and j < 15 and not (mh == 0 and j == 13)
        if boundary:
            A(f"s_waitcnt vmcnt({Q.after(f'st{cn}')}) lgkmcnt(0)")
            A("s_barrier")
            if S1ST: stamp(A, 2 + cn, True)
            if cn == 6:
                if mh == 1:
                    A("s_setprio 3")
                    tail_loads()
                else:
                    tail_loads()
                    A(f"s_waitcnt vmcnt({Q.after('st7')})")
                    A("s_barrier")
                    if S1ST: stamp(A, 9, True)
                    A("s_setprio 1")
        stg = None
        if mh == 0 and (j & 1) == 1 and j < 15: stg = cn + 2
        if mh == 1 and (j & 1) == 0 and j >= 2 and j != 10: stg = (j >> 1) + 2
        if mh == 1 and j == 9: stg = 7
        if DLATE: stg = None
        if DEARLY and mh == 1:
            stg = cn + 2 if ((j & 1) == 1 and j < 15) else None
        if stg is not None and stg < 8: dma_stage(A, Q, stg, mh)
        Rn = reads(j + 1) if j < 15 else []
        if j == 2:
            Rn = [f"ds_read_b128 {vr(RRT + 4*e)}, v9 offset:{e*144}" for e in range(8)] + Rn
        if j == 3:
            extra = [f"v_perm_b32 v{TT + 4*jj + d}, v{RRT + 4*(2*d+1) + (jj>>1)}, v{RRT + 4*(2*d) + (jj>>1)}, s{S_SEL0 + (jj&1)}" for jj in range(8) for d in range(4)]
        issued = 0
        for tt in range(NT):
            for part in range(2):
                if part == 0 and not boundary:
                    A(f"s_waitcnt lgkmcnt({min(15, (NT - 1 - tt) + issued)})")
                a = ACC + (tt * 2 + part) * 4
                cin = "0" if j == 0 else vr(a)
                A(f"v_mfma_f32_16x16x32_bf16 {vr(a)}, {vr(XF + buf*36 + tt*4)}, {vr(WF + buf*8 + part*4)}, {cin}")
                k = 2 if (j == 2 and issued < 10) else 1
                for _ in range(k):
                    if issued < len(Rn):
                        A(Rn[issued]); issued += 1
                    elif extra:
                        A(extra.pop(0))
        assert issued == len(Rn)
        if j == 0 and mh == 0 and not DLATE: dma_stage(A, Q, 2, mh)
        if DLATE and (j & 1) == 0 and (j >> 1) + 2 < 8: dma_stage(A, Q, (j >> 1) + 2, mh)
    assert not extra
    A("s_setprio 0")
    stamp(A, 3)
    pk = (mh == 0)
    A(f"s_lshl_b32 s{TMP0}, s{S_NQ}, 4")
    A(f"v_add_u32 v5, s{TMP0}, v3")
    A(f"v_mul_u32_u24 v5, {HT_STRIDE}, v5")
    A(f"v_add_u32 v5, {HT_OFF}, v5")
    A("v_lshl_add_u32 v6, v4, 4, v5")
    A("v_lshl_add_u32 v7, v4, 3, v5")
    A("s_nop 1")
    T0 = XF
    for p in range(4):
        a = [ACC + ((2*p + o) * 2 + 0) * 4 + r for o in range(2) for r in range(4)]
        b = [ACC + ((2*p + o) * 2 + 1) * 4 + r for o in range(2) for r in range(4)]
        O = T0 + 8 + 4 * (p & 1)
        for op in glu(pk or p >= GLUB, a, b, [T0 + i for i in range(8)], [O + i for i in range(4)]): A(op)
        A(f"ds_write_b128 v6, {vr(O)} offset:{(4*mh + p) * 64}")
    if mh == 0:
        a = [ACC + 16 * 4 + r for r in range(4)]
        b = [ACC + 17 * 4 + r for r in range(4)]
        O = T0 + 16
        A("v_cmp_gt_u32 vcc, 2, v4")
        for op in glu(pk, a, b, [T0 + i for i in range(4)], [O, O + 1]): A(op)
        A(f"v_cndmask_b32 v{O}, 0, v{O}, vcc")
        A(f"v_cndmask_b32 v{O+1}, 0, v{O+1}, vcc")
        A(f"ds_write_b64 v7, v[{O}:{O+1}] offset:512")
        A(f"s_waitcnt vmcnt({Q.after('w2')})")

def epilogue1(A, mh):
    A(f"s_mul_i32 s{TMP0}, s{S_WAVE}, {8*HT_STRIDE}")
    A(f"s_add_u32 s{TMP0}, s{TMP0}, {HT_OFF}")
    A("v_lshlrev_b32 v5, 5, v3")
    A("v_lshl_add_u32 v5, v4, 4, v5")
    A(f"v_add_u32 v5, s{TMP0}, v5")
    A(f"s_lshl_b32 s{TMP2}, s{S_NT}, 3")
    A(f"s_add_u32 s{TMP2}, s{TMP2}, s{S_WAVE}")
    A(f"s_lshl_b32 s{TMP1}, s{TMP2}, 3")
    A(f"v_mov_b32 v11, s{TMP1}")
    A(f"s_lshl_b32 s{TMP2}, s{TMP2}, 9")
    A(f"s_lshl_b32 s{TMP3}, s{S_MT}, 18")
    A(f"s_add_u32 s{TMP2}, s{TMP2}, s{TMP3}")
    A("v_lshlrev_b32 v6, 16, v4")
    A("v_lshl_add_u32 v6, v3, 4, v6")
    A("v_add_u32 v7, 0x8000, v6")
    A(f"s_lshl_b32 s{TMP3}, s{S_MT}, 9")
    A(f"s_add_u32 s{TMP3}, s{TMP3}, {FLAG_OFF}")
    A(f"s_lshl_b32 s{S_M0X}, s{S_NQ}, 10")
    A(f"v_mov_b32 v14, {CNT_OFF}")
    A("v_mov_b32 v15, 1")
    if mh == 1:
        A("s_waitcnt vmcnt(0)")
    A("s_waitcnt lgkmcnt(0)")
    A("s_barrier")
    stamp(A, 4)
    HA, Y, T0, O0 = 32, 64, 96, 160
    for j in range(8):
        A(f"ds_read_b128 {vr(HA + 4*j)}, v5 offset:{j*HT_STRIDE}")
    if mh == 1:
        for k in range(2, 8):
            for g in w2_unit(0, k): A(g)
        for k in range(H1F):
            for g in w2_unit(1, k): A(g)
    else:
        A(f"s_setprio {APRIO}")
    for j in range(8):
        A(f"s_waitcnt lgkmcnt({7-j})")
        A(f"v_mfma_f32_16x16x32_bf16 {vr(Y + 4*j)}, {vr(HA + 4*j)}, {vr(TT + 4*j)}, 0")
    if mh == 0:
        A(f"s_waitcnt vmcnt({3 if PRE else 1})")
    A(f"v_readfirstlane_b32 s{S_EP}, v30")
    A(f"v_readfirstlane_b32 s{S_FAST}, v31")
    A(f"s_lshl_b32 s{TMP0}, 8, s{S_XCC}")
    A(f"s_cmp_eq_u32 s{S_FAST}, s{TMP0}")
    A(f"s_cselect_b32 s{S_FAST}, {1 if FAST else 0}, 0")
    A("s_nop 2")
    for half in range(2):
        y = [Y + 4*j + 2*half + rr for j in range(8) for rr in range(2)]
        t = [T0 + 16*half + i for i in range(16)]
        wr = []
        if mh == 1 and half == CPOS:
            A("s_waitcnt vmcnt(0)")
            A("s_mov_b64 exec, 1")
            A("ds_add_u32 v14, v15")
            A("s_mov_b64 exec, -1")
            wr = [g for k in range(H1F, H1E) for g in w2_unit(1, k)]
        for n_, op in enumerate(glu_pk(y, y, t)):
            A(op)
            if wr and n_ % 4 == 1: A(wr.pop(0))
        for g in wr: A(g)
        for rr in range(2):
            for i in range(4):
                A(f"v_cvt_pk_bf16_f32 v{O0 + 4*(2*half+rr) + i}, v{t[2*(2*i) + rr]}, v{t[2*(2*i+1) + rr]}")
    A(f"s_cmp_lg_u32 s{S_EP}, 0")
    A(f"s_cselect_b32 s{S_FAST}, s{S_FAST}, 0")
    A(f"s_not_b32 s{S_EP+1}, s{S_EP}")
    A(f"v_mov_b32 v16, s{S_EP}")
    A(f"v_mov_b32 v17, s{S_EP+1}")
    A(f"s_cmp_eq_u32 s{S_FAST}, 1")
    A(f"s_cbranch_scc0 L_slow{mh}")
    for r in range(4):
        A(f"buffer_store_dwordx4 {vr(O0 + 4*r)}, v{6 + (r>>1)}, s[36:39], s{TMP2} offen offset:{(r&1)*256}{SST}")
    stamp(A, 5)
    if mh == 0:
        phase2_setup(A)
    A("s_mov_b64 exec, 1")
    A("s_waitcnt vmcnt(0)")
    if DRST: stamp(A, 1)
    A(f"buffer_store_dwordx2 v[16:17], v11, s[36:39], s{S_FL} offen{FST}" if mh == 0 else f"buffer_store_dwordx2 v[16:17], v11, s[36:39], s{TMP3} offen{FST}")
    A("s_mov_b64 exec, -1")
    A.label(f"L_join{mh}")
    if mh == 1:
        for k in range(max(H1E, H1F), 6):
            for g in w2_unit(1, k): A(g)
        A("s_waitcnt vmcnt(0)")
        A("s_barrier")
        stamp(A, 6)
        for k in (6, 7):
            for g in w2_unit(1, k): A(g)
        A("s_waitcnt vmcnt(0)")
        if WBL and not WBLATE: wbl(A)
        A("s_barrier")
        if WBL and WBLATE: wbl(A)
        if STAMPS:
            A("s_waitcnt lgkmcnt(0)")
            A("s_mov_b64 exec, 1")
            A(f"s_lshl_b32 s{TMP0}, s2, 3")
            A(f"s_add_u32 s{TMP0}, s{TMP0}, s{S_WAVE}")
            A(f"s_lshl_b32 s{TMP0}, s{TMP0}, 6")
            A(f"s_add_u32 s{TMP0}, s{TMP0}, {STAMP_OFF + 0x40000}")
            A(f"v_mov_b32 v3, s{TMP0}")
            for j in range(7):
                A(f"v_mov_b32 v4, s{S_STB+2*j}"); A(f"v_mov_b32 v5, s{S_STB+2*j+1}")
                A(f"buffer_store_dwordx2 v[4:5], v3, s[36:39], 0 offen offset:{8*j}")
                A("s_nop 1")
            A(f"s_getreg_b32 s{TMP1}, hwreg(HW_REG_HW_ID)")
            A(f"v_mov_b32 v4, s{TMP1}"); A("v_mov_b32 v5, 0")
            A(f"buffer_store_dwordx2 v[4:5], v3, s[36:39], 0 offen offset:56")
        A("s_endpgm")

def wbl(A):
    A(f"s_cmp_eq_u32 s{S_WAVE}, 4")
    A("s_cbranch_scc0 L_nowb")
    A(f"s_cmp_eq_u32 s{S_NT}, 0")
    A("s_cbranch_scc0 L_nowb")
    A(f"s_cmp_eq_u32 s{S_M3}, 0")
    A("s_cbranch_scc0 L_nowb")
    A("buffer_wbl2 sc1")
    A.label("L_nowb")

def slow_path(A, mh):
    O0 = 160
    A.label(f"L_slow{mh}")
    for r in range(4):
        A(f"buffer_store_dwordx4 {vr(O0 + 4*r)}, v{6 + (r>>1)}, s[36:39], s{TMP2} offen offset:{(r&1)*256} sc1")
    A(f"s_mov_b32 s{S_SPIN}, 0")
    A.label(f"L_ep_chk{mh}")
    A(f"s_cmp_lg_u32 s{S_EP}, 0")
    A(f"s_cbranch_scc1 L_ep_ok{mh}")
    A(f"global_load_dwordx2 v[30:31], v{VDBG}, s[14:15] sc1")
    A(f"s_add_u32 s{S_SPIN}, s{S_SPIN}, 1")
    A("s_waitcnt vmcnt(0)")
    A(f"v_readfirstlane_b32 s{S_EP}, v30")
    A(f"s_cmp_lt_u32 s{S_SPIN}, 0x40000")
    A(f"s_cbranch_scc1 L_ep_chk{mh}")
    A.label(f"L_ep_ok{mh}")
    A(f"s_not_b32 s{S_EP+1}, s{S_EP}")
    A(f"v_mov_b32 v16, s{S_EP}")
    A(f"v_mov_b32 v17, s{S_EP+1}")
    A("s_mov_b64 exec, 1")
    A("s_waitcnt vmcnt(0)")
    A(f"buffer_store_dwordx2 v[16:17], v11, s[36:39], s{TMP3} offen sc1")
    A("s_mov_b64 exec, -1")
    if mh == 0:
        phase2_setup(A)
    A(f"s_branch L_join{mh}")

S_FL = 91
def phase2_setup(A):
    A(f"s_mov_b32 s{S_FL}, s{TMP3}")
    A(f"s_lshr_b32 s{TMP0}, s{S_NT}, 2")
    A(f"s_lshl_b32 s{TMP0}, s{TMP0}, 2")
    A(f"s_add_u32 s{TMP0}, s{TMP0}, s{S_WAVE}")
    A(f"s_lshl_b32 s90, s{TMP0}, 15")
    A(f"s_lshl_b32 s{TMP1}, s{S_MT}, 18")
    A(f"s_add_u32 s{TMP1}, s{TMP1}, s90")
    A("v_lshlrev_b32 v12, 4, v1")
    A(f"v_add_u32 v12, s{TMP1}, v12")
    A("v_lshrrev_b32 v5, 2, v3")
    A("v_and_b32 v8, 3, v3")
    A("v_lshrrev_b32 v9, 1, v8")
    A("v_and_b32 v10, 1, v4")
    A("v_lshl_or_b32 v9, v10, 1, v9")
    A("v_lshrrev_b32 v10, 1, v5")
    A("v_lshlrev_b32 v10, 2, v10")
    A("v_lshrrev_b32 v13, 1, v4")
    A("v_lshl_or_b32 v10, v13, 1, v10")
    A("v_xor_b32 v9, v9, v10")
    A("v_lshlrev_b32 v9, 4, v9")
    A("v_lshl_add_u32 v9, v5, 7, v9")
    A("v_lshl_add_u32 v9, v13, 10, v9")
    A("v_and_b32 v8, 1, v8")
    A("v_lshl_add_u32 v22, v8, 3, v9")
    A("v_xor_b32 v23, 64, v22")
    for wdw in (1, 2):
        A(f"v_add_u32 v{22+2*wdw}, {wdw*0x10000}, v22")
        A(f"v_add_u32 v{23+2*wdw}, {wdw*0x10000}, v23")
    for s_ in range(8):
        A(f"s_add_u32 s{TMP0}, s{S_NT}, {s_}")
        A(f"s_and_b32 s{TMP0}, s{TMP0}, 7")
        A(f"s_lshl_b32 s{20+s_}, s{TMP0}, 12")
    A(f"s_lshl_b32 s{TMP0}, s{S_NT}, 3")
    A(f"v_add_u32 v13, s{TMP0}, v1")
    A("v_and_b32 v13, 63, v13")
    A("v_lshlrev_b32 v13, 3, v13")
    A(f"s_mov_b32 s{S_SPIN}, 0")

def phase2(A):
    SF, ACC2, WF2 = 128, 64, 32
    def dec(i): return i >> 4, (i >> 1) & 7, i & 1
    TAILN = int(opt("tailn", "8"))
    seq = [(j, ct) for j in range(32 - TAILN) for ct in range(4)]
    seq += [(j, ct) for j in range(32 - TAILN, 32) for ct in (0, 1)] + [(j, ct) for j in range(32 - TAILN, 32) for ct in (2, 3)]
    def wreads(n):
        i, ct = seq[n]
        h, k, e = dec(i)
        part, ctp = ct >> 1, ct & 1
        Rr = []
        for hh in range(2):
            off = UPOS(h, k) + part * 4096 + e * 2048 + hh * 512
            base = 22 + ctp + 2 * (off >> 16)
            d = WF2 + (n % 8) * 4 + hh * 2
            Rr.append(f"ds_read_b64_tr_b16 v[{d}:{d+1}], v{base} offset:{off & 0xffff}")
        return Rr
    def reads(i): return [r for n in range(4*i, 4*i+4) for r in wreads(n)]
    def sload(i):
        h, k, e = dec(i)
        return f"buffer_load_dwordx4 {vr(SF + i*4)}, v12, s[36:39], s{20 + k} offen offset:{(2*h+e)*1024}{SLD}"
    S_MK = 28
    A("s_mov_b64 exec, 1")
    A("ds_add_u32 v14, v15 offset:4")
    A("s_mov_b64 exec, -1")
    for r in reads(0): A(r)
    A.label("L_cntA")
    A("ds_read_b32 v5, v14 offset:4")
    A("s_waitcnt lgkmcnt(0)")
    A(f"v_readfirstlane_b32 s{TMP0}, v5")
    A(f"s_cmp_lt_u32 s{TMP0}, 4")
    A("s_cbranch_scc1 L_cntA")
    A(sload(0)); A(sload(1))
    A(f"buffer_load_dwordx2 v[18:19], v13, s[36:39], s{S_FL} offen{PLD}")
    stamp(A, 6)
    spins = []
    def check(u):
        h, k = u >> 3, u & 7
        reg = S_MK + (k >> 2)
        A(f"s_bfe_u32 s{TMP0}, s{reg}, {((k & 3) * 8 + 4 * h) | (4 << 16)}")
        A(f"s_cmp_eq_u32 s{TMP0}, 15")
        A(f"s_cbranch_scc0 L_spin{u}")
        A.label(f"L_back{u}")
        spins.append(u)
    nissued = [2]
    def issue_upto(n):
        while nissued[0] < min(32, n):
            jj = nissued[0]
            if jj % 2 == 0: check(jj // 2)
            A(sload(jj)); nissued[0] += 1
    stamp(A, 7)
    def epi_setup():
        return ["v_and_b32 v5, 31, v1", "v_lshrrev_b32 v6, 5, v1", "v_and_b32 v7, 7, v5", "v_xor_b32 v7, v7, v6", "v_lshlrev_b32 v7, 4, v7",
                "v_lshl_add_u32 v7, v5, 7, v7", f"s_lshl_b32 s{TMP1}, s{S_WAVE}, 13", f"v_add_u32 v7, s{TMP1}, v7",
                "v_xor_b32 v8, 32, v7", "v_xor_b32 v9, 64, v7", "v_xor_b32 v10, 96, v7",
                "v_lshrrev_b32 v5, 3, v1", "v_and_b32 v6, 7, v1", "v_xor_b32 v11, v5, v6", "v_lshlrev_b32 v11, 4, v11",
                "v_lshl_add_u32 v11, v5, 7, v11", f"v_add_u32 v11, s{TMP1}, v11", "v_lshlrev_b32 v6, 4, v6", "v_lshl_add_u32 v6, v5, 10, v6",
                f"s_and_b32 s{TMP1}, s{S_NT}, 3", f"s_lshl_b32 s{TMP1}, s{TMP1}, 8", f"s_add_u32 s90, s90, s{TMP1}"]
    def pack(half):
        ops = []
        for ctp in range(2):
            for qq in range(2):
                a = ACC2 + (half * 2 + ctp) * 16 + qq * 8
                O = SF + 16 * half + 4 * (ctp * 2 + qq)
                for i in range(4): ops.append(f"v_cvt_pk_bf16_f32 v{O+i}, v{a+2*i}, v{a+2*i+1}")
        for ctp in range(2):
            for qq in range(2):
                O = SF + 16 * half + 4 * (ctp * 2 + qq)
                ops.append(f"v_permlane32_swap_b32 v{O}, v{O+2}")
                ops.append(f"v_permlane32_swap_b32 v{O+1}, v{O+3}")
        for ctp in range(2):
            for qq in range(2):
                O = SF + 16 * half + 4 * (ctp * 2 + qq)
                ops.append(f"ds_write_b128 v{7 + 2*ctp + qq}, {vr(O)} offset:{R[0] + half*4096}")
        return ops
    extra = []
    N = len(seq)
    n_h0 = max(n for n in range(N) if seq[n][1] < 2)
    n_bf = min(n for n in range(N) if seq[n][0] >= 16) - 4
    n_bw = min(n for n in range(N) if seq[n][0] >= 28) - 4
    SA2 = int(opt("sa2", "8"))
    for n, (j, ct) in enumerate(seq):
        first_of_j = all(seq[m][0] != j for m in range(n))
        w = f"lgkmcnt({min(6, 2 * (N - 1 - n))})"
        if first_of_j: w = f"vmcnt({nissued[0] - 1 - j + (1 if j == 0 else 0)}) " + w
        A(f"s_waitcnt {w}")
        if n == 12:
            A.label("L_cnt")
            A("ds_read_b32 v5, v14")
            A("s_waitcnt lgkmcnt(0)")
            A(f"v_readfirstlane_b32 s{TMP0}, v5")
            A(f"s_cmp_lt_u32 s{TMP0}, 4")
            A("s_cbranch_scc1 L_cnt")
        if n in (n_bf, n_bw):
            A("s_barrier")
        a = ACC2 + ct * 16
        cin = "0" if j == 0 else vr(a, 16)
        A(f"v_mfma_f32_32x32x16_bf16 {vr(a,16)}, {vr(WF2 + (n % 8)*4)}, {vr(SF + j*4)}, {cin}")
        if n + 4 < N:
            for r in wreads(n + 4): A(r)
        if n == 0:
            A("s_waitcnt vmcnt(0)")
            A(f"v_cmp_eq_u64 s[{S_MK}:{S_MK+1}], s[{S_EP}:{S_EP+1}], v[18:19]")
        issue_upto(min(32, j + 1 + (SAHEAD if j < 12 else SA2), nissued[0] + 2))
        if n == 4 * 12: extra = epi_setup()
        if n == n_h0 + 2: extra = pack(0)
        for _ in range(2 if n <= n_h0 else 5):
            if extra: A(extra.pop(0))
        if n == 19: stamp(A, 8)
    for op in extra: A(op)
    stamp(A, 9)
    RB = 32
    A("s_waitcnt lgkmcnt(0)")
    for i in range(4): A(f"ds_read_b128 {vr(RB + 4*i)}, v11 offset:{R[0] + i*1024}")
    A("s_nop 5")
    p1 = pack(1)
    for op in p1[:16]: A(op)
    for i in range(4):
        A(f"s_waitcnt lgkmcnt({3-i})")
        A(f"s_add_u32 s{TMP0}, s90, {i*8192}")
        A(f"buffer_store_dwordx4 {vr(RB + 4*i)}, v6, s[32:35], s{TMP0} offen{OST}")
    for op in p1[16:]: A(op)
    A("s_waitcnt lgkmcnt(0)")
    for i in range(4): A(f"ds_read_b128 {vr(RB + 16 + 4*i)}, v11 offset:{R[0] + 4096 + i*1024}")
    for i in range(4):
        A(f"s_waitcnt lgkmcnt({3-i})")
        A(f"s_add_u32 s{TMP0}, s90, {i*8192 + 128}")
        A(f"buffer_store_dwordx4 {vr(RB + 16 + 4*i)}, v6, s[32:35], s{TMP0} offen{OST}")
    if STAMPS:
        ns = 12
        A("s_waitcnt vmcnt(0)")
        stamp(A, ns - 2)
        A(f"s_mov_b64 s[{S_STB+2*(ns-1)}:{S_STB+2*(ns-1)+1}], s[98:99]")
        if P2T:
            A(f"s_add_u32 s{S_STB+2*(ns-1)}, s{S_STB}, s{S_SPIN}")
            A(f"s_addc_u32 s{S_STB+2*(ns-1)+1}, s{S_STB+1}, 0")
        A(f"s_memrealtime s[{S_EP}:{S_EP+1}]")
        A("s_waitcnt lgkmcnt(0)")
        A("s_mov_b64 exec, 1")
        A(f"s_lshl_b32 s{TMP0}, s2, 3")
        A(f"s_add_u32 s{TMP0}, s{TMP0}, s{S_WAVE}")
        A(f"s_lshl_b32 s{TMP0}, s{TMP0}, 6")
        A(f"s_add_u32 s{TMP0}, s{TMP0}, {STAMP_OFF + 0x40000}")
        A(f"v_mov_b32 v3, s{TMP0}")
        for j in range(7):
            A(f"v_mov_b32 v4, s{S_STB+2*j}"); A(f"v_mov_b32 v5, s{S_STB+2*j+1}")
            A(f"buffer_store_dwordx2 v[4:5], v3, s[36:39], 0 offen offset:{8*j}")
            A("s_nop 1")
        A(f"s_getreg_b32 s{TMP1}, hwreg(HW_REG_HW_ID)")
        A(f"v_mov_b32 v4, s{TMP1}"); A("v_mov_b32 v5, 0")
        A(f"buffer_store_dwordx2 v[4:5], v3, s[36:39], 0 offen offset:56")
        A(f"s_cmp_eq_u32 s{S_WAVE}, 0")
        A("s_cbranch_scc0 L_end")
        A(f"s_mul_i32 s{TMP0}, s2, {8*(ns+1)}")
        A(f"s_add_u32 s{TMP0}, s{TMP0}, {STAMP_OFF}")
        A(f"v_mov_b32 v3, s{TMP0}")
        for j in range(ns):
            A(f"v_mov_b32 v4, s{S_STB+2*j}"); A(f"v_mov_b32 v5, s{S_STB+1+2*j}")
            A(f"buffer_store_dwordx2 v[4:5], v3, s[36:39], 0 offen offset:{8*j}")
            A("s_nop 1")
        A(f"v_mov_b32 v4, s{S_EP}"); A(f"v_mov_b32 v5, s{S_EP+1}")
        A(f"buffer_store_dwordx2 v[4:5], v3, s[36:39], 0 offen offset:{8*ns}")
    if DIAG:
        a, b, wg = [int(v) for v in DIAG.split(",")]
        A("s_waitcnt vmcnt(0)")
        stamp(A, 10)
        A("s_waitcnt lgkmcnt(0)")
        A(f"s_sub_u32 s{TMP0}, s{S_STB+2*b}, s{S_STB+2*a}")
        if wg >= 0:
            A(f"s_cmp_eq_u32 s2, {wg}")
            A(f"s_cselect_b32 s{TMP0}, s{TMP0}, 0")
        A(f"s_lshr_b32 s{TMP0}, s{TMP0}, 1")
        A(f"s_add_u32 s{TMP0}, s{TMP0}, 3000")
        A.label("L_diag")
        A("s_sleep 4")
        A(f"s_memrealtime s[{S_EP}:{S_EP+1}]")
        A("s_waitcnt lgkmcnt(0)")
        A(f"s_sub_u32 s{TMP1}, s{S_EP}, s98")
        A(f"s_cmp_lt_u32 s{TMP1}, s{TMP0}")
        A("s_cbranch_scc1 L_diag")
    A.label("L_end")
    A("s_endpgm")
    for u in spins:
        h, kk = u >> 3, u & 7
        k = u
        reg = S_MK + (kk >> 2)
        A.label(f"L_spin{k}")
        A(f"buffer_load_dwordx2 v[20:21], v13, s[36:39], s{S_FL} offen{PLD}")
        A(f"s_add_u32 s{S_SPIN}, s{S_SPIN}, 1")
        A("s_waitcnt vmcnt(0)")
        A(f"v_cmp_eq_u64 s[{S_MK}:{S_MK+1}], s[{S_EP}:{S_EP+1}], v[20:21]")
        A(f"s_cmp_ge_u32 s{S_SPIN}, 0x40000")
        A(f"s_cbranch_scc1 L_back{k}")
        A(f"s_bfe_u32 s{TMP0}, s{reg}, {((kk & 3) * 8 + 4 * h) | (4 << 16)}")
        A(f"s_cmp_eq_u32 s{TMP0}, 15")
        A(f"s_cbranch_scc0 L_spin{k}")
        A(f"s_branch L_back{k}")

A = Asm()
A.raw(f"; @launch grid=(256,1,1) block=(512,1,1) lds={LDS_TOTAL}")
for c_ in """Fused conformer conv module (generated by a hand-written python generator).
kernarg: x@0 w_pw1@8 dw@16 w_pw2@24 out@32 debug@40 ws@48
256 workgroups x 8 waves. WG b: M-tile (250 rows) = (b&7)*4 + (b>>6), channel tile (64 ch) = (b>>3)&7.
phase 1: h = x@w_pw1 (LDS-DMA ring, 16x16x32 MFMA), GLU, depthwise conv as a per-channel Toeplitz MFMA, SiLU -> s in ws.
hand-off between the 8 WGs of an M-tile: per-wave epoch-tagged flags in ws; epoch + XCC histogram live in d_debug.
  same-XCD groups (checked at run time) use L2-local stores, otherwise sc1 write-through stores; loads are always sc1.
phase 2: out tile 128x128 = s @ w_pw2 (32x32x16 MFMA, w_pw2 in LDS via transposing reads).""".split("\n"):
    A.raw("; " + c_)
A.raw('.amdgcn_target "amdgcn-amd-amdhsa--gfx950"')
A.raw(".text")
A.raw(f".globl {KN}")
A.raw(".p2align 8")
A.raw(f".type {KN},@function")
A.label(KN)
Q = VQ()
prologue(A, Q)
path(A, 0, Q)
epilogue1(A, 0)
phase2(A)
A.label("L_path1")
path(A, 1, Q)
epilogue1(A, 1)
slow_path(A, 0)
slow_path(A, 1)
A.label("L_code_end")
A.raw('.section .rodata,"a"')
A.raw(f""".p2align 6
.amdhsa_kernel {KN}
  .amdhsa_next_free_vgpr 256
  .amdhsa_next_free_sgpr 102
  .amdhsa_accum_offset 256
  .amdhsa_group_segment_fixed_size 0
  .amdhsa_kernarg_size 56
  .amdhsa_user_sgpr_count 2
  .amdhsa_user_sgpr_kernarg_segment_ptr 1
  .amdhsa_system_sgpr_workgroup_id_x 1
.end_amdhsa_kernel""")
open(OUT, "w").write("\n".join(A.L) + "\n")
```
